```python
import torch

def _softmax(x, axis=-1):
    return torch.softmax(x, dim=axis)
def _gelu(x):
    return torch.nn.functional.gelu(x, approximate="tanh")
def _silu(x):
    return torch.nn.functional.silu(x)
def _sigmoid(x):
    return torch.sigmoid(x)
def _layernorm(x, axis=-1, eps=1e-5):
    m = x.mean(dim=axis, keepdim=True)
    v = x.var(dim=axis, keepdim=True, unbiased=False)
    return (x - m) / torch.sqrt(v + eps)
def _scatter_add(tgt, idx, src, axis=0):
    return tgt.clone().index_add_(axis, idx, src)
def _segment_sum(src, seg, n):
    out = torch.zeros((n,) + src.shape[1:], dtype=src.dtype)
    return out.index_add_(0, seg, src)
def _pad(x, pw):
    flat = tuple(v for pair in reversed(pw) for v in pair)
    return torch.nn.functional.pad(x, flat)

kernel_name = 'concat_heads__ssm_conv_s4d__mha_block__prompt'

def setup_inputs():

    _w = (lambda a: (lambda t: t.to(torch.bfloat16) if t.is_floating_point() else t)(torch.as_tensor(a)))
    def _A_setup():
        Bsz, L, D, N = 1, 2048, 640, 128
        return {
            "u": _w((lambda *s: torch.randn(*s, dtype=torch.bfloat16) * 0.05)(Bsz, L, D)),
            "log_A_real": _w((lambda *s: torch.randn(*s, dtype=torch.bfloat16) * 3.2)(D, N) * 0.5),
            "A_imag": _w((lambda *s: torch.randn(*s, dtype=torch.bfloat16) * 0.1)(D, N) * 3.14),
            "C_real": _w((lambda *s: torch.randn(*s, dtype=torch.bfloat16) * 1.6)(D, N) / N ** 0.5),
            "C_imag": _w((lambda *s: torch.randn(*s, dtype=torch.bfloat16) * 1.6)(D, N) / N ** 0.5),
            "log_dt": _w((lambda *s: torch.randn(*s, dtype=torch.bfloat16) * 0.1)(D) * 0.5 - 4.0),
            "D_skip": _w((lambda *s: torch.randn(*s, dtype=torch.bfloat16) * 0.1)(D)),
        }
    _A_in = _A_setup()

    def _B_setup():
        B, S, D, H = 1, 2048, 640, 32
        return {
            "x": _w((lambda *s: torch.randn(*s, dtype=torch.bfloat16) * 0.2)(B, S, D)),
            "wqkv": _w((lambda *s: torch.randn(*s, dtype=torch.bfloat16) * 0.2)(D, 3 * D)),
            "wo": _w((lambda *s: torch.randn(*s, dtype=torch.bfloat16) * 0.05)(D, D)),
        }
    _B_in = _B_setup()

    return {
        "A_u": _A_in["u"],
        "A_log_A_real": _A_in["log_A_real"],
        "A_A_imag": _A_in["A_imag"],
        "A_C_real": _A_in["C_real"],
        "A_C_imag": _A_in["C_imag"],
        "A_log_dt": _A_in["log_dt"],
        "A_D_skip": _A_in["D_skip"],
        "B_x": _B_in["x"],
        "B_wqkv": _B_in["wqkv"],
        "B_wo": _B_in["wo"],
    }

def reference(A_u, A_log_A_real, A_A_imag, A_C_real, A_C_imag, A_log_dt, A_D_skip, B_x, B_wqkv, B_wo):
    def _A_ref(u, log_A_real, A_imag, C_real, C_imag, log_dt, D_skip):
        L = u.shape[1]
        dt = torch.exp(log_dt)
        A = -torch.exp(log_A_real) + 1j * A_imag
        C = (C_real + 1j * C_imag) * dt[:, None]
        pos = (lambda x, dt: x.to(dt))(torch.arange(L), log_dt.dtype)
        P = torch.exp((A * dt[:, None])[:, :, None] * pos[None, None, :])
        K = 2.0 * torch.einsum("dn,dnl->dl", C, P).real
        L2 = 2 * L
        u_t = (lambda x, *d: x.permute(*d))(u, 0, 2, 1)
        Kf = (lambda x, *a, **k: torch.fft.rfft(x.float(), *a, **k))(K, L2)
        Uf = (lambda x, *a, **k: torch.fft.rfft(x.float(), *a, **k))(u_t, L2)
        y = (lambda x, *a, **k: torch.fft.irfft(x, *a, **k).to(torch.bfloat16))(Uf * Kf[None, :, :], L2)[:, :, :L]
        y = (lambda x, *d: x.permute(*d))(y, 0, 2, 1)
        return y + u * D_skip[None, None, :]

    def _B_ref(x, wqkv, wo):
        B, S, D = x.shape
        H = 32
        Dh = D // H
        qkv = (lambda x, *d: x.permute(*d))((x @ wqkv).reshape(B, S, 3, H, Dh), 2, 0, 3, 1, 4)
        q, k, v = qkv[0], qkv[1], qkv[2]
        scores = torch.einsum("bhqd,bhkd->bhqk", q, k) * (Dh ** -0.5)
        p = _softmax(scores, axis=-1)
        o = torch.einsum("bhqk,bhkd->bhqd", p, v)
        return (lambda x, *d: x.permute(*d))(o, 0, 2, 1, 3).reshape(B, S, D) @ wo

    a = _A_ref(A_u, A_log_A_real, A_A_imag, A_C_real, A_C_imag, A_log_dt, A_D_skip)
    b = _B_ref(B_x, B_wqkv, B_wo)
    return torch.concatenate([a, b], axis=-1)
```

```python
import sys, math, struct

def f32bits(x): return struct.unpack("<I", struct.pack("<f", x))[0]

class Asm:
    def __init__(self): self.l = []
    def __call__(self, s):
        for x in s.split("\n"):
            x = x.strip()
            if x: self.l.append("    " + x)
    def label(self, n): self.l.append(n + ":")
    def raw(self, s): self.l.append(s)
    def text(self): return "\n".join(self.l) + "\n"

def vr(b, n): return f"v[{b}:{b+n-1}]" if n > 1 else f"v{b}"
def sr(b, n): return f"s[{b}:{b+n-1}]" if n > 1 else f"s{b}"

WS_Q  = 0
WS_KV = 0x280000
WS_O  = 0x780000
WS_UT = 0xA00000
WS_SIZE = 0xD00000
KA_U, KA_LAR, KA_AIM, KA_CR, KA_CI, KA_LDT, KA_DSK, KA_X, KA_WQKV, KA_WO, KA_OUT, KA_DBG, KA_WS = [8*i for i in range(13)]

def srd(a, s, ptr, size):
    a(f"s_mov_b32 s{s}, s{ptr}")
    a(f"s_and_b32 s{s+1}, s{ptr+1}, 0xffff")
    a(f"s_mov_b32 s{s+2}, {size}")
    a(f"s_mov_b32 s{s+3}, 0x00020000")

def kernel_header(a, name):
    a.raw(f".globl {name}")
    a.raw(".p2align 8")
    a.raw(f".type {name},@function")
    a.label(name)

def kernel_desc(name, vgpr, sgpr=102):
    acc = min(256, (vgpr + 3)//4*4)
    return f""".p2align 6
.amdhsa_kernel {name}
  .amdhsa_next_free_vgpr {vgpr}
  .amdhsa_next_free_sgpr {sgpr}
  .amdhsa_accum_offset {acc}
  .amdhsa_group_segment_fixed_size 0
  .amdhsa_kernarg_size 104
  .amdhsa_user_sgpr_count 2
  .amdhsa_user_sgpr_kernarg_segment_ptr 1
  .amdhsa_system_sgpr_workgroup_id_x 1
.end_amdhsa_kernel
"""

class Gemm:
    def __init__(s, a, tag, nks, nstages, nslots, stage_bytes, woff, nd, srdx, srdw,
                 x_stage_step, w_stage_step, nax, naw, xread, wread, xsize, wsize):
        s.a=a; s.tag=tag; s.nks=nks; s.nst=nstages; s.nsl=nslots; s.sb=stage_bytes; s.woff=woff; s.nd=nd
        s.srdx=srdx; s.srdw=srdw; s.xs=x_stage_step; s.ws=w_stage_step
        s.xsize=xsize; s.wsize=wsize; s.nax=nax; s.naw=naw; s.xread=xread; s.wread=wread
        s.ACC=0; s.XF=64; s.WF=80
        s.DX=96; s.DW=s.DX+nd
        s.AX=s.DW+nd; s.AW=s.AX+nax
        s.CX=s.AW+naw; s.CW=s.CX+nax
        s.end=s.CW+naw
        s.sXO=40; s.sWO=41; s.sLD=42; s.sCUR=43; s.sST=44; s.sW1K=45; s.sT=46; s.sIS=47
    def issue_stage(s):
        a=s.a
        a(f"s_mov_b32 m0, s{s.sLD}")
        for k in range(s.nd):
            a("s_nop 0")
            a(f"buffer_load_dwordx4 v{s.DX+k}, {sr(s.srdx,4)}, s{s.sXO} offen lds")
            if k < s.nd-1: a(f"s_add_u32 m0, m0, 4096")
        a(f"s_add_u32 m0, s{s.sLD}, {s.woff}")
        for k in range(s.nd):
            a("s_nop 0")
            a(f"buffer_load_dwordx4 v{s.DW+k}, {sr(s.srdw,4)}, s{s.sWO} offen lds")
            if k < s.nd-1: a(f"s_add_u32 m0, m0, 4096")
        a(f"s_add_u32 s{s.sIS}, s{s.sIS}, 1")
        a(f"s_add_u32 s{s.sXO}, s{s.sXO}, {s.xs}")
        a(f"s_add_u32 s{s.sWO}, s{s.sWO}, {s.ws}")
        a(f"s_cmp_ge_u32 s{s.sIS}, {s.nst}")
        a(f"s_cselect_b32 s{s.sXO}, {s.xsize}, s{s.sXO}")
        a(f"s_cselect_b32 s{s.sWO}, {s.wsize}, s{s.sWO}")
        a(f"s_add_u32 s{s.sLD}, s{s.sLD}, {s.sb}")
        a(f"s_sub_u32 s{s.sT}, s{s.sLD}, {s.sb*s.nsl}")
        a(f"s_cmp_ge_u32 s{s.sLD}, {s.sb*s.nsl}")
        a(f"s_cselect_b32 s{s.sLD}, s{s.sT}, s{s.sLD}")
    def prologue(s):
        a=s.a
        a(f"s_mov_b32 s{s.sLD}, s{s.sW1K}")
        a(f"s_mov_b32 s{s.sIS}, 0")
        for _ in range(s.nsl-1): s.issue_stage()
    def zero_acc(s):
        for r in range(64): s.a(f"v_mov_b32 v{s.ACC+r}, 0")
    def reads(s, ks):
        a=s.a; b=ks&1
        for i in range(2):
            reg, off = s.xread(ks, i)
            a(f"ds_read_b128 {vr(s.XF+8*b+4*i,4)}, v{s.CX+reg} offset:{off}")
        for j in range(2):
            for sec in range(2):
                reg, off = s.wread(ks, j, sec)
                a(f"ds_read_b64_tr_b16 {vr(s.WF+8*b+4*j+2*sec,2)}, v{s.CW+reg} offset:{off}")
    def loop(s, swap, sub):
        a=s.a
        L=f"L_{s.tag}_{sub}"
        a(f"s_mov_b32 s{s.sCUR}, 0")
        a(f"s_mov_b32 s{s.sST}, 0")
        a.label(L)
        for k in range(s.nax): a(f"v_add_u32 v{s.CX+k}, s{s.sCUR}, v{s.AX+k}")
        for k in range(s.naw): a(f"v_add_u32 v{s.CW+k}, s{s.sCUR}, v{s.AW+k}")
        a(f"s_waitcnt vmcnt({2*s.nd*(s.nsl-2)})")
        a("s_barrier")
        s.reads(0)
        s.issue_stage()
        for ks in range(s.nks):
            if ks < s.nks-1:
                s.reads(ks+1)
                a("s_waitcnt lgkmcnt(6)")
            else:
                a("s_waitcnt lgkmcnt(0)")
            b=ks&1
            for j in range(2):
                for i in range(2):
                    acc=vr(s.ACC+16*(2*j+i),16)
                    X=vr(s.XF+8*b+4*i,4); W=vr(s.WF+8*b+4*j,4)
                    if swap: a(f"v_mfma_f32_32x32x16_bf16 {acc}, {X}, {W}, {acc}")
                    else:    a(f"v_mfma_f32_32x32x16_bf16 {acc}, {W}, {X}, {acc}")
        a(f"s_add_u32 s{s.sCUR}, s{s.sCUR}, {s.sb}")
        a(f"s_cmp_ge_u32 s{s.sCUR}, {s.sb*s.nsl}")
        a(f"s_cselect_b32 s{s.sCUR}, 0, s{s.sCUR}")
        a(f"s_add_u32 s{s.sST}, s{s.sST}, 1")
        a(f"s_cmp_lt_u32 s{s.sST}, {s.nst}")
        a(f"s_cbranch_scc1 {L}")
        a("s_nop 15")

def wave_lane(a, vlane, swave, tmp):
    a(f"v_lshrrev_b32 v{tmp}, 6, v0")
    a(f"v_and_b32 v{vlane}, 63, v0")
    a(f"v_readfirstlane_b32 s{swave}, v{tmp}")

def w_tr_addr(a, dst, vl, t0, t1, t2, swn, j, woff, rowmul_hi):
    a(f"v_bfe_u32 v{t0}, v{vl}, 2, 2")
    a(f"v_bfe_u32 v{t1}, v{vl}, 4, 1")
    a(f"v_lshlrev_b32 v{t1}, 1, v{t1}")
    a(f"v_bfe_u32 v{t2}, v{vl}, 1, 1")
    a(f"v_add_u32 v{t1}, v{t1}, v{t2}")
    a(f"s_lshl_b32 s30, s{swn}, 3")
    a(f"s_add_u32 s30, s30, {4*j}")
    a(f"v_add_u32 v{t1}, s30, v{t1}")
    a(f"v_lshlrev_b32 v{t2}, 2, v{t0}")
    a(f"v_xor_b32 v{t1}, v{t1}, v{t2}")
    a(f"v_lshlrev_b32 v{t1}, 4, v{t1}")
    a(f"v_and_b32 v{t2}, 1, v{vl}")
    a(f"v_lshl_add_u32 v{t1}, v{t2}, 3, v{t1}")
    a(f"v_lshrrev_b32 v{t2}, 5, v{vl}")
    a(f"v_mul_u32_u24 v{t2}, {rowmul_hi}, v{t2}")
    a(f"v_add_u32 v{t2}, v{t2}, v{t0}")
    a(f"v_lshl_add_u32 v{t1}, v{t2}, 8, v{t1}")
    a(f"v_add_u32 v{dst}, {woff}, v{t1}")

K1_NSL = 4
K1_LDS = 32768*K1_NSL
def gen_k1(a):
    kernel_header(a, "qkv_kernel")
    a(f"s_load_dwordx4 s[4:7], s[0:1], {KA_X}")
    a(f"s_load_dwordx2 s[8:9], s[0:1], {KA_WS}")
    a(f"s_load_dwordx2 s[10:11], s[0:1], {KA_U}")
    a("s_cmp_ge_u32 s2, 256")
    a("s_cbranch_scc1 L_k1_end")
    VL=200; T0,T1,T2,T3=201,202,203,204
    sW,sMT,sNT,sWM,sWN=32,33,34,35,36
    wave_lane(a, VL, sW, T0)
    a("s_and_b32 s28, s2, 7")
    a("s_lshr_b32 s29, s2, 3")
    a("s_and_b32 s30, s28, 3")
    a("s_lshl_b32 s30, s30, 2")
    a("s_and_b32 s31, s29, 3")
    a(f"s_add_u32 s{sMT}, s30, s31")
    a("s_lshr_b32 s30, s28, 2")
    a("s_lshl_b32 s30, s30, 3")
    a("s_lshr_b32 s31, s29, 2")
    a(f"s_add_u32 s{sNT}, s30, s31")
    a(f"s_and_b32 s{sWM}, s{sW}, 1")
    a(f"s_lshr_b32 s{sWN}, s{sW}, 1")
    a("s_waitcnt lgkmcnt(0)")
    srd(a, 12, 4, 2048*1280)
    srd(a, 16, 6, 640*3840)
    srd(a, 20, 8, WS_SIZE)
    srd(a, 24, 10, 2048*1280)
    a(f"s_cmp_eq_u32 s{sNT}, 15")
    a("s_cbranch_scc1 L_k1_tr")
    g = Gemm(a, "k1", nks=4, nstages=10, nslots=K1_NSL, stage_bytes=32768, woff=16384, nd=4, srdx=12, srdw=16,
             x_stage_step=128, w_stage_step=64*3840, nax=4, naw=2,
             xread=lambda ks,i: (ks, 4096*i), wread=lambda ks,j,sec: (j, 4096*ks+1024*sec),
             xsize=2048*1280, wsize=640*3840)
    a(f"v_lshrrev_b32 v{T0}, 4, v{VL}")
    a(f"s_lshl_b32 s30, s{sWM}, 2")
    a(f"v_add_u32 v{T0}, s30, v{T0}")
    a(f"v_and_b32 v{T1}, 7, v{VL}")
    a(f"v_xor_b32 v{T0}, v{T0}, v{T1}")
    a(f"v_lshlrev_b32 v{T0}, 4, v{T0}")
    a(f"v_lshrrev_b32 v{T1}, 3, v{VL}")
    a(f"v_mul_u32_u24 v{T1}, 1280, v{T1}")
    a(f"v_add_u32 v{T0}, v{T0}, v{T1}")
    a(f"s_mul_i32 s30, s{sW}, {8*1280}")
    a(f"s_mul_i32 s31, s{sMT}, {128*1280}")
    a("s_add_u32 s30, s30, s31")
    a(f"v_add_u32 v{g.DX}, s30, v{T0}")
    for k in range(1,4): a(f"v_add_u32 v{g.DX+k}, {k*40960}, v{g.DX}")
    a(f"v_lshrrev_b32 v{T0}, 4, v{VL}")
    a(f"v_lshlrev_b32 v{T1}, 2, v{T0}")
    a(f"v_and_b32 v{T2}, 15, v{VL}")
    a(f"v_xor_b32 v{T1}, v{T1}, v{T2}")
    a(f"v_lshlrev_b32 v{T1}, 4, v{T1}")
    a(f"v_mul_u32_u24 v{T0}, 3840, v{T0}")
    a(f"v_add_u32 v{T0}, v{T0}, v{T1}")
    a(f"s_mul_i32 s30, s{sW}, {4*3840}")
    a(f"s_lshl_b32 s31, s{sNT}, 8")
    a("s_add_u32 s30, s30, s31")
    a(f"v_add_u32 v{g.DW}, s30, v{T0}")
    for k in range(1,4): a(f"v_add_u32 v{g.DW+k}, {k*16*3840}, v{g.DW}")
    a(f"s_mov_b32 s{g.sXO}, 0")
    a(f"s_mov_b32 s{g.sWO}, 0")
    a(f"s_lshl_b32 s{g.sW1K}, s{sW}, 10")
    g.prologue()
    a(f"v_and_b32 v{T0}, 31, v{VL}")
    a(f"v_bfe_u32 v{T1}, v{VL}, 1, 3")
    a(f"v_lshrrev_b32 v{T2}, 5, v{VL}")
    a(f"v_xor_b32 v{T1}, v{T1}, v{T2}")
    a(f"v_lshlrev_b32 v{T1}, 4, v{T1}")
    a(f"v_lshl_add_u32 v{T1}, v{T0}, 7, v{T1}")
    a(f"s_lshl_b32 s30, s{sWM}, 13")
    a(f"v_add_u32 v{g.AX}, s30, v{T1}")
    for k in range(1,4): a(f"v_xor_b32 v{g.AX+k}, {k<<5}, v{g.AX}")
    for j in range(2): w_tr_addr(a, g.AW+j, VL, T0, T1, T2, sWN, j, 16384, 8)
    g.zero_acc()
    EA = 128
    a(f"s_cmp_ge_u32 s{sNT}, 10")
    a("s_cbranch_scc1 L_k1_v")
    a(f"s_cmp_ge_u32 s{sNT}, 5")
    a(f"s_cselect_b32 s58, 1, 0")
    a(f"s_cselect_b32 s52, {WS_KV}, {WS_Q}")
    a(f"s_cselect_b32 s53, 5, 0")
    a(f"s_cselect_b32 s54, 1.0, {hex(f32bits(20**-0.5*math.log2(math.e)))}")
    a(f"s_cselect_b64 s[56:57], -1, 0")
    a(f"s_lshl_b32 s50, 81920, s58")
    a(f"s_lshl_b32 s51, 2560, s58")
    a(f"s_sub_u32 s53, s{sNT}, s53")
    a(f"s_lshl_b32 s53, s53, 5")
    a(f"s_lshl_b32 s55, s{sWN}, 4")
    a(f"s_add_u32 s53, s53, s55")
    a(f"s_lshl_b32 s55, s{sMT}, 1")
    a(f"s_add_u32 s55, s55, s{sWM}")
    a(f"s_mul_i32 s55, s55, s51")
    a(f"s_add_u32 s52, s52, s55")
    a(f"v_and_b32 v{T0}, 31, v{VL}")
    a(f"v_and_b32 v{T1}, 19, v{T0}")
    a(f"v_bfe_u32 v{T2}, v{T0}, 2, 1")
    a(f"v_lshl_add_u32 v{T1}, v{T2}, 3, v{T1}")
    a(f"v_bfe_u32 v{T2}, v{T0}, 3, 1")
    a(f"v_lshl_add_u32 v{T1}, v{T2}, 2, v{T1}")
    a(f"v_cndmask_b32 v{T0}, v{T0}, v{T1}, s[56:57]")
    a(f"v_lshlrev_b32 v{T0}, 4, v{T0}")
    a(f"v_add_u32 v{T0}, s52, v{T0}")
    a(f"v_lshrrev_b32 v{T1}, 5, v{VL}")
    a(f"v_add_u32 v{T1}, s53, v{T1}")
    T4,T5=205,206
    for j in range(2):
        for rq in range(4):
            e = EA + 2*(4*j+rq)
            a(f"v_add_u32 v{T2}, {8*j+2*rq}, v{T1}")
            a(f"v_mul_u32_u24 v{T3}, 52429, v{T2}")
            a(f"v_lshrrev_b32 v{T3}, 18, v{T3}")
            a(f"v_mul_u32_u24 v{T4}, 5, v{T3}")
            a(f"v_sub_u32 v{T2}, v{T2}, v{T4}")
            a(f"v_mul_u32_u24 v{T3}, s50, v{T3}")
            a(f"v_add_u32 v{T3}, v{T3}, v{T0}")
            a(f"v_lshrrev_b32 v{T4}, 1, v{T2}")
            a(f"v_lshlrev_b32 v{T4}, 9, v{T4}")
            a(f"v_and_b32 v{T5}, 1, v{T2}")
            a(f"v_lshl_add_u32 v{T4}, v{T5}, 3, v{T4}")
            a(f"v_lshrrev_b32 v{T5}, 2, v{T2}")
            a(f"v_lshl_add_u32 v{T4}, v{T5}, 10, v{T4}")
            a(f"v_add_u32 v{e}, v{T3}, v{T4}")
            a(f"v_mul_u32_u24 v{T5}, 1016, v{T5}")
            a(f"v_sub_u32 v{T5}, 1024, v{T5}")
            a(f"v_add_u32 v{e+1}, v{e}, v{T5}")
    g.loop(False, "qk")
    for r in range(64): a(f"v_mul_f32 v{r}, s54, v{r}")
    PK=64
    n=0
    for j in range(2):
        for i in range(2):
            for rq in range(4):
                b=16*(2*j+i)+4*rq
                p=PK+2*(n%16); n+=1
                a(f"v_cvt_pk_bf16_f32 v{p}, v{b}, v{b+1}")
                a(f"v_cvt_pk_bf16_f32 v{p+1}, v{b+2}, v{b+3}")
                a(f"buffer_store_dwordx2 {vr(p,2)}, v{EA+2*(4*j+rq)+i}, s[20:23], 0 offen")
    a("s_endpgm")
    a.label("L_k1_v")
    a(f"s_sub_u32 s53, s{sNT}, 10")
    a(f"s_lshl_b32 s53, s53, 7")
    a(f"s_lshl_b32 s55, s{sWN}, 6")
    a(f"s_add_u32 s53, s53, s55")
    a(f"s_lshl_b32 s55, s{sMT}, 1")
    a(f"s_add_u32 s55, s55, s{sWM}")
    a(f"s_mul_i32 s55, s55, 5120")
    a(f"s_add_u32 s52, s55, {WS_KV+2560}")
    a(f"s_mov_b32 s50, 163840")
    a(f"v_lshrrev_b32 v{T0}, 5, v{VL}")
    a(f"v_mul_u32_u24 v{T0}, 320, v{T0}")
    a(f"v_add_u32 v{T0}, s52, v{T0}")
    a(f"v_and_b32 v{T1}, 31, v{VL}")
    a(f"v_add_u32 v{T1}, s53, v{T1}")
    for j in range(2):
        a(f"v_add_u32 v{T2}, {32*j}, v{T1}")
        a(f"v_mul_u32_u24 v{T3}, 52429, v{T2}")
        a(f"v_lshrrev_b32 v{T3}, 20, v{T3}")
        a(f"v_mul_u32_u24 v{T4}, 20, v{T3}")
        a(f"v_sub_u32 v{T2}, v{T2}, v{T4}")
        a(f"v_mul_u32_u24 v{T3}, s50, v{T3}")
        a(f"v_lshl_add_u32 v{T3}, v{T2}, 4, v{T3}")
        a(f"v_add_u32 v{EA+j}, v{T3}, v{T0}")
    g.loop(True, "vloop")
    n=0
    for j in range(2):
        for i in range(2):
            for s_ in range(2):
                b=16*(2*j+i)+8*s_
                p=PK+4*(n%8); n+=1
                for q in range(4):
                    a(f"v_cvt_pk_bf16_f32 v{p+q}, v{b+2*q}, v{b+2*q+1}")
                a(f"buffer_store_dwordx4 {vr(p,4)}, v{EA+j}, s[20:23], 0 offen offset:{1280*i+640*s_}")
    a("s_endpgm")
    a.label("L_k1_tr")
    a(f"s_lshl_b32 s50, s{sMT}, 7")
    a(f"s_lshl_b32 s51, s{sWM}, 6")
    a(f"s_add_u32 s50, s50, s51")
    a(f"v_lshrrev_b32 v{T0}, 3, v{VL}")
    a(f"v_lshlrev_b32 v{T0}, 3, v{T0}")
    a(f"v_add_u32 v{T0}, s50, v{T0}")
    a(f"v_and_b32 v{T1}, 7, v{VL}")
    a(f"v_mul_u32_u24 v{T2}, 1280, v{T0}")
    a(f"v_lshl_add_u32 v{T2}, v{T1}, 4, v{T2}")
    a(f"s_mul_i32 s51, s{sWN}, 640")
    a(f"v_add_u32 v{T2}, s51, v{T2}")
    a(f"v_lshlrev_b32 v{T3}, 15, v{T1}")
    a(f"v_lshl_add_u32 v{T3}, v{T0}, 1, v{T3}")
    a(f"s_mul_i32 s51, s{sWN}, {5*64*4096}")
    a(f"s_add_u32 s51, s51, {WS_UT}")
    a(f"v_add_u32 v{T3}, s51, v{T3}")
    for tau in range(5):
        for rr in range(8):
            a(f"s_mov_b32 s52, {rr*1280}")
            a(f"buffer_load_dwordx4 {vr(32*tau+4*rr,4)}, v{T2}, s[24:27], s52 offen offset:{128*tau}")
    a("s_mov_b32 s54, 0x05040100")
    a("s_mov_b32 s55, 0x07060302")
    OB=160
    for tau in range(5):
        a("s_waitcnt vmcnt(32)")
        for d in range(4):
            for hi in range(2):
                cc=2*d+hi
                for e in range(4):
                    a(f"v_perm_b32 v{OB+4*cc+e}, v{32*tau+4*(2*e+1)+d}, v{32*tau+4*(2*e)+d}, s{54+hi}")
        for cc in range(8):
            a(f"s_mov_b32 s52, {(64*tau+cc)*4096}")
            a(f"buffer_store_dwordx4 {vr(OB+4*cc,4)}, v{T3}, s[20:23], s52 offen")
        a("s_nop 2")
    a.label("L_k1_end")
    a("s_endpgm")

K2_LDS = 163840
def gen_k2(a):
    kernel_header(a, "attn_kernel")
    a(f"s_load_dwordx2 s[8:9], s[0:1], {KA_WS}")
    a("s_cmp_ge_u32 s2, 256")
    a("s_cbranch_scc1 L_k2_end")
    S=[0,16]; O=32; Q=48; QT=52
    KM=[56,60]; KT=64
    KT=[64,68]
    V=[72,80]
    IDX=88; AK=89; AV=90; VL=91; T0=92; T1=93; T2=94; T3=95; MX=96
    sW,sH,sT=32,33,34
    wave_lane(a, VL, sW, T0)
    a("s_and_b32 s28, s2, 7")
    a("s_lshl_b32 s28, s28, 2")
    a("s_bfe_u32 s29, s2, 0x20003")
    a(f"s_add_u32 s{sH}, s28, s29")
    a("s_lshr_b32 s28, s2, 5")
    a("s_lshl_b32 s28, s28, 3")
    a(f"s_add_u32 s{sT}, s28, s{sW}")
    a(f"v_lshlrev_b32 v{AK}, 4, v{VL}")
    a(f"v_mov_b32 v{QT}, 0")
    a(f"v_mov_b32 v{QT+1}, 0")
    a(f"s_mul_i32 s36, s{sH}, 81920")
    a(f"s_lshr_b32 s28, s{sT}, 1")
    a("s_mul_i32 s28, s28, 2560")
    a("s_add_u32 s36, s36, s28")
    a(f"s_and_b32 s29, s{sT}, 1")
    a("s_lshl_b32 s28, s29, 10")
    a("s_add_u32 s37, s36, s28")
    a("s_lshl_b32 s28, s29, 3")
    a("s_add_u32 s38, s36, s28")
    a(f"s_mul_i32 s39, s{sH}, 163840")
    a(f"s_lshl_b32 s40, s{sW}, 10")
    a("s_add_u32 s39, s39, s40")
    a(f"s_add_u32 s39, s39, {WS_KV}")
    a("s_waitcnt lgkmcnt(0)")
    srd(a, 20, 8, WS_SIZE)
    a(f"buffer_load_dwordx4 {vr(Q,4)}, v{AK}, s[20:23], s37 offen")
    a("s_mov_b32 exec_hi, 0")
    a(f"buffer_load_dwordx2 {vr(QT,2)}, v{AK}, s[20:23], s38 offen offset:2048")
    a("s_mov_b64 exec, -1")
    a("s_mov_b32 m0, s40")
    for j in range(20):
        a("s_nop 0")
        a(f"buffer_load_dwordx4 v{AK}, s[20:23], s39 offen lds")
        if j<19:
            a("s_add_u32 m0, m0, 8192")
            a("s_add_u32 s39, s39, 8192")
    a(f"v_and_b32 v{T0}, 31, v{VL}")
    a(f"v_lshrrev_b32 v{T1}, 5, v{VL}")
    a(f"v_mul_u32_u24 v{T1}, 320, v{T1}")
    a(f"v_lshl_add_u32 v{AV}, v{T0}, 4, v{T1}")
    a("s_mov_b32 s42, 0x000fffff")
    a("s_mov_b32 s43, 0x000fffff")
    a(f"v_mov_b32 v{IDX}, 0xdddddddd")
    for r in range(16): a(f"v_mov_b32 v{V[0]+r}, 0x3f803f80")
    for r in range(16): a(f"v_mov_b32 v{O+r}, 0")

    def koff(t): return (t>>1)*5120 + (t&1)*1024
    def toff(t): return (t>>1)*5120 + 2048
    def voff(t,s_): return (t>>1)*5120 + 2560 + (t&1)*1280 + 640*s_
    def readK(t, trel):
        a(f"ds_read_b128 {vr(KM[t&1],4)}, v{AK} offset:{koff(trel)}")
        if t&1==0:
            a(f"ds_read_b128 {vr(KT[(t>>1)&1],4)}, v{AK} offset:{toff(trel)}")
    def readV(t, trel):
        a("s_mov_b64 exec, s[42:43]")
        a(f"ds_read_b128 {vr(V[t&1],4)}, v{AV} offset:{voff(trel,0)}")
        a(f"ds_read_b128 {vr(V[t&1]+4,4)}, v{AV} offset:{voff(trel,1)}")
        a("s_mov_b64 exec, -1")
    def qk1(t): a(f"v_mfma_f32_32x32x16_bf16 {vr(S[t&1],16)}, {vr(KM[t&1],4)}, {vr(Q,4)}, 0")
    def qk2(t): a(f"v_mfma_f32_32x32x8_bf16 {vr(S[t&1],16)}, {vr(KT[(t>>1)&1]+2*(t&1),2)}, {vr(QT,2)}, {vr(S[t&1],16)}")
    def pv(t,s_): a(f"v_smfmac_f32_32x32x32_bf16 {vr(O,16)}, {vr(V[t&1]+4*s_,4)}, {vr(S[t&1]+8*s_,8)}, v{IDX}")
    def ex(t,r): a(f"v_exp_f32 v{S[t&1]+r}, v{S[t&1]+r}")

    UN=8
    a("s_waitcnt vmcnt(18)")
    a("s_barrier")
    readK(0,0); readK(1,1); readV(0,0)
    for r in range(16): a(f"v_mov_b32 v{S[1]+r}, 0")
    a("s_waitcnt lgkmcnt(0)")
    qk1(0); qk2(0)
    a("s_nop 15")
    a("s_mov_b32 s44, 0")
    a.label("L_k2_loop")
    for t in range(UN):
        if t==2 or t==6:
            lab=f"L_k2_s{t}"
            if t==2:
                a("s_cmp_lg_u32 s44, 0")
                a(f"s_cbranch_scc1 {lab}")
                a("s_waitcnt vmcnt(17)")
                a("s_barrier")
            else:
                a("s_cmp_gt_u32 s44, 1")
                a(f"s_cbranch_scc1 {lab}")
                a("s_cmp_eq_u32 s44, 0")
                a(f"s_cbranch_scc1 {lab}_a")
                a("s_waitcnt vmcnt(0)")
                a.label(f"{lab}_a")
                a("s_waitcnt vmcnt(15)")
                a("s_barrier")
            a.label(lab)
        ex(t,0); ex(t,1)
        pv(t-1,1)
        ex(t,2); ex(t,3); ex(t,4); ex(t,5)
        a("s_waitcnt lgkmcnt(0)")
        qk1(t+1)
        ex(t,6); ex(t,7); ex(t,8); ex(t,9)
        qk2(t+1)
        readK(t+2, t+2)
        readV(t+1, t+1)
        ex(t,10); ex(t,11); ex(t,12); ex(t,13)
        pv(t,0)
        ex(t,14); ex(t,15)
        if t==UN-1:
            a(f"v_add_u32 v{AK}, {UN*2560}, v{AK}")
            a(f"v_add_u32 v{AV}, {UN*2560}, v{AV}")
            a("s_add_u32 s44, s44, 1")
            a(f"s_cmp_lt_u32 s44, {64//UN}")
            a("s_cbranch_scc1 L_k2_loop")
    a("s_nop 1")
    pv(UN-1,1)
    a("s_waitcnt lgkmcnt(0)")
    a("s_nop 15")
    a(f"v_mov_b32 v{T0}, v{O+8}")
    a(f"v_mov_b32 v{T1}, v{O+8}")
    a("s_nop 1")
    a(f"v_permlane32_swap_b32 v{T0}, v{T1}")
    a(f"s_mov_b32 s46, {hex(f32bits(2.0**-64))}")
    a(f"s_mov_b32 s47, {hex(f32bits(2.0**64))}")
    a(f"v_cmp_le_f32 vcc, s46, v{T1}")
    a(f"v_cmp_ge_f32 s[48:49], s47, v{T1}")
    a("s_and_b64 s[48:49], s[48:49], vcc")
    a("s_cmp_eq_u64 s[48:49], -1")
    a("s_cbranch_scc0 L_k2_slow")
    a.label("L_k2_fin")
    a(f"v_rcp_f32 v{T1}, v{T1}")
    a(f"s_mul_i32 s36, s{sT}, 40960")
    a(f"s_lshr_b32 s37, s{sH}, 2")
    a("s_mul_i32 s37, s37, 5120")
    a("s_add_u32 s36, s36, s37")
    a(f"s_add_u32 s36, s36, {WS_O}")
    a(f"s_and_b32 s37, s{sH}, 3")
    a("s_lshl_b32 s38, s37, 10")
    a("s_add_u32 s38, s38, s36")
    a("s_lshr_b32 s39, s37, 1")
    a("s_lshl_b32 s39, s39, 9")
    a("s_and_b32 s37, s37, 1")
    a("s_lshl_b32 s37, s37, 3")
    a("s_add_u32 s39, s39, s37")
    a("s_add_u32 s39, s39, s36")
    a("s_add_u32 s39, s39, 4096")
    for r in range(12): a(f"v_mul_f32 v{O+r}, v{O+r}, v{T1}")
    for q in range(6): a(f"v_cvt_pk_bf16_f32 v{q}, v{O+2*q}, v{O+2*q+1}")
    a(f"v_lshlrev_b32 v{T2}, 4, v{VL}")
    a(f"buffer_store_dwordx4 v[0:3], v{T2}, s[20:23], s38 offen")
    a("s_mov_b32 exec_hi, 0")
    a(f"buffer_store_dwordx2 v[4:5], v{T2}, s[20:23], s39 offen")
    a.label("L_k2_end")
    a("s_endpgm")
    a.label("L_k2_slow")
    def slow_tile_scores(t):
        a(f"ds_read_b128 {vr(KM[0],4)}, v{AK} offset:{koff(t)}")
        a(f"ds_read_b128 {vr(KT[0],4)}, v{AK} offset:{toff(t)}")
        a("s_waitcnt lgkmcnt(0)")
        a(f"v_mfma_f32_32x32x16_bf16 {vr(S[0],16)}, {vr(KM[0],4)}, {vr(Q,4)}, 0")
        a(f"v_mfma_f32_32x32x8_bf16 {vr(S[0],16)}, {vr(KT[0]+2*t,2)}, {vr(QT,2)}, {vr(S[0],16)}")
        a("s_nop 15")
    a(f"v_lshlrev_b32 v{AK}, 4, v{VL}")
    a(f"v_mov_b32 v{MX}, 0xff800000")
    a("s_mov_b32 s44, 0")
    a.label("L_k2_slow1")
    for t in range(2):
        slow_tile_scores(t)
        for r in range(0,16,2): a(f"v_max3_f32 v{MX}, v{S[0]+r}, v{S[0]+r+1}, v{MX}")
    a(f"v_add_u32 v{AK}, 5120, v{AK}")
    a("s_add_u32 s44, s44, 1")
    a("s_cmp_lt_u32 s44, 32")
    a("s_cbranch_scc1 L_k2_slow1")
    a(f"v_mov_b32 v{T0}, v{MX}")
    a("s_nop 1")
    a(f"v_permlane32_swap_b32 v{T0}, v{MX}")
    a("s_nop 1")
    a(f"v_max_f32 v{MX}, v{MX}, v{T0}")
    a(f"v_lshlrev_b32 v{AK}, 4, v{VL}")
    a(f"v_subrev_u32 v{AV}, {64*2560}, v{AV}")
    for r in range(16): a(f"v_mov_b32 v{O+r}, 0")
    a("s_mov_b32 s44, 0")
    a.label("L_k2_slow2")
    for t in range(2):
        a("s_mov_b64 exec, s[42:43]")
        a(f"ds_read_b128 {vr(V[0],4)}, v{AV} offset:{voff(t,0)}")
        a(f"ds_read_b128 {vr(V[0]+4,4)}, v{AV} offset:{voff(t,1)}")
        a("s_mov_b64 exec, -1")
        slow_tile_scores(t)
        for r in range(16): a(f"v_sub_f32 v{S[0]+r}, v{S[0]+r}, v{MX}")
        for r in range(16): a(f"v_exp_f32 v{S[0]+r}, v{S[0]+r}")
        a("s_nop 2")
        a(f"v_smfmac_f32_32x32x32_bf16 {vr(O,16)}, {vr(V[0],4)}, {vr(S[0],8)}, v{IDX}")
        a(f"v_smfmac_f32_32x32x32_bf16 {vr(O,16)}, {vr(V[0]+4,4)}, {vr(S[0]+8,8)}, v{IDX}")
        a("s_nop 15")
    a(f"v_add_u32 v{AK}, 5120, v{AK}")
    a(f"v_add_u32 v{AV}, 5120, v{AV}")
    a("s_add_u32 s44, s44, 1")
    a("s_cmp_lt_u32 s44, 32")
    a("s_cbranch_scc1 L_k2_slow2")
    a(f"v_mov_b32 v{T0}, v{O+8}")
    a(f"v_mov_b32 v{T1}, v{O+8}")
    a("s_nop 1")
    a(f"v_permlane32_swap_b32 v{T0}, v{T1}")
    a("s_nop 1")
    a("s_branch L_k2_fin")

K3_LDS = 163840
R0_OFF=0; R1_OFF=4640; U0_OFF=9216; U1_OFF=13440; TB_OFF=17664; REG=26624; YT_OFF=4*REG
LOG2E = math.log2(math.e)
def split_log2e():
    hi = struct.unpack("<f", struct.pack("<f", LOG2E))[0]
    lo = LOG2E - hi
    return hi, lo

def exp_bf16(a, dst, src, t0, t1, sLh, sLl, sLn2):
    a(f"v_mul_f32 v{t0}, s{sLh}, v{src}")
    a(f"v_fma_f32 v{t1}, v{src}, s{sLh}, -v{t0}")
    a(f"v_fma_f32 v{t1}, v{src}, s{sLl}, v{t1}")
    a(f"v_exp_f32 v{t0}, v{t0}")
    a(f"v_mul_f32 v{t1}, s{sLn2}, v{t1}")
    a(f"v_fma_f32 v{t0}, v{t0}, v{t1}, v{t0}")
    a(f"v_cvt_pk_bf16_f32 v{t0}, v{t0}, v{t0}")
    a(f"v_lshlrev_b32 v{dst}, 16, v{t0}")

def cmul(a, d, x, w, t):
    a(f"v_pk_mul_f32 {vr(t,2)}, {vr(x,2)}, {vr(w,2)} op_sel:[0,0] op_sel_hi:[0,1]")
    a(f"v_pk_fma_f32 {vr(d,2)}, {vr(x,2)}, {vr(w,2)}, {vr(t,2)} op_sel:[1,1,0] op_sel_hi:[1,0,1] neg_lo:[0,1,0]")

def cpow(a, d, al, be, mult, t0, t1):
    m = hex(f32bits(float(mult)))
    a(f"v_mul_f32 v{t0}, {m}, v{al}")
    a(f"v_mul_f32 v{t1}, {m}, v{be}")
    a(f"v_exp_f32 v{t0}, v{t0}")
    a(f"v_fract_f32 v{t1}, v{t1}")
    a(f"v_cos_f32 v{d}, v{t1}")
    a(f"v_sin_f32 v{d+1}, v{t1}")
    a("s_nop 0")
    a(f"v_mul_f32 v{d}, v{d}, v{t0}")
    a(f"v_mul_f32 v{d+1}, v{d+1}, v{t0}")

def gen_ssm(a, sW, sCG, VL):
    sD=50; sB=51
    a(f"s_lshl_b32 s{sD}, s{sCG}, 2")
    a(f"s_add_u32 s{sD}, s{sD}, s{sW}")
    a(f"s_mul_i32 s{sB}, s{sW}, {REG}")
    P=0
    T0,T1,T2,T3=8,9,10,11
    a(f"v_lshlrev_b32 v{T0}, 2, v{VL}")
    a(f"s_lshl_b32 s52, s{sD}, 8")
    for k in range(4):
        a(f"buffer_load_dword v{P+k}, v{T0}, s[{60+4*k}:{63+4*k}], s52 offen")
    a(f"s_lshl_b32 s53, s{sD}, 1")
    a(f"v_mov_b32 v{T1}, 0")
    a(f"buffer_load_ushort v{P+4}, v{T1}, s[76:79], s53 offen")
    a(f"buffer_load_ushort v{P+5}, v{T1}, s[80:83], s53 offen")
    a(f"s_lshl_b32 s54, s{sD}, 12")
    a(f"s_add_u32 s54, s54, {WS_UT}")
    a(f"buffer_load_dword v{P+6}, v{T1}, s[20:23], s54 offen")
    L16=12
    a(f"v_lshlrev_b32 v{L16}, 4, v{VL}")
    a(f"s_add_u32 m0, s{sB}, {U0_OFF+64}")
    a("s_nop 0")
    for k in range(4):
        a(f"buffer_load_dwordx4 v{L16}, s[20:23], s54 offen offset:{1024*k} lds") if k<4 else None
    a(f"s_add_u32 m0, s{sB}, {U1_OFF+64}")
    a("s_add_u32 s55, s54, 4")
    for k in range(4):
        a(f"buffer_load_dwordx4 v{L16}, s[20:23], s55 offen offset:{1024*k} lds")
    Z=16
    for r in range(4): a(f"v_mov_b32 v{Z+r}, 0")
    HB=13; BB=14
    a(f"v_lshrrev_b32 v{HB}, 5, v{VL}")
    a(f"v_and_b32 v{BB}, 31, v{VL}")
    a(f"v_mul_u32_u24 v{T1}, {R1_OFF}, v{HB}")
    a(f"v_lshl_add_u32 v{T1}, v{BB}, 4, v{T1}")
    a(f"v_add_u32 v{T1}, s{sB}, v{T1}")
    a(f"ds_write_b128 v{T1}, {vr(Z,4)} offset:{2*2040}")
    TW=15; TR=20
    a(f"s_add_u32 s56, s{sB}, {TB_OFF}")
    a(f"v_add_u32 v{TW}, s56, v{T0}")
    a(f"v_mul_u32_u24 v{T1}, 272, v{BB}")
    a(f"v_lshl_add_u32 v{T1}, v{HB}, 4, v{T1}")
    a(f"v_add_u32 v{TR}, s56, v{T1}")
    hi, lo = split_log2e()
    sLh,sLl,sLn2,sI2P=56,57,58,59
    a(f"s_mov_b32 s{sLh}, {hex(f32bits(hi))}")
    a(f"s_mov_b32 s{sLl}, {hex(f32bits(lo))}")
    a(f"s_mov_b32 s{sLn2}, {hex(f32bits(math.log(2.0)))}")
    a(f"s_mov_b32 s{sI2P}, {hex(f32bits(1/(2*math.pi)))}")
    ACC=32
    for r in range(16): a(f"v_mov_b32 v{ACC+r}, 0")
    DT=21; DSK=22
    a("s_waitcnt vmcnt(8)")
    a(f"v_cmp_eq_u32 vcc, 31, v{VL}")
    a(f"v_bfe_u32 v{T1}, v{VL}, 4, 1")
    a(f"v_mul_u32_u24 v{T1}, {U1_OFF-U0_OFF}, v{T1}")
    a(f"v_cndmask_b32 v{T3}, 0, v{P+6}, vcc")
    a(f"v_and_b32 v{T2}, 15, v{VL}")
    a(f"v_lshl_add_u32 v{T1}, v{T2}, 2, v{T1}")
    a(f"v_add_u32 v{T1}, s{sB}, v{T1}")
    a("s_mov_b32 exec_hi, 0")
    a(f"ds_write_b32 v{T1}, v{T3} offset:{U0_OFF}")
    a("s_mov_b64 exec, -1")
    a(f"v_lshlrev_b32 v{P+4}, 16, v{P+4}")
    exp_bf16(a, DT, P+4, T1, T2, sLh, sLl, sLn2)
    a(f"v_lshlrev_b32 v{DSK}, 16, v{P+5}")
    a(f"v_cmp_eq_u32 vcc, 0, v{VL}")
    a("s_nop 1")
    a(f"v_cndmask_b32 v{DSK}, 0, v{DSK}, vcc")
    AL,BE=23,24
    W1,W8,W16,G=48,50,52,54
    TMP=[56,58]
    CH=[60,62]
    TC=64
    GP=82
    XT=[84,86]
    PKS=[26,27,28,29]
    BF=96
    AF=128
    a("s_mov_b32 s44, 0")
    a.label("L_ssm_pass")
    X=[88,89,90,91]
    for k in range(4):
        a(f"v_lshlrev_b32 v{X[k]}, 16, v{P+k}")
        a(f"v_lshrrev_b32 v{P+k}, 16, v{P+k}")
    exp_bf16(a, X[0], X[0], T1, T2, sLh, sLl, sLn2)
    a(f"v_mul_f32 v{AL}, v{X[0]}, v{DT}")
    a(f"v_mul_f32 v{AL}, s{sLh}, v{AL}")
    a(f"v_sub_f32 v{AL}, 0, v{AL}")
    a(f"v_mul_f32 v{BE}, v{X[1]}, v{DT}")
    a(f"v_mul_f32 v{BE}, s{sI2P}, v{BE}")
    a(f"v_add_f32 v{T3}, v{DT}, v{DT}")
    a(f"v_mul_f32 v{TC}, v{X[2]}, v{T3}")
    a(f"v_mul_f32 v{TC+1}, v{X[3]}, v{T3}")
    cpow(a, W8, AL, BE, 8, T1, T2)
    cpow(a, W16, AL, BE, 16, T1, T2)
    cpow(a, W1, AL, BE, 1, T1, T2)
    cpow(a, G, AL, BE, 256, T1, T2)
    npk=[0]
    def put(row, re, neg=False, rows2=()):
        p=PKS[npk[0]%4]; npk[0]+=1
        a(f"v_cvt_pk_bf16_f32 v{p}, v{re}, {'-' if neg else ''}v{re+1}")
        for rw in (row,)+tuple(rows2):
            a(f"ds_write_b32 v{TW}, v{p} offset:{272*rw}")
    a(f"v_mov_b32 v{PKS[3]}, 0x00003f80")
    a(f"ds_write_b32 v{TW}, v{PKS[3]} offset:0")
    put(1, W8); put(2, W16)
    cur=[W16, W8]
    for b in range(3,32):
        c=b&1
        cmul(a, CH[c], cur[c], W16, TMP[c]); cur[c]=CH[c]
        put(b, CH[c])
    for ks in range(8):
        a(f"ds_read_b128 {vr(BF+4*ks,4)}, v{TR} offset:{32*ks}")
    def mrow(h, rho): return (rho&3)+8*(rho>>2)+4*h
    put(mrow(0,0), TC, True)
    for c in range(1,9):
        cmul(a, TC+2*c, TC+2*(c-1), W1, TMP[c&1])
        if c<8: put(mrow(0,c), TC+2*c, True)
    r1={0:(0,1),2:(2,),4:(3,4,5),6:(6,),8:(7,)}
    n=0
    for c,rhos in r1.items():
        x=XT[n&1]; n+=1
        cmul(a, x, TC+2*c, G, TMP[n&1])
        put(mrow(1,rhos[0]), x, True, tuple(mrow(1,r) for r in rhos[1:]))
    prev=G
    for aa in range(2,8):
        cmul(a, GP, prev, G, TMP[0]); prev=GP
        if aa<4:
            cs=(0,4,8); h=aa-2; rho0=8
        else:
            cs=(0,8); h=(aa-4)>>1; rho0=11+2*(aa&1)
        for k,c in enumerate(cs):
            x=XT[n&1]; n+=1
            cmul(a, x, TC+2*c, GP, TMP[n&1])
            put(mrow(h,rho0+k), x, True)
    for ks in range(8):
        a(f"ds_read_b128 {vr(AF+4*ks,4)}, v{TR} offset:{32*ks}")
    for ks in range(8):
        a(f"s_waitcnt lgkmcnt({7-ks})")
        a(f"v_mfma_f32_32x32x16_bf16 {vr(ACC,16)}, {vr(AF+4*ks,4)}, {vr(BF+4*ks,4)}, {vr(ACC,16)}")
    a("s_add_u32 s44, s44, 1")
    a("s_cmp_lt_u32 s44, 2")
    a("s_cbranch_scc1 L_ssm_pass")
    EA1=T0; EA2=T1
    a(f"v_lshlrev_b32 v{T2}, 4, v{VL}")
    a(f"s_add_u32 s56, s{sB}, {4080-16*127}")
    a(f"v_sub_u32 v{T2}, {16*63}, v{T2}")
    a(f"v_add_u32 v{EA1}, s56, v{T2}")
    a(f"v_lshlrev_b32 v{T2}, 10, v{HB}")
    a(f"v_lshl_add_u32 v{T2}, v{BB}, 4, v{T2}")
    a(f"v_sub_u32 v{T2}, {4080-16*160}, v{T2}")
    a(f"v_add_u32 v{EA2}, s{sB}, v{T2}")
    a(f"v_and_b32 v{T2}, 1, v{VL}")
    a(f"v_cmp_eq_u32 vcc, 1, v{T2}")
    a("s_nop 8")
    a(f"v_add_f32 v{ACC}, v{ACC}, v{DSK}")
    def pk(d,lo,hi_): a(f"v_cvt_pk_bf16_f32 v{d}, v{lo}, v{hi_}")
    E=lambda e: ACC+e
    B0,B1,B2,B3=64,68,72,76
    pk(B0,E(7),E(6)); pk(B0+1,E(5),E(4)); pk(B0+2,E(3),E(2)); pk(B0+3,E(1),E(0))
    a(f"ds_write_b128 v{EA1}, {vr(B0,4)} offset:{R1_OFF+1024}")
    pk(B1,E(6),E(5)); pk(B1+1,E(4),E(3)); pk(B1+2,E(2),E(1))
    a(f"ds_write_b96 v{EA1}, {vr(B1,3)} offset:{R0_OFF+1024}")
    a(f"ds_write_b16_d16_hi v{EA1}, v{B0+3} offset:{R0_OFF+1024+12}")
    v0,v4,v8=E(8),E(9),E(10)
    pk(B2,v8,v8); pk(B2+1,v4,v4); pk(B2+2,v4,v0); pk(B2+3,v0,v0)
    a(f"ds_write_b128 v{EA1}, {vr(B2,4)} offset:{R1_OFF}")
    pk(B3,v8,v4); pk(B3+1,v4,v4); pk(B3+2,v0,v0); pk(B3+3,v0,v0)
    a(f"ds_write_b128 v{EA1}, {vr(B3,4)} offset:{R0_OFF}")
    a(f"ds_write_b16 v{EA1}, v{B0} offset:{R0_OFF+1024-2}")
    for k in range(2):
        v0,v8=E(11+2*k),E(12+2*k)
        M=T3
        a(f"v_cndmask_b32 v{M}, v{v0}, v{v8}, vcc")
        C1,C0=80+8*k,84+8*k
        pk(C1,v8,v8); pk(C1+1,v8,M); pk(C1+2,v0,v0); pk(C1+3,v0,v0)
        a(f"ds_write_b128 v{EA2}, {vr(C1,4)} offset:{R1_OFF+512*(1-k)}")
        pk(C0,v8,v8); pk(C0+1,M,v0); pk(C0+2,v0,v0); pk(C0+3,v0,v0)
        a(f"ds_write_b128 v{EA2}, {vr(C0,4)} offset:{R0_OFF+512*(1-k)}")
    AA=4; AB=5
    a(f"v_and_b32 v{T0}, 1, v{VL}")
    a(f"v_mul_u32_u24 v{T0}, {R1_OFF-R0_OFF}, v{T0}")
    a(f"v_bfe_u32 v{T1}, v{VL}, 1, 3")
    a(f"v_lshlrev_b32 v{T1}, 6, v{T1}")
    a(f"v_sub_u32 v{T0}, v{T0}, v{T1}")
    a(f"v_lshrrev_b32 v{T2}, 4, v{VL}")
    a(f"v_lshl_add_u32 v{T0}, v{T2}, 4, v{T0}")
    a(f"s_add_u32 s56, s{sB}, {R0_OFF+2*(2240-32*63)}")
    a(f"v_add_u32 v{AA}, s56, v{T0}")
    a(f"v_and_b32 v{T0}, 1, v{VL}")
    a(f"v_mul_u32_u24 v{T0}, {U1_OFF-U0_OFF-4}, v{T0}")
    a(f"v_and_b32 v{T1}, 15, v{VL}")
    a(f"v_lshlrev_b32 v{T1}, 2, v{T1}")
    a(f"v_sub_u32 v{T0}, v{T1}, v{T0}")
    a(f"v_lshl_add_u32 v{T0}, v{T2}, 4, v{T0}")
    a(f"s_add_u32 s56, s{sB}, {U1_OFF+64+2*(192-224)}")
    a(f"v_add_u32 v{AB}, s56, v{T0}")
    Y=32
    for r in range(32): a(f"v_mov_b32 v{Y+r}, 0")
    FA=[64,128]; FB=[96,160]
    def rdA(buf, aa, rho): return f"ds_read_b128 {vr(FA[buf]+4*aa,4)}, v{AA} offset:{64*(63-8*aa-rho)}"
    def rdB(buf, k, rho, hf): return f"ds_read_b64 {vr(FB[buf]+4*k+2*hf,2)}, v{AB} offset:{64*(8*k-rho+7)+8*hf}"
    def reads(buf, rho):
        out=[]
        for k in range(8):
            out += [rdA(buf,k,rho), rdB(buf,k,rho,0), rdB(buf,k,rho,1)]
        return out
    a("s_waitcnt vmcnt(0) lgkmcnt(0)")
    for x in reads(0,0): a(x)
    for rho in range(8):
        buf=rho&1
        nxt = reads(buf^1, rho+1) if rho<7 else []
        a("s_waitcnt lgkmcnt(0)")
        mm=[(aa,c) for aa in range(8) for c in range(aa,8)]
        for n_,(aa,c) in enumerate(mm):
            a(f"v_mfma_f32_16x16x32_bf16 {vr(Y+4*c,4)}, {vr(FA[buf]+4*aa,4)}, {vr(FB[buf]+4*(c-aa),4)}, {vr(Y+4*c,4)}")
            if n_ < len(nxt): a(nxt[n_])
    a(f"v_and_b32 v{T0}, 15, v{VL}")
    a(f"v_lshlrev_b32 v{T0}, 4, v{T0}")
    a(f"v_lshl_add_u32 v{T0}, v{T2}, 9, v{T0}")
    a(f"s_lshl_b32 s56, s{sW}, 1")
    a(f"s_add_u32 s56, s56, {YT_OFF}")
    a(f"v_add_u32 v{T0}, s56, v{T0}")
    a("s_nop 4")
    for c in range(8):
        for z in range(2):
            p=64+2*c+z
            pk(p, Y+4*c+2*z, Y+4*c+2*z+1)
            a(f"ds_write_b16 v{T0}, v{p} offset:{(256*c+32*z)*8}")
            a(f"ds_write_b16_d16_hi v{T0}, v{p} offset:{(256*c+32*z)*8+8}")
    a(f"s_lshl_b32 s56, s{sW}, 9")
    a(f"v_add_u32 v{T1}, s56, v{VL}")
    a(f"v_lshlrev_b32 v{T2}, 3, v{T1}")
    a(f"v_add_u32 v{T2}, {YT_OFF}, v{T2}")
    a(f"v_mul_u32_u24 v{T1}, 2560, v{T1}")
    a(f"s_lshl_b32 s56, s{sCG}, 3")
    a("s_waitcnt lgkmcnt(0)")
    a("s_barrier")
    for k in range(8):
        a(f"ds_read_b64 {vr(96+2*k,2)}, v{T2} offset:{512*k}")
    for k in range(8):
        a(f"s_waitcnt lgkmcnt({7-k})")
        a(f"buffer_store_dwordx2 {vr(96+2*k,2)}, v{T1}, s[24:27], s56 offen")
        a(f"s_add_u32 s56, s56, {64*2560}")
    a("s_endpgm")

def gen_k3(a):
    kernel_header(a, "final_kernel")
    a(f"s_load_dwordx4 s[4:7], s[0:1], {KA_WO}")
    a(f"s_load_dwordx2 s[8:9], s[0:1], {KA_WS}")
    a(f"s_load_dwordx8 s[84:91], s[0:1], {KA_LAR}")
    a(f"s_load_dwordx4 s[92:95], s[0:1], {KA_LDT}")
    a("s_cmp_ge_u32 s2, 240")
    a("s_cbranch_scc1 L_k3_end")
    VL=200; T0,T1,T2,T3=201,202,203,204
    sW,sMT,sNT,sWM,sWN,sCG=32,33,34,35,36,37
    wave_lane(a, VL, sW, T0)
    a("s_and_b32 s28, s2, 7")
    a("s_lshr_b32 s29, s2, 3")
    a("s_lshl_b32 s30, s28, 1")
    a("s_and_b32 s31, s29, 1")
    a(f"s_add_u32 s{sMT}, s30, s31")
    a(f"s_lshr_b32 s{sNT}, s29, 1")
    a("s_mul_i32 s30, s28, 20")
    a("s_add_u32 s30, s30, s29")
    a(f"s_sub_u32 s{sCG}, s30, 10")
    a(f"s_and_b32 s{sWM}, s{sW}, 1")
    a(f"s_lshr_b32 s{sWN}, s{sW}, 1")
    a("s_waitcnt lgkmcnt(0)")
    srd(a, 16, 4, 640*1280)
    srd(a, 20, 8, WS_SIZE)
    srd(a, 24, 6, 2048*2560)
    for k in range(4): srd(a, 60+4*k, 84+2*k, 640*256)
    srd(a, 76, 92, 1280)
    srd(a, 80, 94, 1280)
    a("s_cmp_lt_u32 s29, 10")
    a("s_cbranch_scc1 L_k3_gemm")
    gen_ssm(a, sW, sCG, VL)
    a.label("L_k3_gemm")
    def xread(ks,i): return (0, 5120*i + 1024*ks)
    def wread(ks,j,sec):
        if ks<4: return (j, (20*ks+8*sec)*256)
        return (2+j, (20*sec+16)*256)
    g = Gemm(a, "k3", nks=5, nstages=8, nslots=4, stage_bytes=40960, woff=20480, nd=5, srdx=20, srdw=16,
             x_stage_step=5120, w_stage_step=80*1280, nax=1, naw=4, xread=xread, wread=wread,
             xsize=WS_SIZE, wsize=640*1280)
    a(f"v_lshlrev_b32 v{T0}, 4, v{VL}")
    for k in range(5):
        a(f"s_add_u32 s30, s{sW}, {4*k}")
        a("s_mul_i32 s31, s30, 52429")
        a("s_lshr_b32 s31, s31, 18")
        a("s_mul_i32 s38, s31, 5")
        a("s_sub_u32 s30, s30, s38")
        a("s_lshl_b32 s30, s30, 10")
        a(f"s_lshl_b32 s38, s{sMT}, 2")
        a("s_add_u32 s31, s31, s38")
        a("s_mul_i32 s31, s31, 40960")
        a("s_add_u32 s30, s30, s31")
        a(f"v_add_u32 v{g.DX+k}, s30, v{T0}")
    a(f"v_lshrrev_b32 v{T0}, 4, v{VL}")
    a(f"v_lshlrev_b32 v{T1}, 2, v{T0}")
    a(f"v_and_b32 v{T2}, 15, v{VL}")
    a(f"v_xor_b32 v{T1}, v{T1}, v{T2}")
    a(f"v_lshlrev_b32 v{T1}, 4, v{T1}")
    a(f"v_mul_u32_u24 v{T0}, 1280, v{T0}")
    a(f"v_add_u32 v{T0}, v{T0}, v{T1}")
    a(f"s_mul_i32 s30, s{sW}, {4*1280}")
    a(f"s_lshl_b32 s31, s{sNT}, 8")
    a("s_add_u32 s30, s30, s31")
    a(f"v_add_u32 v{g.DW}, s30, v{T0}")
    for k in range(1,5): a(f"v_add_u32 v{g.DW+k}, {k*16*1280}, v{g.DW}")
    a(f"s_mov_b32 s{g.sXO}, {WS_O}")
    a(f"s_mov_b32 s{g.sWO}, 0")
    a(f"s_lshl_b32 s{g.sW1K}, s{sW}, 10")
    g.prologue()
    a(f"v_lshlrev_b32 v{T0}, 4, v{VL}")
    a(f"s_mul_i32 s30, s{sWM}, 10240")
    a(f"v_add_u32 v{g.AX}, s30, v{T0}")
    for j in range(2):
        w_tr_addr(a, g.AW+j, VL, T0, T1, T2, sWN, j, 20480, 4)
        w_tr_addr(a, g.AW+2+j, VL, T0, T1, T2, sWN, j, 20480, 40)
    g.zero_acc()
    EA=128
    a(f"s_lshl_b32 s30, s{sMT}, 7")
    a(f"s_lshl_b32 s31, s{sWM}, 6")
    a("s_add_u32 s30, s30, s31")
    a(f"v_and_b32 v{T0}, 31, v{VL}")
    a(f"v_add_u32 v{T0}, s30, v{T0}")
    a(f"v_mul_u32_u24 v{T0}, 2560, v{T0}")
    a(f"v_lshrrev_b32 v{T1}, 5, v{VL}")
    a(f"v_lshl_add_u32 v{T0}, v{T1}, 4, v{T0}")
    a(f"s_lshl_b32 s30, s{sNT}, 8")
    a(f"s_lshl_b32 s31, s{sWN}, 7")
    a("s_add_u32 s30, s30, s31")
    a("s_add_u32 s30, s30, 1280")
    a(f"v_add_u32 v{EA}, s30, v{T0}")
    a(f"v_add_u32 v{EA+1}, {32*2560}, v{EA}")
    g.loop(False, "o")
    n=0
    for j in range(2):
        for i in range(2):
            for pr in range(2):
                b=16*(2*j+i)+8*pr
                p=64+4*n; n+=1
                for q in range(4):
                    a(f"v_cvt_pk_bf16_f32 v{p+q}, v{b+2*q}, v{b+2*q+1}")
                a("s_nop 1")
                a(f"v_permlane32_swap_b32 v{p}, v{p+2}")
                a(f"v_permlane32_swap_b32 v{p+1}, v{p+3}")
                a(f"buffer_store_dwordx4 {vr(p,4)}, v{EA+i}, s[24:27], 0 offen offset:{64*j+32*pr}")
    a.label("L_k3_end")
    a("s_endpgm")

HEADER = open("concat_heads__ssm_conv_s4d__mha_block__prompt.s.ref").read().split("; Override launch")[0]

def build():
    a = Asm()
    gen_k1(a); gen_k2(a); gen_k3(a)
    out = HEADER
    out += f"; @launch kernel=qkv_kernel grid=(256,1,1) block=(256,1,1) lds={K1_LDS}\n"
    out += f"; @launch kernel=attn_kernel grid=(256,1,1) block=(512,1,1) lds={K2_LDS}\n"
    out += f"; @launch kernel=final_kernel grid=(240,1,1) block=(256,1,1) lds={K3_LDS}\n"
    out += '.amdgcn_target "amdgcn-amd-amdhsa--gfx950"\n.text\n'
    out += a.text()
    out += '.section .rodata,"a"\n'
    out += kernel_desc("qkv_kernel", 208)
    out += kernel_desc("attn_kernel", 104)
    out += kernel_desc("final_kernel", 208)
    return out

if __name__ == "__main__":
    dst = sys.argv[1] if len(sys.argv) > 1 else "concat_heads__ssm_conv_s4d__mha_block__prompt.s"
    open(dst, "w").write(build())
    print("wrote", dst)
```

```python
import sys, math, struct, os
NAME="concat_heads__ssm_conv_s4d__mha_block__prompt"
def f32bits(x): return struct.unpack("<I", struct.pack("<f", x))[0]
class Asm:
    def __init__(self): self.l = []; self.n=0
    def __call__(self, s):
        for x in s.split("\n"):
            x = x.strip()
            if x: self.l.append("    " + x)
    def label(self, n): self.l.append(n + ":")
    def raw(self, s): self.l.append(s)
    def uid(self, p): self.n+=1; return f"L_{p}_{self.n}"
    def text(self): return "\n".join(self.l) + "\n"
def vr(b, n): return f"v[{b}:{b+n-1}]" if n > 1 else f"v{b}"
def sr(b, n): return f"s[{b}:{b+n-1}]" if n > 1 else f"s{b}"

PROF = int(os.environ.get("PROF","0"))
X = os.environ.get("X","")
PS   = 5120
HKV  = 32*PS
WS_Q  = 0
WS_KV = 0x280000
WS_O  = 0x7B0000
WS_UT = 0xA40000
WS_YT = 0xCD0000
WS_F1 = 0xF60000
WS_FU = WS_F1 + 0x1000
WS_FY = WS_F1 + 0x2000
WS_F2 = WS_F1 + 0x3000
WS_PROF = 0xF80000
WS_SIZE = 0x1000000
LDS = 163840
CTL = LDS-128
cT = CTL
cV,cE,cP,cF = [CTL+48+4*i for i in range(4)]
cU,cG = CTL+40,CTL+44
cPROG = CTL+64
WOB = 20480
TRS = 99072
TBL = 111360
XST = 1040; STG = 16*XST+16384; WOFF = 16*XST
UB0 = 92928; UBS = 8448; U1_OFF = 4224
RB0 = UB0+4*UBS; RBS = 9216; R1_OFF = 4640
pU,pLAR,pAIM,pCR,pCI,pLDT,pDSK,pX,pW,pWO,pOUT,pDBG,pWS = [64+2*i for i in range(13)]
sWS=16; sA=8; sB_=12; sC=20; sD_=24
sW,sMT,sNT,sWM,sWN,sXC,sS,sH,sT = 32,33,34,35,36,37,38,39,40
sN0,sN1=42,43
VL=250
PV=255
SPIN=200000

def srd(a, s, ptr, size):
    a(f"s_mov_b32 s{s}, s{ptr}")
    a(f"s_and_b32 s{s+1}, s{ptr+1}, 0xffff")
    a(f"s_mov_b32 s{s+2}, {size}")
    a(f"s_mov_b32 s{s+3}, 0x00020000")

DIAG = int(os.environ.get("DIAG","-2"))
def stamp(a, idx):
    if DIAG==idx:
        a("s_memrealtime s[100:101]")
        a("s_waitcnt lgkmcnt(0)")
    if not PROF: return
    a("s_memrealtime s[96:97]")
    a("s_memtime s[98:99]")
    a("s_waitcnt lgkmcnt(0)")
    a(f"v_writelane_b32 v{PV}, s96, {2*idx}")
    a(f"v_writelane_b32 v{PV}, s98, {2*idx+1}")
def prof_end(a, idx):
    if DIAG!=-2:
        a("s_waitcnt vmcnt(0)")
        stamp(a, idx)
        if DIAG==-1: a(f"s_mov_b32 s100, s{sN0}")
        a("s_add_u32 s100, s100, 6000")
        a.label("L_diag")
        a("s_sleep 1")
        a("s_memrealtime s[96:97]")
        a("s_waitcnt lgkmcnt(0)")
        a("s_sub_u32 s96, s96, s100")
        a("s_cmp_lt_i32 s96, 0")
        a("s_cbranch_scc1 L_diag")
    if not PROF: return
    a("s_mov_b64 exec, -1")
    a("s_waitcnt vmcnt(0)")
    stamp(a, idx)
    a(f"v_lshlrev_b32 v{PV-1}, 2, v{VL}")
    a(f"s_lshl_b32 s100, s2, 3")
    a(f"s_add_u32 s100, s100, s{sW}")
    a(f"s_lshl_b32 s100, s100, 7")
    a(f"s_add_u32 s100, s100, {WS_PROF}")
    a("s_mov_b32 exec_hi, 0")
    a(f"buffer_store_dword v{PV}, v{PV-1}, s[{sWS}:{sWS+3}], s100 offen")

def nonce_issue(a, v, vz):
    a(f"global_load_dwordx2 {vr(v,2)}, v{vz}, s[{pDBG}:{pDBG+1}] sc1")
def nonce_get(a, v, vz, first_issued):
    L=a.uid("ng"); D=a.uid("nd")
    a(f"s_mov_b32 s44, {SPIN}")
    if first_issued:
        a(f"s_branch {L}_w")
    a.label(L)
    nonce_issue(a, v, vz)
    a.label(L+"_w")
    a("s_waitcnt vmcnt(0)")
    a(f"v_readfirstlane_b32 s{sN0}, v{v}")
    a(f"v_readfirstlane_b32 s{sN1}, v{v+1}")
    a(f"s_cmp_lg_u32 s{sN1}, 0")
    a(f"s_cbranch_scc1 {D}")
    a("s_sleep 2")
    a("s_sub_u32 s44, s44, 1")
    a("s_cmp_lg_u32 s44, 0")
    a(f"s_cbranch_scc1 {L}")
    a.label(D)

def flag_store(a, soff, t):
    a(f"v_mov_b32 v{t}, s{sN0}")
    a(f"v_mov_b32 v{t+1}, s{sN1}")
    a(f"v_mov_b32 v{t+2}, 0")
    a("s_mov_b64 exec, 1")
    a(f"buffer_store_dwordx2 {vr(t,2)}, v{t+2}, s[{sWS}:{sWS+3}], s{soff} offen sc1")
    a("s_mov_b64 exec, -1")

def poll(a, addrs, t):
    L=a.uid("pl"); D=a.uid("pd")
    a(f"s_mov_b32 s44, {SPIN}")
    a.label(L)
    for k,ad in enumerate(addrs):
        a(f"buffer_load_dwordx2 {vr(t+2*k,2)}, v{ad}, s[{sWS}:{sWS+3}], 0 offen sc1")
    a("s_waitcnt vmcnt(0)")
    for k in range(len(addrs)):
        if k==0: a(f"v_cmp_eq_u64 s[46:47], s[{sN0}:{sN1}], {vr(t,2)}")
        else:
            a(f"v_cmp_eq_u64 vcc, s[{sN0}:{sN1}], {vr(t+2*k,2)}")
            a("s_and_b64 s[46:47], s[46:47], vcc")
    a("s_cmp_eq_u64 s[46:47], -1")
    a(f"s_cbranch_scc1 {D}")
    a("s_sleep 6")
    a("s_sub_u32 s44, s44, 1")
    a("s_cmp_lg_u32 s44, 0")
    a(f"s_cbranch_scc1 {L}")
    a.label(D)

def lds_add(a, addr, t, val=1):
    a(f"v_mov_b32 v{t}, {addr}")
    a(f"v_mov_b32 v{t+1}, {val}")
    a("s_mov_b64 exec, 1")
    a(f"ds_add_u32 v{t}, v{t+1}")
    a("s_mov_b64 exec, -1")
def lds_add_rtn(a, addr, t, sdst):
    a(f"v_mov_b32 v{t}, {addr}")
    a(f"v_mov_b32 v{t+1}, 1")
    a("s_mov_b64 exec, 1")
    a(f"ds_add_rtn_u32 v{t+1}, v{t}, v{t+1}")
    a("s_waitcnt lgkmcnt(0)")
    a(f"v_readfirstlane_b32 s{sdst}, v{t+1}")
    a("s_mov_b64 exec, -1")
def lds_wait(a, addr, val, t):
    L=a.uid("lw"); D=a.uid("ld")
    a(f"s_mov_b32 s44, {SPIN}")
    a(f"v_mov_b32 v{t}, {addr}")
    a.label(L)
    a(f"ds_read_b32 v{t+1}, v{t}")
    a("s_waitcnt lgkmcnt(0)")
    a(f"v_readfirstlane_b32 s45, v{t+1}")
    a(f"s_cmp_ge_u32 s45, {val}")
    a(f"s_cbranch_scc1 {D}")
    a("s_sleep 1")
    a("s_sub_u32 s44, s44, 1")
    a("s_cmp_lg_u32 s44, 0")
    a(f"s_cbranch_scc1 {L}")
    a.label(D)

def transpose8(a, IN, OB):
    for d in range(4):
        for hi in range(2):
            cc=2*d+hi
            for e in range(4):
                a(f"v_perm_b32 v{OB+4*cc+e}, v{IN+4*(2*e+1)+d}, v{IN+4*(2*e)+d}, s{54+hi}")

def w_tr_addr(a, dst, t0, t1, t2, j):
    a(f"v_bfe_u32 v{t0}, v{VL}, 2, 2")
    a(f"v_bfe_u32 v{t1}, v{VL}, 4, 1")
    a(f"v_lshlrev_b32 v{t1}, 1, v{t1}")
    a(f"v_bfe_u32 v{t2}, v{VL}, 1, 1")
    a(f"v_add_u32 v{t1}, v{t1}, v{t2}")
    a(f"s_lshl_b32 s30, s{sWN}, 3")
    a(f"s_add_u32 s30, s30, {4*j}")
    a(f"v_add_u32 v{t1}, s30, v{t1}")
    a(f"v_lshlrev_b32 v{t2}, 2, v{t0}")
    a(f"v_xor_b32 v{t1}, v{t1}, v{t2}")
    a(f"v_lshlrev_b32 v{t1}, 4, v{t1}")
    a(f"v_and_b32 v{t2}, 1, v{VL}")
    a(f"v_lshl_add_u32 v{t1}, v{t2}, 3, v{t1}")
    a(f"v_lshrrev_b32 v{t2}, 5, v{VL}")
    a(f"v_lshl_add_u32 v{t2}, v{t2}, 3, v{t0}")
    a(f"v_lshl_add_u32 v{t1}, v{t2}, 8, v{t1}")
    a(f"v_add_u32 v{dst}, {WOFF}, v{t1}")

def gen_compute(a):
    ACC=0; XF=64; WF=80; AX=200; AW=204; CX=206; CW=210; EA=212
    T0,T1,T2,T3,T4,T5=240,241,242,243,244,245
    a(f"s_and_b32 s{sWM}, s{sW}, 1")
    a(f"s_lshr_b32 s{sWN}, s{sW}, 1")
    a(f"v_mov_b32 v{T5}, 0")
    a(f"v_bfe_u32 v{T0}, v{VL}, 3, 2")
    a(f"v_mul_u32_u24 v{T0}, {XST}, v{T0}")
    a(f"v_and_b32 v{T1}, 7, v{VL}")
    a(f"v_lshl_add_u32 v{T0}, v{T1}, 7, v{T0}")
    a(f"v_lshrrev_b32 v{T2}, 5, v{VL}")
    a(f"v_lshl_add_u32 v{T0}, v{T2}, 4, v{T0}")
    a(f"s_mul_i32 s30, s{sWM}, {8*XST}")
    a(f"v_add_u32 v{T0}, s30, v{T0}")
    a(f"v_bfe_u32 v{T1}, v{VL}, 1, 1")
    a(f"v_lshl_add_u32 v{AX}, v{T1}, 6, v{T0}")
    a(f"v_xor_b32 v{T1}, 1, v{T1}")
    a(f"v_lshl_add_u32 v{AX+1}, v{T1}, 6, v{T0}")
    for j in range(2): w_tr_addr(a, AW+j, T0, T1, T2, j)
    for k in range(2): a(f"v_mov_b32 v{CX+k}, v{AX+k}")
    for k in range(2): a(f"v_mov_b32 v{CW+k}, v{AW+k}")
    a(f"s_lshl_b32 s56, s{sMT}, 1")
    a(f"s_add_u32 s56, s56, s{sWM}")
    a(f"s_lshl_b32 s57, s{sNT}, 7")
    a(f"s_lshl_b32 s58, s{sMT}, 3")
    a(f"s_add_u32 s57, s57, s58")
    a(f"s_add_u32 s57, s57, {WS_F1}")
    a(f"s_cmp_ge_u32 s{sNT}, 10")
    a("s_cbranch_scc1 L_c_vaddr")
    a(f"s_cmp_ge_u32 s{sNT}, 5")
    a(f"s_cselect_b32 s58, {HKV}, 0")
    a(f"s_cselect_b32 s59, {PS}, 0")
    a(f"s_cselect_b32 s60, {WS_KV}, 0")
    a(f"s_cselect_b32 s61, 5, 0")
    a(f"s_cselect_b32 s62, 1.0, {hex(f32bits(20**-0.5*math.log2(math.e)))}")
    a(f"s_cselect_b64 vcc, -1, 0")
    a(f"s_cselect_b32 s30, 0, 81920")
    a(f"s_cselect_b32 s31, 0, 2560")
    a("s_add_u32 s58, s58, s30")
    a("s_add_u32 s59, s59, s31")
    a(f"s_sub_u32 s61, s{sNT}, s61")
    a("s_lshl_b32 s61, s61, 4")
    a(f"s_lshl_b32 s30, s{sWN}, 3")
    a("s_add_u32 s61, s61, s30")
    a("s_mul_i32 s30, s56, s59")
    a("s_add_u32 s60, s60, s30")
    a(f"v_and_b32 v{T0}, 31, v{VL}")
    a(f"v_and_b32 v{T1}, 19, v{T0}")
    a(f"v_bfe_u32 v{T2}, v{T0}, 2, 1")
    a(f"v_lshl_add_u32 v{T1}, v{T2}, 3, v{T1}")
    a(f"v_bfe_u32 v{T2}, v{T0}, 3, 1")
    a(f"v_lshl_add_u32 v{T1}, v{T2}, 2, v{T1}")
    a(f"v_cndmask_b32 v{T0}, v{T0}, v{T1}, vcc")
    a(f"v_lshlrev_b32 v{T0}, 4, v{T0}")
    a(f"v_add_u32 v{T0}, s60, v{T0}")
    a(f"v_lshrrev_b32 v{T1}, 5, v{VL}")
    a(f"v_add_u32 v{T1}, s61, v{T1}")
    a("s_lshl_b32 s63, s58, 1")
    HS=247
    a(f"v_mov_b32 v{HS}, s58")
    for jp in range(4):
        e=EA+2*jp
        sm=90+2*jp if jp<3 else 28
        a(f"v_add_u32 v{T2}, {2*jp}, v{T1}")
        a(f"v_mul_u32_u24 v{T3}, 52429, v{T2}")
        a(f"v_lshrrev_b32 v{T3}, 18, v{T3}")
        a(f"v_mul_u32_u24 v{T4}, 5, v{T3}")
        a(f"v_sub_u32 v{T2}, v{T2}, v{T4}")
        a(f"v_mul_u32_u24 v{T3}, s63, v{T3}")
        a(f"v_add_u32 v{T3}, v{T3}, v{T0}")
        a(f"v_cmp_lt_u32 vcc, 2, v{T2}")
        a(f"v_cmp_eq_u32 s[{sm}:{sm+1}], 2, v{T2}")
        a(f"v_lshlrev_b32 v{T4}, 9, v{T2}")
        a(f"v_add_u32 v{T3}, v{T3}, v{T4}")
        a(f"v_subrev_u32 v{T4}, 1536, v{HS}")
        a(f"v_cndmask_b32 v{T4}, 0, v{T4}, vcc")
        a(f"v_add_u32 v{T3}, v{T3}, v{T4}")
        a(f"v_mov_b32 v{T4}, 1024")
        a(f"v_cndmask_b32 v{T2}, 0, v{T4}, s[{sm}:{sm+1}]")
        a(f"v_add_u32 v{e}, v{T3}, v{T2}")
        a(f"v_cndmask_b32 v{T4}, v{T4}, v{HS}, s[{sm}:{sm+1}]")
        a(f"v_add_u32 v{e+1}, v{e}, v{T4}")
    a("s_branch L_c_addrdone")
    a.label("L_c_vaddr")
    a(f"s_sub_u32 s61, s{sNT}, 10")
    a("s_lshl_b32 s61, s61, 7")
    a(f"s_lshl_b32 s30, s{sWN}, 6")
    a("s_add_u32 s61, s61, s30")
    a(f"s_mul_i32 s60, s56, {PS}")
    a(f"s_add_u32 s60, s60, {WS_KV+2560}")
    a(f"s_mov_b32 s58, {HKV}")
    a(f"v_lshrrev_b32 v{T0}, 5, v{VL}")
    a(f"v_mul_u32_u24 v{T0}, 320, v{T0}")
    a(f"v_add_u32 v{T0}, s60, v{T0}")
    a(f"v_and_b32 v{T1}, 31, v{VL}")
    a(f"v_add_u32 v{T1}, s61, v{T1}")
    for j in range(2):
        a(f"v_add_u32 v{T2}, {32*j}, v{T1}")
        a(f"v_mul_u32_u24 v{T3}, 52429, v{T2}")
        a(f"v_lshrrev_b32 v{T3}, 20, v{T3}")
        a(f"v_mul_u32_u24 v{T4}, 20, v{T3}")
        a(f"v_sub_u32 v{T2}, v{T2}, v{T4}")
        a(f"v_mul_u32_u24 v{T3}, s58, v{T3}")
        a(f"v_lshl_add_u32 v{T3}, v{T2}, 4, v{T3}")
        a(f"v_add_u32 v{EA+j}, v{T3}, v{T0}")
    for k in range(2,8): a(f"v_mov_b32 v{EA+k}, v{EA}")
    a.label("L_c_addrdone")
    for r in range(0,64,2): a(f"v_mov_b64 {vr(ACC+r,2)}, 0")
    a("s_waitcnt lgkmcnt(0)")
    srd(a, sWS, pWS, WS_SIZE)
    stamp(a,1)
    def rd(ks):
        b=ks&1
        X=lambda i: f"ds_read_b128 {vr(XF+8*b+4*i,4)}, v{CX+(ks>>1)} offset:{4*XST*i+32*(ks&1)}"
        W=lambda j,sec: f"ds_read_b64_tr_b16 {vr(WF+8*b+4*j+2*sec,2)}, v{CW+j} offset:{4096*ks+1024*sec}"
        if "R" in globals()["X"]: return ["s_nop 0"]*6
        return [X(0),W(0,0),W(0,1),X(1),W(1,0),W(1,1)]
    def mf(ks, swap):
        b=ks&1; out=[]
        for j in range(2):
            for i in range(2):
                acc=vr(ACC+16*(2*j+i),16)
                X=vr(XF+8*b+4*i,4); W=vr(WF+8*b+4*j,4)
                if swap: out.append(f"v_mfma_f32_32x32x16_bf16 {acc}, {X}, {W}, {acc}")
                else:    out.append(f"v_mfma_f32_32x32x16_bf16 {acc}, {W}, {X}, {acc}")
        if "M" in globals()["X"]: out=["s_nop 0"]*4
        return out
    def loop(swap, L):
        a("s_mov_b32 s48, 0")
        a("s_mov_b32 s49, 0")
        a("s_barrier")
        stamp(a,2)
        for x in rd(0): a(x)
        a.label(L)
        if PROF:
            a("s_cmp_lg_u32 s49, 3")
            a(f"s_cbranch_scc1 {L}_pp")
            stamp(a,14)
            a.label(f"{L}_pp")
        for ks in range(3):
            R=rd(ks+1); M=mf(ks,swap)
            a("s_waitcnt lgkmcnt(3)"); a(M[0]); a(R[0]); a(R[1])
            a("s_waitcnt lgkmcnt(4)"); a(M[1]); a(R[2]); a(R[3])
            a("s_waitcnt lgkmcnt(4)"); a(M[2]); a(R[4]); a(R[5])
            if ks==1:
                a(f"s_add_u32 s48, s48, {STG}")
                a(f"s_cmp_eq_u32 s48, {3*STG}")
                a("s_cselect_b32 s48, 0, s48")
            a(M[3])
            if ks==2:
                for k in range(2): a(f"v_add_u32 v{CX+k}, s48, v{AX+k}")
        R=rd(0); M=mf(3,swap)
        a("s_waitcnt lgkmcnt(3)"); a(M[0])
        for k in range(2): a(f"v_add_u32 v{CW+k}, s48, v{AW+k}")
        a("s_cmp_eq_u32 s49, 7")
        a(f"s_cbranch_scc1 {L}_x")
        a.label(f"{L}_r")
        a("s_waitcnt lgkmcnt(0)"); a(M[1])
        a("s_barrier")
        a(R[0]); a(R[1]); a(R[2])
        a(M[2])
        a(R[3]); a(R[4]); a(R[5])
        a("s_add_u32 s49, s49, 1")
        a("s_cmp_lt_u32 s49, 10")
        a(M[3])
        a(f"s_cbranch_scc1 {L}")
    def loop_x(L):
        a.label(f"{L}_x")
        nonce_issue(a, 248, T5)
        a(f"s_branch {L}_r")
    a(f"s_cmp_ge_u32 s{sNT}, 10")
    a("s_cbranch_scc1 L_c_v")
    loop(False, "L_c_qk")
    stamp(a,3)
    a("s_waitcnt lgkmcnt(0)")
    a("s_nop 12")
    PK=64
    for j in range(2):
        for p in range(2):
            jp=2*j+p
            sm=90+2*jp if jp<3 else 28
            P=[PK+8*jp, PK+8*jp+4]
            for i in range(2):
                b=16*(2*j+i)+8*p
                for q in range(4):
                    a(f"v_pk_mul_f32 {vr(b+2*q,2)}, {vr(b+2*q,2)}, s[62:63] op_sel_hi:[1,0]")
                for q in range(4):
                    a(f"v_cvt_pk_bf16_f32 v{P[i]+q}, v{b+2*q}, v{b+2*q+1}")
            a("s_nop 0")
            for i in range(2):
                a(f"v_permlane32_swap_b32 v{P[i]}, v{P[i]+2}")
                a(f"v_permlane32_swap_b32 v{P[i]+1}, v{P[i]+3}")
            a(f"s_mov_b64 exec, s[{sm}:{sm+1}]")
            a(f"v_swap_b32 v{P[0]+2}, v{P[1]}")
            a(f"v_swap_b32 v{P[0]+3}, v{P[1]+1}")
            a("s_mov_b64 exec, -1")
            for i in range(2):
                a(f"buffer_store_dwordx4 {vr(P[i],4)}, v{EA+2*jp+i}, s[{sWS}:{sWS+3}], 0 offen sc1")
    a("s_branch L_c_sig")
    loop_x("L_c_qk")
    loop_x("L_c_vl")
    a.label("L_c_v")
    loop(True, "L_c_vl")
    stamp(a,3)
    a("s_waitcnt lgkmcnt(0)")
    a("s_nop 12")
    n=0
    for j in range(2):
        for i in range(2):
            for s_ in range(2):
                b=16*(2*j+i)+8*s_
                p=PK+4*n; n+=1
                for q in range(4):
                    a(f"v_cvt_pk_bf16_f32 v{p+q}, v{b+2*q}, v{b+2*q+1}")
                a(f"buffer_store_dwordx4 {vr(p,4)}, v{EA+j}, s[{sWS}:{sWS+3}], 0 offen offset:{1280*i+640*s_} sc1")
    a.label("L_c_sig")
    nonce_get(a, 248, T5, True)
    lds_add_rtn(a, cE, T0, 60)
    a("s_mov_b32 s61, 0")
    a("s_cmp_lg_u32 s60, 3")
    a("s_cbranch_scc1 L_c_post")
    flag_store(a, 57, T0)
    a("s_mov_b32 s61, 1")
    a.label("L_c_post")
    stamp(a,4)

UT_SEG=int(os.environ.get("UTSEG","3"))
UA,UB,UD=228,229,192
def ut_setup(a):
    a(f"v_lshrrev_b32 v{UA}, 3, v{VL}")
    a(f"v_mul_u32_u24 v{UA}, 1280, v{UA}")
    a(f"v_and_b32 v{UB}, 7, v{VL}")
    a(f"v_lshl_add_u32 v{UA}, v{UB}, 4, v{UA}")
    a(f"v_bfe_u32 v{UB}, v{VL}, 2, 2")
    a(f"v_lshlrev_b32 v{UB}, 7, v{UB}")
    a(f"v_lshrrev_b32 v230, 4, v{VL}")
    a(f"v_lshl_add_u32 v{UB}, v230, 5, v{UB}")
    a(f"v_and_b32 v230, 3, v{VL}")
    a(f"v_lshl_add_u32 v{UB}, v230, 3, v{UB}")
    a(f"s_mul_i32 s94, s{sW}, 3072")
    a(f"s_add_u32 s94, s94, {TRS-4*3072}")
    a(f"v_add_u32 v{UB}, s94, v{UB}")
    a(f"v_lshlrev_b32 v230, 4, v{VL}")
    a("s_mul_i32 s95, s2, 10240")
    a(f"s_sub_u32 s90, s{sW}, 4")
    a(f"s_mov_b32 s91, s{sW}")
    a(f"s_add_u32 s92, s{sW}, 4")
    a("s_min_u32 s92, s92, 9")
def ut_dma(a):
    for n in range(3):
        a(f"s_add_u32 m0, s94, {1024*n}")
        a(f"s_lshl_b32 s30, s{90+n}, 7")
        a("s_add_u32 s30, s30, s95")
        a(f"buffer_load_dwordx4 v{UA}, s[{sC}:{sC+3}], s30 offen lds")
def ut_store(a):
    for n in range(3):
        for sec in range(2):
            a(f"ds_read_b64_tr_b16 {vr(UD+4*n+2*sec,2)}, v{UB} offset:{1024*n+512*sec}")
    a("s_waitcnt lgkmcnt(0)")
    for n in range(3):
        a(f"s_lshl_b32 s30, s{90+n}, 10")
        a("s_add_u32 s30, s30, s95")
        a(f"s_add_u32 s30, s30, {WS_UT}")
        a(f"buffer_store_dwordx4 {vr(UD+4*n,4)}, v230, s[{sWS}:{sWS+3}], s30 offen sc1")
def nonce_fast(a, v, vz, tag):
    a(f"v_readfirstlane_b32 s{sN0}, v{v}")
    a(f"v_readfirstlane_b32 s{sN1}, v{v+1}")
    a(f"s_cmp_lg_u32 s{sN1}, 0")
    a(f"s_cbranch_scc1 L_nf_{tag}")
    nonce_get(a, v, vz, False)
    a.label(f"L_nf_{tag}")

def gen_spare(a):
    T0,ZR=240,244
    a(f"v_mov_b32 v{ZR}, 0")
    a(f"v_lshlrev_b32 v{T0}, 2, v{VL}")
    a(f"v_min_u32 v{T0}, 124, v{T0}")
    a(f"v_add_u32 v{T0}, {CTL}, v{T0}")
    ut_setup(a)
    a("s_waitcnt lgkmcnt(0)")
    a(f"ds_write_b32 v{T0}, v{ZR}")
    srd(a, sWS, pWS, WS_SIZE)
    srd(a, sC, pU, 2048*1280)
    a(f"s_cmp_lt_u32 s{sW}, 4")
    a("s_cbranch_scc1 L_sp_d")
    ut_dma(a)
    a("s_waitcnt vmcnt(0)")
    ut_store(a)
    a.label("L_sp_d")
    nonce_get(a, 246, ZR, False)
    a("s_waitcnt lgkmcnt(0)")
    a("s_barrier")
    a("s_mov_b32 s61, 0")
    a(f"s_cmp_lg_u32 s{sW}, 0")
    a("s_cbranch_scc1 L_sp_e")
    a("s_lshl_b32 s53, s2, 3")
    a(f"s_add_u32 s53, s53, {WS_FU}")
    flag_store(a, 53, T0)
    a("s_mov_b32 s61, 1")
    a.label("L_sp_e")
    stamp(a,4)

LOG2E = math.log2(math.e)
def exp_bf16(a, dst, src, t0, t1, sLh, sLl, sLn2):
    a(f"v_mul_f32 v{t0}, s{sLh}, v{src}")
    a(f"v_fma_f32 v{t1}, v{src}, s{sLh}, -v{t0}")
    a(f"v_fma_f32 v{t1}, v{src}, s{sLl}, v{t1}")
    a(f"v_exp_f32 v{t0}, v{t0}")
    a(f"v_mul_f32 v{t1}, s{sLn2}, v{t1}")
    a(f"v_fma_f32 v{t0}, v{t0}, v{t1}, v{t0}")
    a(f"v_cvt_pk_bf16_f32 v{t0}, v{t0}, v{t0}")
    a(f"v_lshlrev_b32 v{dst}, 16, v{t0}")
def cmul(a, d, x, w, t):
    a(f"v_pk_mul_f32 {vr(t,2)}, {vr(x,2)}, {vr(w,2)} op_sel:[0,0] op_sel_hi:[0,1]")
    a(f"v_pk_fma_f32 {vr(d,2)}, {vr(x,2)}, {vr(w,2)}, {vr(t,2)} op_sel:[1,1,0] op_sel_hi:[1,0,1] neg_lo:[0,1,0]")
def cpow(a, d, al, be, mult, t0, t1):
    m = hex(f32bits(float(mult)))
    a(f"v_mul_f32 v{t0}, {m}, v{al}")
    a(f"v_mul_f32 v{t1}, {m}, v{be}")
    a(f"v_exp_f32 v{t0}, v{t0}")
    a(f"v_fract_f32 v{t1}, v{t1}")
    a(f"v_cos_f32 v{d}, v{t1}")
    a(f"v_sin_f32 v{d+1}, v{t1}")
    a("s_nop 0")
    a(f"v_mul_f32 v{d}, v{d}, v{t0}")
    a(f"v_mul_f32 v{d+1}, v{d+1}, v{t0}")

sCH=50; sRB=51; sTB=53; sUB=93
UR=176
PRM=144
def param_loads(a, T0, T1):
    a(f"v_lshlrev_b32 v{T0}, 2, v{VL}")
    a(f"s_lshl_b32 s30, s{sCH}, 8")
    a(f"v_add_u32 v{T0}, s30, v{T0}")
    for k,p in enumerate((pLAR,pAIM,pCR,pCI)):
        a(f"global_load_dword v{PRM+k}, v{T0}, s[{p}:{p+1}]")
    a(f"s_lshl_b32 s30, s{sCH}, 1")
    a(f"v_mov_b32 v{T1}, s30")
    a(f"global_load_ushort v{PRM+4}, v{T1}, s[{pLDT}:{pLDT+1}]")
    a(f"global_load_ushort v{PRM+5}, v{T1}, s[{pDSK}:{pDSK+1}]")

def gen_kgen(a, second, scalar):
    P=PRM
    T0,T1,T2,T3=8,9,10,11
    TW=15; TR=20; DT=21; DSK=22; AL,BE=23,7
    W1,G=0,2
    TMP=[12,16,18,150]
    PKR=24; ACC=32; VAL=48; BF=112; AF=160
    sLh,sLl,sLn2,sI2P=24,25,26,27
    def cm(ops):
        if scalar:
            for k,(d,x,w) in enumerate(ops):
                a(f"v_mul_f32 v{TMP[k]}, v{x}, v{w}")
                a(f"v_mul_f32 v{TMP[k]+1}, v{x}, v{w+1}")
            for k,(d,x,w) in enumerate(ops):
                assert d!=w
                a(f"v_fma_f32 v{d}, -v{x+1}, v{w+1}, v{TMP[k]}")
                a(f"v_fma_f32 v{d+1}, v{x+1}, v{w}, v{TMP[k]+1}")
            return
        for k,(d,x,w) in enumerate(ops):
            a(f"v_pk_mul_f32 {vr(TMP[k],2)}, {vr(x,2)}, {vr(w,2)} op_sel:[0,0] op_sel_hi:[0,1]")
        for k,(d,x,w) in enumerate(ops):
            a(f"v_pk_fma_f32 {vr(d,2)}, {vr(x,2)}, {vr(w,2)}, {vr(TMP[k],2)} op_sel:[1,1,0] op_sel_hi:[1,0,1] neg_lo:[0,1,0]")
    Y=lambda b: VAL+2*b
    KEEP=152
    C0=4
    if not second:
        a(f"v_mul_u32_u24 v{T0}, 80, v{VL}")
        a(f"v_add_u32 v{TW}, s{sRB}, v{T0}")
        a(f"v_lshrrev_b32 v{T0}, 5, v{VL}")
        a(f"v_bfe_u32 v{T1}, v{VL}, 2, 2")
        a(f"v_lshl_add_u32 v{T0}, v{T0}, 3, v{T1}")
        a(f"v_mul_u32_u24 v{T0}, 80, v{T0}")
        a(f"v_bfe_u32 v{T1}, v{VL}, 4, 1")
        a(f"v_lshl_add_u32 v{T0}, v{T1}, 5, v{T0}")
        a(f"v_and_b32 v{T1}, 3, v{VL}")
        a(f"v_lshl_add_u32 v{T0}, v{T1}, 3, v{T0}")
        a(f"v_add_u32 v{TR}, s{sRB}, v{T0}")
        hi = struct.unpack("<f", struct.pack("<f", LOG2E))[0]; lo = LOG2E-hi
        a(f"s_mov_b32 s{sLh}, {hex(f32bits(hi))}")
        a(f"s_mov_b32 s{sLl}, {hex(f32bits(lo))}")
        a(f"s_mov_b32 s{sLn2}, {hex(f32bits(math.log(2.0)))}")
        a(f"s_mov_b32 s{sI2P}, {hex(f32bits(1/(2*math.pi)))}")
        a(f"v_lshlrev_b32 v{P+4}, 16, v{P+4}")
        exp_bf16(a, DT, P+4, T0, T1, sLh, sLl, sLn2)
        D2=22
        a(f"v_add_f32 v{D2}, v{DT}, v{DT}")
        for hf in range(2):
            X=[60,61,62,63]
            for k in range(4):
                if hf: a(f"v_and_b32 v{X[k]}, 0xffff0000, v{P+k}")
                else:  a(f"v_lshlrev_b32 v{X[k]}, 16, v{P+k}")
            exp_bf16(a, X[0], X[0], T2, T3, sLh, sLl, sLn2)
            d8,d1,dg,dc = (KEEP,KEEP+2,KEEP+4,KEEP+6) if hf else (Y(1),W1,G,C0)
            a(f"v_mul_f32 v{AL}, v{X[0]}, v{DT}")
            a(f"v_mul_f32 v{BE}, v{X[1]}, v{DT}")
            a(f"v_mul_f32 v{AL}, s{sLh}, v{AL}")
            a(f"v_mul_f32 v{BE}, s{sI2P}, v{BE}")
            a(f"v_sub_f32 v{AL}, 0, v{AL}")
            a(f"v_mul_f32 v{dc}, v{X[2]}, v{D2}")
            a(f"v_mul_f32 v{dc+1}, v{X[3]}, v{D2}")
            c1=Asm(); cpow(c1, d8, AL, BE, 8, T0, T1)
            c2=Asm(); cpow(c2, d1, AL, BE, 1, T2, T3)
            c3=Asm(); cpow(c3, dg, AL, BE, 256, 12, 13)
            for xs in zip(c1.l,c2.l,c3.l):
                for x in xs:
                    if "s_nop" not in x: a(x)
    else:
        W1,G,C0=KEEP+2,KEEP+4,KEEP+6
        a(f"v_mov_b32 v{Y(1)}, v{KEEP}")
        a(f"v_mov_b32 v{Y(1)+1}, v{KEEP+1}")
    a(f"v_mov_b32 v{Y(0)}, 1.0")
    a(f"v_mov_b32 v{Y(0)+1}, 0")
    npk=[0]
    def pack(regs, q, comp, neg):
        p=PKR+4*(npk[0]&1); npk[0]+=1
        n_='-' if neg else ''
        for e in range(4): a(f"v_cvt_pk_bf16_f32 v{p+e}, {n_}v{regs[2*e]+comp}, {n_}v{regs[2*e+1]+comp}")
        a(f"ds_write_b128 v{TW}, {vr(p,4)} offset:{16*q}")
    def frag_reads(F):
        for ks in range(4):
            for sec in range(2):
                a(f"ds_read_b64_tr_b16 {vr(F+4*ks+2*sec,2)}, v{TR} offset:{(16*ks+4*sec)*80}")
    cm([(Y(2),Y(1),Y(1))])
    cm([(Y(3),Y(2),Y(1)),(Y(4),Y(2),Y(2))])
    cm([(Y(b),Y(b-4),Y(4)) for b in (5,6,7,8)])
    oct_=lambda q: [Y(b) for b in range(8*q,8*q+8)]
    for b0 in range(9,32,4):
        cm([(Y(b),Y(b-4),Y(4)) for b in range(b0,min(b0+4,32))])
        if b0 in (9,17,25): pack(oct_((b0-9)//8), (b0-9)//8, 0, False)
    pack(oct_(3), 3, 0, False)
    frag_reads(BF)
    for q in range(4): pack(oct_(q), q, 1, False)
    frag_reads(BF+16)
    TC=lambda c: VAL+2*c
    R1=lambda k: VAL+18+2*k
    R2=lambda h,k: VAL+28+6*h+2*k
    R3=lambda aa,k: VAL+40+4*(aa-4)+2*k
    W2,W4,G2,G4=VAL+56,VAL+58,VAL+60,VAL+62
    a(f"v_mov_b32 v{TC(0)}, v{C0}")
    a(f"v_mov_b32 v{TC(0)+1}, v{C0+1}")
    cm([(W2,W1,W1),(TC(1),TC(0),W1),(G2,G,G)])
    cm([(W4,W2,W2),(TC(2),TC(0),W2),(TC(3),TC(1),W2),(G4,G2,G2)])
    cm([(TC(c),TC(c-4),W4) for c in (4,5,6,7)])
    cm([(TC(8),TC(4),W4),(R1(0),TC(0),G),(R1(1),TC(2),G),(R1(2),TC(4),G)])
    cm([(R1(3),TC(6),G),(R1(4),TC(8),G),(R2(0,0),TC(0),G2),(R2(0,1),TC(4),G2)])
    r1=[R1(0),R1(0),R1(1),R1(2),R1(2),R1(2),R1(3),R1(4)]
    XO=[[TC(0),TC(1),TC(2),TC(3)]+r1[:4], [TC(4),TC(5),TC(6),TC(7)]+r1[4:],
        [R2(0,0),R2(0,1),R2(0,2),R3(4,0),R2(1,0),R2(1,1),R2(1,2),R3(6,0)],
        [R3(4,1),R3(5,0),R3(5,1),R3(5,1),R3(6,1),R3(7,0),R3(7,1),R3(7,1)]]
    pack(XO[0], 0, 0, False)
    cm([(R2(0,2),TC(8),G2),(R2(1,0),R1(0),G2),(R2(1,1),R1(2),G2),(R2(1,2),R1(4),G2)])
    pack(XO[1], 1, 0, False)
    cm([(R3(4,0),TC(0),G4),(R3(4,1),TC(8),G4),(R3(5,0),R1(0),G4),(R3(5,1),R1(4),G4)])
    cm([(R3(6,0),R2(0,0),G4),(R3(6,1),R2(0,2),G4),(R3(7,0),R2(1,0),G4),(R3(7,1),R2(1,2),G4)])
    pack(XO[2], 2, 0, False); pack(XO[3], 3, 0, False)
    frag_reads(AF)
    for q in range(4):
        pack(XO[q], q, 1, True)
        a(f"s_waitcnt lgkmcnt({6-2*q+q+1})")
        a(f"v_mfma_f32_32x32x16_bf16 {vr(ACC,16)}, {vr(AF+4*q,4)}, {vr(BF+4*q,4)}, {vr(ACC,16) if (q or second) else '0'}")
    frag_reads(VAL)
    for ks in range(4):
        a(f"s_waitcnt lgkmcnt({6-2*ks})")
        a(f"v_mfma_f32_32x32x16_bf16 {vr(ACC,16)}, {vr(VAL+4*ks,4)}, {vr(BF+16+4*ks,4)}, {vr(ACC,16)}")

CAA,CAB,CUW,CU1,CPD,CYW,CYR,CZ=204,205,206,207,208,209,210,16
def gen_expand(a):
    T0,T1,T2,T3=8,9,10,11
    HB=13; BB=14; Z=CZ; ACC=32
    a(f"v_lshrrev_b32 v{HB}, 5, v{VL}")
    a(f"v_and_b32 v{BB}, 31, v{VL}")
    for r in range(4): a(f"v_mov_b32 v{Z+r}, 0")
    a(f"v_cmp_eq_u32 vcc, 0, v{VL}")
    a(f"v_mul_u32_u24 v{T1}, {R1_OFF}, v{HB}")
    a(f"v_min_u32 v{T2}, 28, v{BB}")
    a(f"v_lshlrev_b32 v{T3}, 16, v{PRM+5}")
    a(f"v_cndmask_b32 v{T3}, 0, v{T3}, vcc")
    a(f"v_add_f32 v{ACC}, v{ACC}, v{T3}")
    a(f"v_lshl_add_u32 v{T1}, v{T2}, 4, v{T1}")
    a(f"v_add_u32 v{T1}, s{sRB}, v{T1}")
    a(f"ds_write_b128 v{T1}, {vr(Z,4)} offset:{2*2040}")
    EA1=T0; EA2=T1
    a(f"v_lshlrev_b32 v{T2}, 4, v{VL}")
    a(f"v_sub_u32 v{T2}, {4080-16*64}, v{T2}")
    a(f"v_add_u32 v{EA1}, s{sRB}, v{T2}")
    a(f"v_lshlrev_b32 v{T2}, 10, v{HB}")
    a(f"v_lshl_add_u32 v{T2}, v{BB}, 4, v{T2}")
    a(f"v_sub_u32 v{T2}, {4080-16*160}, v{T2}")
    a(f"v_add_u32 v{EA2}, s{sRB}, v{T2}")
    a(f"v_and_b32 v{T2}, 1, v{VL}")
    a(f"v_cmp_eq_u32 vcc, 1, v{T2}")
    def pk(d,lo_,hi_): a(f"v_cvt_pk_bf16_f32 v{d}, v{lo_}, v{hi_}")
    def mv(d,s_): a(f"v_mov_b32 v{d}, v{s_}")
    E=lambda e: ACC+e
    B0,B1,B2,B3=64,68,72,76
    pk(B0,E(7),E(6)); pk(B0+1,E(5),E(4)); pk(B0+2,E(3),E(2)); pk(B0+3,E(1),E(0))
    a(f"v_cndmask_b32 v96, v{E(11)}, v{E(12)}, vcc")
    a(f"v_cndmask_b32 v97, v{E(13)}, v{E(14)}, vcc")
    a(f"ds_write_b128 v{EA1}, {vr(B0,4)} offset:{R1_OFF+1024}")
    pk(B1,E(6),E(5)); pk(B1+1,E(4),E(3)); pk(B1+2,E(2),E(1))
    a(f"ds_write_b96 v{EA1}, {vr(B1,3)} offset:{1024}")
    a(f"ds_write_b16_d16_hi v{EA1}, v{B0+3} offset:{1024+12}")
    v0,v4,v8=E(8),E(9),E(10)
    pk(B2,v8,v8); pk(B2+1,v4,v4); pk(B2+2,v4,v0); pk(B2+3,v0,v0)
    a(f"ds_write_b128 v{EA1}, {vr(B2,4)} offset:{R1_OFF}")
    pk(B3,v8,v4); mv(B3+1,B2+1); mv(B3+2,B2+3); mv(B3+3,B2+3)
    a(f"ds_write_b128 v{EA1}, {vr(B3,4)}")
    a(f"ds_write_b16 v{EA1}, v{B0} offset:{1024-2}")
    for k in range(2):
        v0,v8=E(11+2*k),E(12+2*k)
        M=96+k
        C1,C0=80+8*k,84+8*k
        pk(C1,v8,v8); pk(C1+1,v8,M); pk(C1+2,v0,v0); mv(C1+3,C1+2)
        a(f"ds_write_b128 v{EA2}, {vr(C1,4)} offset:{R1_OFF+512*(1-k)}")
        mv(C0,C1); pk(C0+1,M,v0); mv(C0+2,C1+2); mv(C0+3,C1+2)
        a(f"ds_write_b128 v{EA2}, {vr(C0,4)} offset:{512*(1-k)}")
    for r in range(0,32,2): a(f"v_mov_b64 {vr(32+r,2)}, 0")

def gen_convaddr(a):
    T0,T1,T2,T3=8,9,10,11
    a(f"v_and_b32 v{T0}, 3, v{VL}")
    a(f"v_mul_u32_u24 v{T0}, {UBS}, v{T0}")
    a(f"v_lshrrev_b32 v{T1}, 2, v{VL}")
    a(f"v_lshl_add_u32 v{T0}, v{T1}, 4, v{T0}")
    a(f"s_lshl_b32 s56, s{sW}, 10")
    a(f"s_add_u32 s56, s56, {UB0+64-4096}")
    a(f"v_add_u32 v{CUW}, s56, v{T0}")
    a(f"v_add_u32 v{CU1}, {U1_OFF-4}, v{CUW}")
    a(f"v_bfe_u32 v{T2}, v{VL}, 4, 1")
    a(f"v_mul_u32_u24 v{T2}, {U1_OFF}, v{T2}")
    a(f"v_and_b32 v{T3}, 15, v{VL}")
    a(f"v_lshl_add_u32 v{T2}, v{T3}, 2, v{T2}")
    a(f"v_add_u32 v{CPD}, s{sUB}, v{T2}")
    a(f"v_and_b32 v{T0}, 1, v{VL}")
    a(f"v_mul_u32_u24 v{CAA}, {R1_OFF}, v{T0}")
    a(f"v_bfe_u32 v{T1}, v{VL}, 1, 3")
    a(f"v_lshlrev_b32 v{T1}, 6, v{T1}")
    a(f"v_sub_u32 v{CAA}, v{CAA}, v{T1}")
    a(f"v_lshrrev_b32 v{T2}, 4, v{VL}")
    a(f"v_lshl_add_u32 v{CAA}, v{T2}, 4, v{CAA}")
    a(f"s_add_u32 s56, s{sRB}, {2*(2240-32*63)+64*5}")
    a(f"v_add_u32 v{CAA}, s56, v{CAA}")
    a(f"v_mul_u32_u24 v{T0}, {U1_OFF-4}, v{T0}")
    a(f"v_lshlrev_b32 v{T1}, 2, v{T3}")
    a(f"v_sub_u32 v{T0}, v{T1}, v{T0}")
    a(f"v_lshl_add_u32 v{T0}, v{T2}, 4, v{T0}")
    a(f"s_add_u32 s56, s{sUB}, {U1_OFF+64+2*(192-224)+64*5}")
    a(f"v_add_u32 v{CAB}, s56, v{T0}")
    a(f"v_lshl_add_u32 v{T1}, v{T2}, 7, v{T1}")
    a(f"v_add_u32 v{CYW}, s{sRB}, v{T1}")
    a(f"v_lshlrev_b32 v{T2}, 4, v{VL}")
    a(f"v_add_u32 v{CYR}, s{sRB}, v{T2}")
    a(f"v_lshrrev_b32 v{T0}, 2, v{VL}")
    a(f"v_mul_u32_u24 v{T0}, 10240, v{T0}")
    a(f"v_and_b32 v{T1}, 3, v{VL}")
    a(f"v_lshl_add_u32 v231, v{T1}, 4, v{T0}")
    a(f"s_mul_i32 s56, s{sW}, {64*10240}")
    a(f"s_lshr_b32 s31, s{sCH}, 2")
    a("s_lshl_b32 s31, s31, 6")
    a("s_add_u32 s31, s56, s31")
    a(f"s_add_u32 s31, s31, {WS_UT-4*64*10240}")
    a(f"s_mov_b32 s62, {WS_FU}")

YS=176
def gen_conv(a):
    AA=CAA; AB=CAB; Y=32
    FA=[64,128]; FB=[96,160]
    def rA(buf,rho): return [f"ds_read_b128 {vr(FA[buf]+4*k,4)}, v{AA} offset:{64*(56-8*k+2-rho)}" for k in range(8)]
    def rB(buf,rho): return [f"ds_read_b64 {vr(FB[buf]+4*k+2*hf,2)}, v{AB} offset:{64*(8*k+2-rho)+8*hf}" for k in range(8) for hf in range(2)]
    def reads(buf, rho):
        A_=rA(buf,rho); B_=rB(buf,rho); out=[]
        for k in range(8): out += [A_[k],B_[2*k],B_[2*k+1]]
        return out
    a("s_mov_b32 exec_hi, 0")
    a("s_mov_b32 exec_lo, 0x7fffffff")
    a(f"ds_write_b32 v{CPD}, v{CZ}")
    a("s_mov_b64 exec, -1")
    for n in range(4):
        a(f"s_waitcnt vmcnt({3-n})")
        a(f"ds_write_b128 v{CUW}, {vr(UR+4*n,4)} offset:{256*n}")
        a(f"ds_write2_b32 v{CU1}, v{UR+4*n}, v{UR+4*n+1} offset0:{64*n} offset1:{64*n+1}")
        a(f"ds_write2_b32 v{CU1}, v{UR+4*n+2}, v{UR+4*n+3} offset0:{64*n+2} offset1:{64*n+3}")
    lds_add(a, cV, 8)
    for x in rA(0,0): a(x)
    lds_wait(a, cV, 4, 6)
    stamp(a,5)
    for x in rB(0,0): a(x)
    a("s_mov_b32 s48, 0")
    a.label("L_ssm_conv")
    for rho in range(2):
        buf=rho&1
        nxt = reads(buf^1, rho+1)
        a("s_waitcnt lgkmcnt(0)")
        mm=[(aa,c) for aa in range(8) for c in range(aa,8)]
        for n_,(aa,c) in enumerate(mm):
            a(f"v_mfma_f32_16x16x32_bf16 {vr(Y+4*c,4)}, {vr(FA[buf]+4*aa,4)}, {vr(FB[buf]+4*(c-aa),4)}, {vr(Y+4*c,4)}")
            if n_ < len(nxt): a(nxt[n_])
    a(f"v_subrev_u32 v{AA}, 128, v{AA}")
    a(f"v_subrev_u32 v{AB}, 128, v{AB}")
    a("s_add_u32 s48, s48, 1")
    a("s_cmp_lt_u32 s48, 4")
    a("s_cbranch_scc1 L_ssm_conv")
    stamp(a,6)
    a("s_waitcnt lgkmcnt(0)")
    a("s_nop 4")
    for c in range(8):
        for z in range(2):
            a(f"v_cvt_pk_bf16_f32 v{64+2*c+z}, v{Y+4*c+2*z}, v{Y+4*c+2*z+1}")
        a(f"ds_write2_b32 v{CYW}, v{64+2*c}, v{65+2*c} offset0:{128*(c&1)} offset1:{128*(c&1)+16}")
        if c&1: a(f"v_add_u32 v{CYW}, 1024, v{CYW}")
    for k in range(4):
        a(f"ds_read_b128 {vr(YS+4*k,4)}, v{CYR} offset:{1024*k}")
    lds_add(a, cV, 8)

def gen_aux(a):
    DX=220; DW=224
    T0,T1,T2,T3=240,241,242,243
    sAW=41
    a(f"s_sub_u32 s{sAW}, s{sW}, 4")
    a(f"v_lshrrev_b32 v{T0}, 4, v{VL}")
    a(f"v_and_b32 v{T3}, 1, v{T0}")
    a(f"v_lshlrev_b32 v{T3}, 2, v{T3}")
    a(f"v_and_b32 v{T1}, 7, v{VL}")
    a(f"v_xor_b32 v{T3}, v{T3}, v{T1}")
    a(f"v_lshlrev_b32 v{T3}, 4, v{T3}")
    a(f"v_lshrrev_b32 v{T1}, 3, v{VL}")
    a(f"v_mul_u32_u24 v{T1}, 1280, v{T1}")
    a(f"v_add_u32 v{T3}, v{T3}, v{T1}")
    a(f"s_mul_i32 s30, s{sAW}, {8*1280}")
    a(f"s_mul_i32 s31, s{sMT}, {128*1280}")
    a("s_add_u32 s30, s30, s31")
    a(f"v_add_u32 v{DX}, s30, v{T3}")
    for k in range(1,4): a(f"v_add_u32 v{DX+k}, {k*40960}, v{DX}")
    a(f"v_lshlrev_b32 v{T1}, 2, v{T0}")
    a(f"v_and_b32 v{T2}, 15, v{VL}")
    a(f"v_xor_b32 v{T1}, v{T1}, v{T2}")
    a(f"v_lshlrev_b32 v{T1}, 4, v{T1}")
    a(f"v_mul_u32_u24 v{T0}, 3840, v{T0}")
    a(f"v_add_u32 v{T0}, v{T0}, v{T1}")
    a(f"s_mul_i32 s30, s{sAW}, {4*3840}")
    a(f"s_lshl_b32 s31, s{sNT}, 8")
    a("s_add_u32 s30, s30, s31")
    a(f"v_add_u32 v{DW}, s30, v{T0}")
    for k in range(1,4): a(f"v_add_u32 v{DW+k}, {k*16*3840}, v{DW}")
    a(f"s_lshr_b32 s30, s{sS}, 2")
    a(f"s_add_u32 s30, s30, s{sS}")
    a("s_and_b32 s30, s30, 3")
    a("s_lshl_b32 s30, s30, 2")
    a(f"s_lshr_b32 s45, {os.environ.get('ROT','0x8530')}, s30")
    a("s_and_b32 s45, s45, 15")
    a("s_lshl_b32 s46, s45, 7")
    a(f"s_mul_i32 s47, s45, {64*3840}")
    a(f"s_mul_i32 s48, s{sAW}, {XST}")
    a(f"s_lshl_b32 s52, s{sAW}, 4")
    a(f"s_sub_u32 s52, {WOFF}, s52")
    a(f"s_mul_i32 s{sCH}, s{sXC}, 20")
    a(f"s_add_u32 s{sCH}, s{sCH}, s{sS}")
    a(f"s_lshl_b32 s{sCH}, s{sCH}, 2")
    a(f"s_add_u32 s{sCH}, s{sCH}, s{sAW}")
    ZR=244
    a(f"v_mov_b32 v{ZR}, 0")
    a(f"v_lshlrev_b32 v{T2}, 2, v{VL}")
    a(f"v_min_u32 v{T2}, 124, v{T2}")
    a(f"v_add_u32 v{T2}, {CTL}, v{T2}")
    a("s_memrealtime s[60:61]")
    a("s_waitcnt lgkmcnt(0)")
    a(f"ds_write_b32 v{T2}, v{ZR}")
    srd(a, sA, pX, 2048*1280)
    srd(a, sB_, pW, 640*3840)
    def dma_groups():
        G=[]
        for k in range(4):
            m = "s_mov_b32 m0, s48" if k==0 else f"s_add_u32 m0, s48, {4*XST*k}"
            G.append([m, "s_nop 0", f"buffer_load_dwordx4 v{DX+k}, s[{sA}:{sA+3}], s46 offen lds"])
        for k in range(4):
            m = "s_add_u32 m0, s48, s52" if k==0 else "s_add_u32 m0, m0, 4096"
            G.append([m, "s_nop 0", f"buffer_load_dwordx4 v{DW+k}, s[{sB_}:{sB_+3}], s47 offen lds"])
        G[-1] += ["s_add_u32 s46, s46, 128", f"s_add_u32 s47, s47, {64*3840}", "s_cmp_eq_u32 s46, 1280",
                  "s_cselect_b32 s46, 0, s46", "s_cselect_b32 s47, 0, s47", f"s_add_u32 s48, s48, {STG}",
                  f"s_sub_u32 s30, s48, {3*STG}", f"s_cmp_ge_u32 s48, {3*STG}", "s_cselect_b32 s48, s30, s48"]
        return G
    def splice(G, K, frac=1.0):
        n=int(len(K)*frac); pos=0
        for gi,g in enumerate(G):
            for x in g: a(x)
            e=n*(gi+1)//len(G)
            for x in K[pos:e]: a(x)
            pos=e
        for x in K[pos:]: a(x)
    def publish(tag):
        a(f"s_or_b32 s30, s2, s{sAW}")
        a("s_cmp_lg_u32 s30, 0")
        a(f"s_cbranch_scc1 L_a_nonn{tag}")
        a("s_or_b32 s61, s61, 0x80000000")
        a(f"v_mov_b32 v{T0}, s60")
        a(f"v_mov_b32 v{T1}, s61")
        a(f"v_mov_b32 v{T2}, 0")
        a(f"v_mov_b32 v{T3}, 0")
        a("s_mov_b64 exec, 1")
        a(f"global_atomic_cmpswap_x2 v{ZR}, {vr(T0,4)}, s[{pDBG}:{pDBG+1}] sc1")
        a("s_mov_b64 exec, -1")
        a("s_nop 1")
        a.label(f"L_a_nonn{tag}")
    def fu_load():
        a(f"buffer_load_dwordx4 v[232:235], v230, s[{sWS}:{sWS+3}], s62 offen sc1")
        a(f"buffer_load_dwordx4 v[236:239], v230, s[{sWS}:{sWS+3}], s62 offen offset:1024 sc1")
    def fu_test():
        a(f"v_cmp_eq_u64 s[46:47], s[{sN0}:{sN1}], v[232:233]")
        for k in range(1,4):
            a(f"v_cmp_eq_u64 vcc, s[{sN0}:{sN1}], v[{232+2*k}:{233+2*k}]")
            a("s_and_b64 s[46:47], s[46:47], vcc")
        a("s_cmp_eq_u64 s[46:47], -1")
    def u_loads():
        for n in range(4):
            a(f"buffer_load_dwordx4 {vr(UR+4*n,4)}, v231, s[{sWS}:{sWS+3}], s31 offen sc1")
            a(f"s_add_u32 s31, s31, {16*10240}")
    def program(ssm):
        tag = "s" if ssm else "n"
        K=[]
        PSEG=int(os.environ.get("PSEG","3"))
        if ssm: publish(tag)
        splice(dma_groups()+dma_groups(), [])
        srd(a, sWS, pWS, WS_SIZE)
        srd(a, sC, pU, 2048*1280)
        ut_setup(a)
        bud=[int(x) for x in os.environ.get("BUD","0,0,0,0,0,30,30,30,23,0").split(",")]
        if ssm:
            a(f"s_mul_i32 s{sRB}, s{sAW}, {RBS}")
            a(f"s_add_u32 s{sRB}, s{sRB}, {RB0}")
            a(f"s_mul_i32 s{sUB}, s{sAW}, {UBS}")
            a(f"s_add_u32 s{sUB}, s{sUB}, {UB0}")
            gen_convaddr(a)
            kg=Asm(); gen_kgen(kg, False, sum(bud)>140); K=[x.strip() for x in kg.l]
        pos=[0]
        def take(n):
            r=K[pos[0]:pos[0]+n]; pos[0]=min(len(K),pos[0]+n); return r
        a("s_waitcnt vmcnt(8) lgkmcnt(0)")
        stamp(a,1)
        a("s_barrier")
        for seg in range(1,9):
            splice(dma_groups(), take(bud[seg]))
            w=8
            if seg==PSEG and ssm:
                param_loads(a, T0, T1); w=14
            if seg==7:
                ut_dma(a); nonce_issue(a, 246, ZR); w=12
            if seg==8: w=12
            a(f"s_waitcnt vmcnt({w})")
            a("s_barrier")
        a("s_waitcnt vmcnt(8)")
        ut_store(a)
        a("s_waitcnt vmcnt(3)")
        a("s_barrier")
        nonce_fast(a, 246, ZR, tag)
        for x in take(bud[9]): a(x)
        stamp(a,2)
        a("s_barrier")
        stamp(a,3)
        a("s_setprio 1")
        def fu_flag():
            a("s_waitcnt vmcnt(0)")
            lds_add_rtn(a, cU, T0, 30)
            a("s_cmp_lg_u32 s30, 3")
            a(f"s_cbranch_scc1 L_a_nf{tag}")
            a("s_lshl_b32 s30, s2, 3")
            a(f"s_add_u32 s30, s30, {WS_FU}")
            flag_store(a, 30, T0)
            a.label(f"L_a_nf{tag}")
        fu_flag()
        if ssm:
            for x in take(len(K)): a(x)
            k2=Asm(); gen_kgen(k2, True, False); K2=[x.strip() for x in k2.l]
            h=len(K2)//2
            for x in K2[:h]: a(x)
            fu_load()
            for x in K2[h:]: a(x)
            stamp(a,4)
            a(f"s_mov_b32 s44, {SPIN}")
            a.label("L_a_fu")
            a("s_waitcnt vmcnt(0)")
            fu_test()
            a("s_cbranch_scc1 L_a_fud")
            a("s_sleep 8")
            fu_load()
            a("s_sub_u32 s44, s44, 1")
            a("s_cmp_lg_u32 s44, 0")
            a("s_cbranch_scc1 L_a_fu")
            a.label("L_a_fud")
            u_loads()
            stamp(a,15)
            gen_expand(a)
    a(f"s_cmp_ge_u32 s{sS}, 20")
    a("s_cbranch_scc1 L_a_plain")
    program(True)
    gen_conv(a)
    a("s_branch L_a_post")
    a.label("L_a_plain")
    program(False)
    a.label("L_a_post")
    a("s_mov_b32 s61, 0")

def gen_att(a):
    S=[0,16]; O=32; Q=48; QT=52
    KM=[56,60]; KT=[64,68]; V=[72,80,208,216]
    IDX=88; AK=89; AV=90; T0=92; T1=93; T2=94; T3=95; MX=96; L16=97; PA=98; PB=99
    PL=100
    sIT=48; sSTEP=49; sKV=52; sAUX=53; sVM=28
    a.label("L_att")
    a(f"s_cmp_ge_u32 s{sW}, 4")
    a(f"s_cselect_b32 s{sAUX}, 1, 0")
    a(f"v_lshlrev_b32 v{L16}, 4, v{VL}")
    a(f"v_mov_b32 v{QT}, 0")
    a(f"v_mov_b32 v{QT+1}, 0")
    a(f"s_mul_i32 s56, s{sH}, 81920")
    a(f"s_lshr_b32 s54, s{sT}, 1")
    a("s_mul_i32 s54, s54, 2560")
    a("s_add_u32 s56, s56, s54")
    a(f"s_and_b32 s55, s{sT}, 1")
    a("s_lshl_b32 s54, s55, 10")
    a("s_add_u32 s57, s56, s54")
    a("s_lshl_b32 s54, s55, 3")
    a("s_add_u32 s58, s56, s54")
    a(f"s_mul_i32 s{sKV}, s{sH}, {HKV}")
    a(f"s_add_u32 s{sKV}, s{sKV}, {WS_KV}")
    def setup_av():
        a(f"v_and_b32 v{T0}, 31, v{VL}")
        a(f"v_lshrrev_b32 v{T1}, 5, v{VL}")
        a(f"v_mul_u32_u24 v{T1}, 320, v{T1}")
        a(f"v_lshl_add_u32 v{AV}, v{T0}, 4, v{T1}")
    setup_av()
    a(f"v_cmp_eq_u32 vcc, 20, v{T0}")
    a(f"v_mov_b32 v{T1}, 0x3f803f80")
    a(f"v_mov_b32 v{AK}, v{L16}")
    a(f"v_cndmask_b32 v{T1}, 0, v{T1}, vcc")
    a(f"s_mov_b32 s{sVM}, 0x000fffff")
    a(f"s_mov_b32 s{sVM+1}, 0x000fffff")
    a(f"v_mov_b32 v{V[0]}, v{T1}")
    a(f"v_mov_b32 v{V[0]+1}, v{T1}")
    for b in V:
        for r in range(0,8,2):
            if b+r!=V[0]: a(f"v_mov_b64 {vr(b+r,2)}, {vr(V[0],2)}")
    a(f"v_mov_b32 v{IDX}, 0xdddddddd")
    for r in range(0,16,2): a(f"v_mov_b64 {vr(O+r,2)}, 0")
    for r in range(8,16,2): a(f"v_mov_b64 {vr(S[1]+r,2)}, 0")
    VIT,VCN,VONE,VCA,VCT,VTH,VVL=224,225,226,227,228,229,230
    sPL=41; sLOW=63
    a(f"s_lshl_b32 s54, s{sW}, 2")
    a(f"s_add_u32 s55, s54, {cPROG}")
    a(f"v_mov_b32 v{PA}, s55")
    a(f"s_xor_b32 s{sPL}, s{sW}, 4")
    a(f"s_add_u32 s{sPL}, s{sPL}, 16")
    a(f"v_mov_b32 v{VIT}, 0")
    a(f"v_mov_b32 v{VCN}, {cT+4}")
    a(f"v_mov_b32 v{VONE}, 1")
    a(f"v_lshlrev_b32 v{VCA}, 2, v{T0}")
    a(f"v_add_u32 v{VCA}, {CTL}, v{VCA}")
    a(f"v_mov_b32 v{VVL}, 4")
    a(f"v_mov_b32 v{VTH}, v{T0}")
    a("s_mov_b32 exec_lo, 0xff00ff00")
    a("s_mov_b32 exec_hi, 0xff00ff00")
    a(f"v_mov_b32 v{VTH}, 99")
    a("s_mov_b32 exec_lo, 0x00ff0000")
    a("s_mov_b32 exec_hi, 0x00ff0000")
    a(f"v_mov_b32 v{VTH}, 4")
    a(f"v_mov_b32 v{VVL}, 1")
    a(f"s_cmp_lt_u32 s{sS}, 20")
    a("s_cselect_b32 s54, 2, 99")
    a("s_mov_b32 exec_lo, 0x1000")
    a("s_mov_b32 exec_hi, 0x1000")
    a(f"v_mov_b32 v{VTH}, s54")
    a(f"v_mov_b32 v{VVL}, 8")
    a("s_mov_b64 exec, -1")
    a(f"s_mov_b32 s{sLOW}, 1")
    a(f"v_mul_u32_u24 v{T1}, 52429, v{VL}")
    a(f"v_lshrrev_b32 v{T1}, 19, v{T1}")
    a(f"v_mul_u32_u24 v{T2}, 10, v{T1}")
    a(f"v_sub_u32 v{T3}, v{VL}, v{T2}")
    a(f"v_mul_u32_u24 v{T1}, 1280, v{T1}")
    a(f"v_lshl_add_u32 v{T3}, v{T3}, 4, v{T1}")
    a(f"s_lshr_b32 s54, s{sS}, 2")
    a("s_mul_i32 s54, s54, 160")
    a(f"v_add_u32 v{PB}, s54, v{T3}")
    srd(a, sA, pWO, 640*1280)
    srd(a, sB_, pOUT, 2048*2560)
    a(f"s_mul_i32 s62, s{sXC}, 12")
    a(f"s_add_u32 s62, s62, s{sS}")
    a("s_sub_u32 s62, s62, 21")
    a("s_lshl_b32 s62, s62, 2")
    a(f"s_add_u32 s62, s62, s{sW}")
    a(f"s_cmp_ge_u32 s{sS}, 20")
    a("s_cselect_b32 s62, s62, 999")
    a(f"s_cmp_eq_u32 s{sAUX}, 1")
    a("s_cselect_b32 s62, s62, 999")
    a(f"s_cmp_lt_u32 s{sS}, 20")
    a(f"s_cselect_b32 s51, s{sAUX}, 0")
    a("s_xor_b32 s51, s51, 1")
    a("s_lshl_b32 s51, s51, 4")
    a(f"s_mov_b32 s{sIT}, 0")
    a(f"s_mov_b32 s{sSTEP}, {4*PS}")
    def qloads():
        a(f"buffer_load_dwordx4 {vr(Q,4)}, v{L16}, s[{sWS}:{sWS+3}], s57 offen sc1")
        a("s_mov_b32 exec_hi, 0")
        a(f"buffer_load_dwordx2 {vr(QT,2)}, v{L16}, s[{sWS}:{sWS+3}], s58 offen offset:2048 sc1")
        a("s_mov_b64 exec, -1")
    def load_pairs(tag):
        a.label(f"L_lp_{tag}")
        a(f"s_mul_i32 s56, s54, {PS}")
        a(f"s_add_u32 s59, s56, s{sKV}")
        a(f"s_sub_u32 s60, s56, {28*PS}")
        a("s_cmp_ge_u32 s54, 28")
        a("s_cselect_b32 m0, s60, s56")
        a("s_add_u32 s54, s54, 1")
        for k in range(4):
            a(f"buffer_load_dwordx4 v{L16}, s[{sWS}:{sWS+3}], s59 offen offset:{1024*k} sc1 lds")
        a("s_add_u32 m0, m0, 4096")
        a("s_add_u32 s59, s59, 4096")
        a(f"buffer_load_dwordx4 v{L16}, s[{sWS}:{sWS+3}], s59 offen sc1 lds")
        a("s_cmp_lt_u32 s54, s55")
        a(f"s_cbranch_scc1 L_lp_{tag}")
    a("s_cmp_eq_u32 s61, 0")
    a("s_cbranch_scc1 L_att_np")
    a(f"s_mul_i32 s54, s{sH}, 20")
    a(f"v_bfe_u32 v{T0}, v{VL}, 4, 1")
    a(f"v_mul_u32_u24 v{T0}, 19, v{T0}")
    a(f"v_add_u32 v{T0}, s54, v{T0}")
    a(f"v_and_b32 v{T0}, 0xff80, v{T0}")
    a(f"v_lshrrev_b32 v{T1}, 5, v{VL}")
    a(f"v_mul_u32_u24 v{T1}, 640, v{T1}")
    a(f"v_and_b32 v{T2}, 15, v{VL}")
    a(f"v_lshl_add_u32 v{T1}, v{T2}, 3, v{T1}")
    a(f"v_add_u32 v{T1}, v{T1}, v{T0}")
    a(f"v_add_u32 v{T1}, {WS_F1+640}, v{T1}")
    a(f"v_and_b32 v{T2}, 1, v{VL}")
    a(f"v_lshl_add_u32 v{T0}, v{T2}, 3, v{T0}")
    a(f"s_lshr_b32 s54, s{sS}, 2")
    a("s_lshl_b32 s54, s54, 4")
    a(f"s_add_u32 s54, s54, {WS_F1}")
    a(f"v_add_u32 v{T0}, s54, v{T0}")
    poll(a, [T0,T1], PL)
    lds_add(a, cP, T0)
    stamp(a,7)
    qloads()
    a("s_mov_b32 s54, 0")
    a("s_mov_b32 s55, 9")
    load_pairs("first")
    a("s_waitcnt vmcnt(20)")
    lds_add(a, cT, T0, 4)
    a("s_branch L_att_go")
    a.label("L_att_np")
    lds_wait(a, cP, 1, T0)
    stamp(a,7)
    qloads()
    lds_wait(a, cT, 4, T0)
    a("s_waitcnt vmcnt(0)")
    a.label("L_att_go")
    def koff(t): return (t>>1)*PS + (t&1)*1024
    def toff(t): return (t>>1)*PS + 2048
    def voff(t,s_): return (t>>1)*PS + 2560 + (t&1)*1280 + 640*s_
    def readK(t, trel):
        a(f"ds_read_b128 {vr(KM[t&1],4)}, v{AK} offset:{koff(trel)}")
        if t&1==0:
            a(f"ds_read_b128 {vr(KT[(t>>1)&1],4)}, v{AK} offset:{toff(trel)}")
    def readV2(t, trel):
        a(f"s_mov_b64 exec, s[{sVM}:{sVM+1}]")
        for d in range(2):
            a(f"ds_read_b128 {vr(V[(t+d)&3],4)}, v{AV} offset:{voff(trel+d,0)}")
            a(f"ds_read_b128 {vr(V[(t+d)&3]+4,4)}, v{AV} offset:{voff(trel+d,1)}")
        a("s_mov_b64 exec, -1")
    def qk1(t): a(f"v_mfma_f32_32x32x16_bf16 {vr(S[t&1],16)}, {vr(KM[t&1],4)}, {vr(Q,4)}, 0")
    def qk2(t): a(f"v_mfma_f32_32x32x8_bf16 {vr(S[t&1],16)}, {vr(KT[(t>>1)&1]+2*(t&1),2)}, {vr(QT,2)}, {vr(S[t&1],16)}")
    def pv(t,s_): a(f"v_smfmac_f32_32x32x32_bf16 {vr(O,16)}, {vr(V[t&3]+4*s_,4)}, {vr(S[t&1]+8*s_,8)}, v{IDX}")
    def ex(t,r): a(f"v_exp_f32 v{S[t&1]+r}, v{S[t&1]+r}")
    readK(0,0); readK(1,1); readV2(0,0)
    a("s_waitcnt lgkmcnt(0)")
    stamp(a,8)
    qk1(0); qk2(0)
    a("s_nop 9")
    a(f"s_cmp_eq_u32 s{sAUX}, 0")
    a("s_cbranch_scc1 L_att_topc")
    a("s_branch L_att_top")
    def wait_prog(val):
        L=a.uid("wp")
        a(f"s_mov_b32 s44, {SPIN}")
        a.label(L)
        a(f"v_cmp_le_u32 vcc, {val}, v{VCT}")
        a("s_and_b32 s54, vcc_lo, 0x00ff0000")
        a("s_cmp_eq_u32 s54, 0x00ff0000")
        a(f"s_cbranch_scc1 {L}_d")
        a("s_sleep 1")
        a(f"ds_read_b32 v{VCT}, v{VCA}")
        a("s_waitcnt lgkmcnt(0)")
        a("s_sub_u32 s44, s44, 1")
        a("s_cmp_lg_u32 s44, 0")
        a(f"s_cbranch_scc1 {L}")
        a.label(f"{L}_d")
    a.label("L_act1")
    a(f"s_lshl_b32 s54, s{sCH}, 12")
    a(f"s_add_u32 s54, s54, {WS_YT}")
    for k in range(4):
        a(f"buffer_store_dwordx4 {vr(YS+4*k,4)}, v{L16}, s[{sWS}:{sWS+3}], s54 offen offset:{1024*k} sc1")
    a("s_branch L_att_top")
    a.label("L_act2")
    a("s_waitcnt vmcnt(0)")
    lds_add_rtn(a, cE, T0, 54)
    a("s_cmp_lg_u32 s54, 7")
    a("s_cbranch_scc1 L_att_top")
    a(f"s_lshr_b32 s54, s{sCH}, 2")
    a("s_lshl_b32 s54, s54, 3")
    a(f"s_add_u32 s54, s54, {WS_FY}")
    flag_store(a, 54, T0)
    a("s_branch L_att_top")
    YI=104; YO=136; WV=PB
    a.label("L_act3")
    a(f"s_lshl_b32 s54, s{sS}, 2")
    a(f"s_add_u32 s54, s54, s{sW}")
    a("s_sub_u32 s54, s54, 4")
    a("s_mul_i32 s54, s54, 6400")
    a(f"v_min_u32 v{T0}, 49, v{VL}")
    a(f"v_lshlrev_b32 v{T0}, 7, v{T0}")
    a(f"buffer_load_dword v{MX}, v{T0}, s[{sA}:{sA+3}], s54 offen")
    a("s_branch L_att_top")
    a.label("L_act4")
    a("s_cmp_ge_u32 s62, 320")
    a("s_cbranch_scc1 L_att_top")
    a(f"v_and_b32 v{T0}, 15, v{VL}")
    a(f"v_lshlrev_b32 v{T0}, 3, v{T0}")
    a("s_lshr_b32 s57, s62, 5")
    a("s_and_b32 s58, s62, 31")
    a("s_lshl_b32 s54, s57, 7")
    a(f"s_add_u32 s54, s54, {WS_FY}")
    a(f"v_add_u32 v{T0}, s54, v{T0}")
    poll(a, [T0], PL)
    a(f"v_lshrrev_b32 v{T1}, 3, v{VL}")
    a(f"v_and_b32 v{T0}, 7, v{VL}")
    a(f"v_lshlrev_b32 v{T2}, 15, v{T0}")
    a(f"v_lshl_add_u32 v{T2}, v{T1}, 4, v{T2}")
    a("s_lshl_b32 s54, s57, 18")
    a("s_lshl_b32 s55, s58, 7")
    a("s_add_u32 s54, s54, s55")
    a(f"s_add_u32 s59, s54, {WS_YT}")
    for cc in range(8):
        a(f"buffer_load_dwordx4 {vr(YI+4*cc,4)}, v{T2}, s[{sWS}:{sWS+3}], s59 offen sc1")
        a("s_add_u32 s59, s59, 4096")
    a("s_branch L_att_top")
    a.label("L_act5")
    a("s_cmp_ge_u32 s62, 320")
    a("s_cbranch_scc1 L_att_top")
    a(f"v_lshrrev_b32 v{T1}, 3, v{VL}")
    a(f"v_and_b32 v{T0}, 7, v{VL}")
    a(f"v_mul_u32_u24 v{T3}, {8*2560}, v{T1}")
    a(f"v_lshl_add_u32 v{T3}, v{T0}, 4, v{T3}")
    a(f"s_mul_i32 s59, s58, {64*2560}")
    a("s_lshl_b32 s57, s57, 7")
    a("s_add_u32 s59, s59, s57")
    a("s_mov_b32 s54, 0x05040100")
    a("s_mov_b32 s55, 0x07060302")
    a("s_waitcnt vmcnt(0)")
    transpose8(a, YI, YO)
    for rr in range(8):
        a(f"buffer_store_dwordx4 {vr(YO+4*rr,4)}, v{T3}, s[{sB_}:{sB_+3}], s59 offen {os.environ.get('YFL','')}")
        a("s_add_u32 s59, s59, 2560")
    a("s_branch L_att_top")
    def wo_code(tag):
        a.label(f"L_wo_{tag}")
        a(f"s_cmp_eq_u32 s{sIT}, 7")
        a(f"s_cbranch_scc1 L_wo2_{tag}")
        wait_prog(5)
        a(f"s_mul_i32 s55, s{sW}, 960")
        a(f"s_add_u32 m0, s55, {WOB}")
        a(f"s_mul_i32 s55, s{sW}, 7680")
        a("s_mov_b32 exec_hi, 0x0fffffff")
        for n in range(10):
            a(f"buffer_load_dwordx4 v{WV}, s[{sA}:{sA+3}], s55 offen lds")
            if n<9:
                a(f"s_add_u32 m0, m0, {8*960}")
                a(f"s_add_u32 s55, s55, {8*7680}")
        a("s_mov_b64 exec, -1")
        a(f"s_branch L_att_nold{tag}")
        a.label(f"L_wo2_{tag}")
        wait_prog(6)
        a("s_mov_b32 exec_hi, 0x0fffffff")
        for n in range(10,14):
            a(f"s_add_u32 s54, s{sW}, {8*n}")
            a("s_mul_i32 s54, s54, 6")
            a("s_min_u32 s54, s54, 634")
            a("s_mul_i32 s55, s54, 160")
            a(f"s_add_u32 m0, s55, {WOB}")
            a("s_mul_i32 s55, s54, 1280")
            a(f"buffer_load_dwordx4 v{WV}, s[{sA}:{sA+3}], s55 offen lds")
        a("s_mov_b64 exec, -1")
        a(f"s_branch L_att_nold{tag}")
    wo_code("a"); wo_code("c")
    def test():
        a(f"v_cmp_lt_u32 s[54:55], s{sIT}, v{VTH}")
        a(f"v_cmp_le_u32 vcc, v{VVL}, v{VCT}")
        a("s_or_b64 s[54:55], s[54:55], vcc")
        a("s_cmp_eq_u64 s[54:55], -1")
    a.label("L_att_nr")
    a("s_mov_b64 exec, 1")
    a(f"ds_write_b32 v{PA}, v{VIT}")
    a("s_mov_b64 exec, -1")
    a(f"s_mov_b32 s44, {SPIN}")
    a.label("L_att_nr1")
    a(f"ds_read_b32 v{VCT}, v{VCA}")
    a("s_waitcnt lgkmcnt(0)")
    test()
    a("s_cbranch_scc1 L_att_h4")
    a("s_sleep 1")
    a("s_sub_u32 s44, s44, 1")
    a("s_cmp_lg_u32 s44, 0")
    a("s_cbranch_scc1 L_att_nr1")
    a.label("L_att_h4")
    a(f"s_cmp_eq_u32 s{sAUX}, 0")
    a("s_cbranch_scc1 L_att_topc")
    a.label("L_att_h5")
    for k in (3,4,5):
        a(f"s_cmp_eq_u32 s{sIT}, {k}")
        a(f"s_cbranch_scc1 L_act{k}")
    a(f"s_add_u32 s54, s{sIT}, s51")
    for k in (1,2):
        a(f"s_cmp_eq_u32 s54, {k}")
        a(f"s_cbranch_scc1 L_act{k}")
    a.label("L_att_top")
    UN=8
    LOWN=int(os.environ.get("LOWN","28")); LOWE=int(os.environ.get("LOWE","48"))
    def body(aux):
        tag="a" if aux else "c"
        a.label(f"L_att_top{tag}")
        for t in range(UN):
            def e(r):
                if not aux and 16*t+r==128-LOWN:
                    a(f"s_cmp_eq_u32 s{sLOW}, 2")
                    a("s_cbranch_scc1 L_att_nolow")
                    a("s_setprio 0")
                    a.label("L_att_nolow")
                if not aux and 16*t+r==128-LOWE:
                    a(f"s_cmp_lt_i32 s{sLOW}, 1")
                    a("s_cbranch_scc1 L_att_early")
                    a.label("L_att_earlyr")
                ex(t,r)
            if t==0 and not aux:
                a(f"s_cmp_lt_i32 s{sLOW}, 0")
                a("s_cbranch_scc1 L_att_nohi")
                a("s_setprio 2")
                a.label("L_att_nohi")
            e(0); e(1)
            pv(t-1,1)
            e(2); e(3); e(4)
            a("s_waitcnt lgkmcnt(0)")
            qk1(t+1)
            e(5); e(6); e(7); e(8)
            qk2(t+1)
            if t==6: a(f"v_add_u32 v{AK}, s{sSTEP}, v{AK}")
            if t==7: a(f"v_add_u32 v{AV}, s{sSTEP}, v{AV}")
            readK(t+2, (t+2)%8)
            if t&1: readV2(t+1, (t+1)%8)
            if t==0:
                if not aux: a("s_waitcnt vmcnt(0)")
                a("s_mov_b64 exec, 1")
                a(f"ds_write_b32 v{PA}, v{VIT}")
                if not aux: a(f"ds_add_u32 v{VCN}, v{VONE}")
                a("s_mov_b64 exec, -1")
            if t==4 and aux:
                a(f"s_cmp_ge_u32 s{sIT}, 6")
                a("s_cbranch_scc1 L_wo_a")
                a.label("L_att_nolda")
            if t==2 and not aux:
                a(f"s_cmp_ge_u32 s{sIT}, 6")
                a("s_cbranch_scc1 L_wo_c")
                a(f"s_lshl_b32 s54, s{sIT}, 2")
                a(f"s_add_u32 s54, s54, s{sW}")
                a("s_add_u32 s54, s54, 9")
                a("s_min_u32 s54, s54, 31")
                a(f"s_mul_i32 s56, s54, {PS}")
                a(f"s_add_u32 s59, s56, s{sKV}")
                a(f"s_sub_u32 s60, s56, {28*PS}")
                a("s_cmp_ge_u32 s54, 28")
                a("s_cselect_b32 m0, s60, s56")
                a("s_nop 0")
                for k in range(4):
                    a(f"buffer_load_dwordx4 v{L16}, s[{sWS}:{sWS+3}], s59 offen offset:{1024*k} sc1 lds")
                a("s_add_u32 m0, m0, 4096")
                a("s_add_u32 s59, s59, 4096")
                a(f"buffer_load_dwordx4 v{L16}, s[{sWS}:{sWS+3}], s59 offen sc1 lds")
                a.label("L_att_noldc")
            if t==6: a(f"ds_read_b32 v{VCT}, v{VCA}")
            e(9); e(10); e(11); e(12)
            pv(t,0)
            e(13); e(14); e(15)
        a(f"s_add_u32 s{sIT}, s{sIT}, 1")
        a(f"s_cmp_eq_u32 s{sIT}, 8")
        a("s_cbranch_scc1 L_att_done")
        a(f"s_cmp_eq_u32 s{sIT}, 6")
        a(f"s_cselect_b32 s{sSTEP}, {(-24*PS)&0xffffffff}, s{sSTEP}")
        a(f"v_add_u32 v{VIT}, 1, v{VIT}")
        if not aux:
            a(f"v_add_u32 v{VCN}, 4, v{VCN}")
            a(f"v_readlane_b32 s56, v{VCT}, s{sPL}")
            a(f"s_sub_u32 s56, s56, s{sIT}")
            a("s_add_u32 s56, s56, 2")
            a(f"s_min_i32 s{sLOW}, s56, 2")
        test()
        a(f"s_cbranch_scc1 {'L_att_h5' if aux else 'L_att_topc'}")
        a("s_branch L_att_nr")
    body(True)
    a.label("L_att_early")
    a("s_setprio 0")
    a("s_branch L_att_earlyr")
    body(False)
    a.label("L_att_done")
    pv(UN-1,1)
    a("s_setprio 1")
    stamp(a,9)
    a("s_waitcnt lgkmcnt(0)")
    a("s_nop 12")
    a(f"v_mov_b32 v{T0}, v{O+8}")
    a(f"v_mov_b32 v{T1}, v{O+8}")
    a("s_nop 1")
    a(f"v_permlane32_swap_b32 v{T0}, v{T1}")
    a(f"s_mov_b32 s46, {hex(f32bits(2.0**-64))}")
    a(f"s_mov_b32 s47, {hex(f32bits(2.0**64))}")
    a(f"v_cmp_le_f32 vcc, s46, v{T1}")
    a(f"v_cmp_ge_f32 s[54:55], s47, v{T1}")
    a("s_and_b64 s[54:55], s[54:55], vcc")
    a("s_cmp_eq_u64 s[54:55], -1")
    a("s_cbranch_scc0 L_att_slow")
    a.label("L_att_fin")
    a(f"v_rcp_f32 v{T1}, v{T1}")
    a(f"s_mul_i32 s56, s{sT}, 40960")
    a(f"s_add_u32 s56, s56, {WS_O}")
    a(f"s_lshl_b32 s57, s{sH}, 9")
    a("s_add_u32 s57, s57, s56")
    a(f"s_lshr_b32 s58, s{sH}, 3")
    a("s_lshl_b32 s58, s58, 10")
    a(f"s_and_b32 s59, s{sH}, 3")
    a("s_lshl_b32 s59, s59, 8")
    a("s_add_u32 s58, s58, s59")
    a(f"s_bfe_u32 s59, s{sH}, 0x10002")
    a("s_lshl_b32 s59, s59, 3")
    a("s_add_u32 s58, s58, s59")
    a("s_add_u32 s58, s58, s56")
    a(f"s_add_u32 s58, s58, {16*1024}")
    for r in range(12): a(f"v_mul_f32 v{O+r}, v{O+r}, v{T1}")
    for q in range(6): a(f"v_cvt_pk_bf16_f32 v{q}, v{O+2*q}, v{O+2*q+1}")
    a(f"v_bfe_u32 v{T2}, v{VL}, 4, 1")
    a(f"v_mul_u32_u24 v{T2}, 20480, v{T2}")
    a(f"v_and_b32 v{T3}, 15, v{VL}")
    a(f"v_lshl_add_u32 v{T2}, v{T3}, 4, v{T2}")
    a(f"v_lshrrev_b32 v{T3}, 5, v{VL}")
    a(f"v_lshl_add_u32 v{T2}, v{T3}, 8, v{T2}")
    a(f"buffer_store_dwordx4 v[0:3], v{T2}, s[{sWS}:{sWS+3}], s57 offen sc1")
    a("s_mov_b32 exec_hi, 0")
    a(f"buffer_store_dwordx2 v[4:5], v{T2}, s[{sWS}:{sWS+3}], s58 offen sc1")
    a("s_mov_b64 exec, -1")
    def slow():
        a.label("L_att_slow")
        def scores(t):
            a(f"buffer_load_dwordx4 {vr(KM[0],4)}, v{L16}, s[{sWS}:{sWS+3}], s56 offen offset:{koff(t)} sc1")
            a(f"buffer_load_dwordx4 {vr(KT[0],4)}, v{L16}, s[{sWS}:{sWS+3}], s56 offen offset:{toff(t)} sc1")
            a("s_waitcnt vmcnt(0)")
            a(f"v_mfma_f32_32x32x16_bf16 {vr(S[0],16)}, {vr(KM[0],4)}, {vr(Q,4)}, 0")
            a(f"v_mfma_f32_32x32x8_bf16 {vr(S[0],16)}, {vr(KT[0]+2*t,2)}, {vr(QT,2)}, {vr(S[0],16)}")
            a("s_nop 15")
        a("s_waitcnt vmcnt(0)")
        a(f"v_mov_b32 v{MX}, 0xff800000")
        a(f"s_mov_b32 s{sIT}, 0")
        a(f"s_mov_b32 s56, s{sKV}")
        a.label("L_att_slow1")
        for t in range(2):
            scores(t)
            for r in range(0,16,2): a(f"v_max3_f32 v{MX}, v{S[0]+r}, v{S[0]+r+1}, v{MX}")
        a(f"s_add_u32 s56, s56, {PS}")
        a(f"s_add_u32 s{sIT}, s{sIT}, 1")
        a(f"s_cmp_lt_u32 s{sIT}, 32")
        a("s_cbranch_scc1 L_att_slow1")
        a(f"v_mov_b32 v{T0}, v{MX}")
        a("s_nop 1")
        a(f"v_permlane32_swap_b32 v{T0}, v{MX}")
        a("s_nop 1")
        a(f"v_max_f32 v{MX}, v{MX}, v{T0}")
        setup_av()
        for r in range(16): a(f"v_mov_b32 v{O+r}, 0")
        a(f"s_mov_b32 s{sIT}, 0")
        a(f"s_mov_b32 s56, s{sKV}")
        a.label("L_att_slow2")
        for t in range(2):
            a(f"s_add_u32 s57, s56, {2560+1280*t}")
            a(f"s_mov_b64 exec, s[{sVM}:{sVM+1}]")
            a(f"buffer_load_dwordx4 {vr(V[0],4)}, v{AV}, s[{sWS}:{sWS+3}], s57 offen sc1")
            a(f"buffer_load_dwordx4 {vr(V[0]+4,4)}, v{AV}, s[{sWS}:{sWS+3}], s57 offen offset:640 sc1")
            a("s_mov_b64 exec, -1")
            scores(t)
            for r in range(16): a(f"v_sub_f32 v{S[0]+r}, v{S[0]+r}, v{MX}")
            for r in range(16): a(f"v_exp_f32 v{S[0]+r}, v{S[0]+r}")
            a("s_nop 2")
            a(f"v_smfmac_f32_32x32x32_bf16 {vr(O,16)}, {vr(V[0],4)}, {vr(S[0],8)}, v{IDX}")
            a(f"v_smfmac_f32_32x32x32_bf16 {vr(O,16)}, {vr(V[0]+4,4)}, {vr(S[0]+8,8)}, v{IDX}")
            a("s_nop 15")
        a(f"s_add_u32 s56, s56, {PS}")
        a(f"s_add_u32 s{sIT}, s{sIT}, 1")
        a(f"s_cmp_lt_u32 s{sIT}, 32")
        a("s_cbranch_scc1 L_att_slow2")
        a(f"v_mov_b32 v{T0}, v{O+8}")
        a(f"v_mov_b32 v{T1}, v{O+8}")
        a("s_nop 1")
        a(f"v_permlane32_swap_b32 v{T0}, v{T1}")
        a("s_nop 1")
        a("s_branch L_att_fin")
    return slow

def gen_final(a):
    T0,T1,T2,T3=92,93,94,95
    L16=97
    sTT=48; sFT=49
    a(f"s_lshr_b32 s{sFT}, s{sS}, 2")
    a(f"s_mov_b32 s{sTT}, s{sH}")
    a(f"s_and_b32 s56, s{sW}, 3")
    a(f"s_lshr_b32 s57, s{sW}, 2")
    a(f"s_lshl_b32 s58, s{sTT}, 2")
    a("s_add_u32 s58, s58, s56")
    OF=168; ACC=64; WB=[8,28]
    AM=86; AT=87
    a(f"v_bfe_u32 v{T1}, v{VL}, 2, 2")
    a(f"v_and_b32 v{T2}, 3, v{VL}")
    a(f"v_lshrrev_b32 v{T3}, 5, v{VL}")
    a(f"v_mul_u32_u24 v{AM}, 20, v{T3}")
    a(f"v_bfe_u32 v{T3}, v{VL}, 4, 1")
    a(f"v_lshl_add_u32 v{AM}, v{T3}, 2, v{AM}")
    a(f"v_add_u32 v{AM}, v{AM}, v{T1}")
    a(f"v_mul_u32_u24 v{AM}, 160, v{AM}")
    a(f"v_lshl_add_u32 v{AM}, v{T2}, 3, v{AM}")
    a(f"v_lshrrev_b32 v{T3}, 4, v{VL}")
    a(f"v_mul_u32_u24 v{AT}, 20, v{T3}")
    a(f"v_add_u32 v{AT}, v{AT}, v{T1}")
    a(f"v_mul_u32_u24 v{AT}, 160, v{AT}")
    a(f"v_lshl_add_u32 v{AT}, v{T2}, 3, v{AT}")
    a(f"s_mul_i32 s55, s57, {320*160}")
    a(f"s_add_u32 s55, s55, {WOB}")
    a(f"v_add_u32 v{AM}, s55, v{AM}")
    a(f"v_add_u32 v{AT}, s55, v{AT}")
    for r in range(20): a(f"v_mov_b32 v{ACC+r}, 0")
    a("s_mul_i32 s59, s58, 20480")
    a(f"s_add_u32 s59, s59, {WS_O}")
    a("s_lshl_b32 s55, s57, 13")
    a("s_add_u32 s60, s59, s55")
    a("s_add_u32 s61, s60, 4096")
    a("s_lshl_b32 s55, s57, 11")
    a("s_add_u32 s62, s59, s55")
    a(f"s_add_u32 s62, s62, {16*1024}")
    a("s_waitcnt vmcnt(0)")
    lds_add_rtn(a, cF, T0, 63)
    stamp(a,10)
    a("s_cmp_lg_u32 s63, 7")
    a("s_cbranch_scc1 L_f_np")
    a(f"s_lshl_b32 s54, s{sFT}, 8")
    a(f"s_lshl_b32 s55, s{sH}, 3")
    a("s_add_u32 s54, s54, s55")
    a(f"s_add_u32 s54, s54, {WS_F2}")
    flag_store(a, 54, T0)
    a(f"v_and_b32 v{T0}, 31, v{VL}")
    a(f"v_lshlrev_b32 v{T0}, 3, v{T0}")
    a(f"s_lshl_b32 s54, s{sXC}, 8")
    a(f"s_add_u32 s54, s54, {WS_F2}")
    a(f"v_add_u32 v{T0}, s54, v{T0}")
    poll(a, [T0], 100)
    a.label("L_f_np")
    a("s_barrier")
    stamp(a,11)
    for k in range(10):
        so = 60 if k<4 else (61 if k<8 else 62)
        a(f"buffer_load_dwordx4 {vr(OF+4*k,4)}, v{L16}, s[{sWS}:{sWS+3}], s{so} offen offset:{1024*(k&3) if k<8 else 1024*(k-8)} sc1")
    def wreads(k):
        b=WB[k&1]
        for f in range(5):
            for sec in range(2):
                if k<8: ad=AM; off=(40*k+8*sec)*160+32*f
                else:   ad=AT; off=(160*(k-8)+80*sec+16)*160+32*f
                a(f"ds_read_b64_tr_b16 {vr(b+4*f+2*sec,2)}, v{ad} offset:{off}")
    wreads(0)
    for k in range(10):
        if k<9:
            wreads(k+1)
            a(f"s_waitcnt vmcnt({9-k}) lgkmcnt(10)")
        else:
            a("s_waitcnt vmcnt(0) lgkmcnt(0)")
        for f in range(5):
            a(f"v_mfma_f32_16x16x32_bf16 {vr(ACC+4*f,4)}, {vr(WB[k&1]+4*f,4)}, {vr(OF+4*k,4)}, {vr(ACC+4*f,4)}")
    stamp(a,12)
    RED=0
    a(f"s_mul_i32 s55, s56, 5120")
    a(f"s_add_u32 s55, s55, {RED}")
    a(f"v_add_u32 v{T0}, s55, v{L16}")
    a("s_cmp_eq_u32 s57, 0")
    a("s_nop 4")
    a("s_cbranch_scc1 L_f_lo")
    for f in range(5):
        a(f"ds_write_b128 v{T0}, {vr(ACC+4*f,4)} offset:{1024*f}")
    a("s_waitcnt lgkmcnt(0)")
    a("s_barrier")
    a("s_branch L_f_end")
    a.label("L_f_lo")
    STGO = 124928
    a(f"v_and_b32 v{T1}, 15, v{VL}")
    a(f"v_mul_u32_u24 v{T1}, 176, v{T1}")
    a(f"v_lshrrev_b32 v{T2}, 4, v{VL}")
    a(f"v_lshl_add_u32 v{T1}, v{T2}, 3, v{T1}")
    a("s_mul_i32 s55, s56, 2816")
    a(f"s_add_u32 s55, s55, {STGO}")
    a(f"v_add_u32 v{T1}, s55, v{T1}")
    for n in range(3):
        a(f"v_add_u32 v{T2}, {64*n}, v{VL}")
        a(f"v_mul_u32_u24 v{T3}, 52429, v{T2}")
        a(f"v_lshrrev_b32 v{T3}, 19, v{T3}")
        a(f"v_mul_u32_u24 v{50+n}, 10, v{T3}")
        a(f"v_sub_u32 v{T2}, v{T2}, v{50+n}")
        a(f"v_lshlrev_b32 v{T2}, 4, v{T2}")
        a(f"v_mul_u32_u24 v{50+n}, 176, v{T3}")
        a(f"v_add3_u32 v{50+n}, v{50+n}, v{T2}, s55")
        a(f"v_mul_u32_u24 v{54+n}, 2560, v{T3}")
        a(f"v_add_u32 v{54+n}, v{54+n}, v{T2}")
    a(f"s_mul_i32 s55, s{sFT}, 160")
    a(f"s_mul_i32 s54, s58, {16*2560}")
    a("s_add_u32 s55, s55, s54")
    a("s_add_u32 s55, s55, 1280")
    a("s_barrier")
    for f in range(5):
        a(f"ds_read_b128 {vr(4*f,4)}, v{T0} offset:{1024*f}")
    for f in range(5):
        a(f"s_waitcnt lgkmcnt(4)")
        for r in range(4): a(f"v_add_f32 v{4*f+r}, v{4*f+r}, v{ACC+4*f+r}")
        a(f"v_cvt_pk_bf16_f32 v{24+2*f}, v{4*f}, v{4*f+1}")
        a(f"v_cvt_pk_bf16_f32 v{25+2*f}, v{4*f+2}, v{4*f+3}")
        a(f"ds_write_b64 v{T1}, {vr(24+2*f,2)} offset:{32*f}")
    for n in range(3):
        a(f"ds_read_b128 {vr(36+4*n,4)}, v{50+n}")
    for n in range(3):
        a(f"s_waitcnt lgkmcnt({2-n})")
        if n==2: a("s_mov_b32 exec_hi, 0")
        a(f"buffer_store_dwordx4 {vr(36+4*n,4)}, v{54+n}, s[{sB_}:{sB_+3}], s55 offen {os.environ.get('OFL','')}")
    a.label("L_f_end")
    prof_end(a,13)

def build():
    a = Asm()
    K=NAME+"_kernel"
    a.raw(f".globl {K}"); a.raw(".p2align 8"); a.raw(f".type {K},@function"); a.label(K)
    a("s_load_dwordx16 s[64:79], s[0:1], 0")
    a("s_load_dwordx8 s[80:87], s[0:1], 64")
    a("s_load_dwordx2 s[88:89], s[0:1], 96")
    a("s_cmp_ge_u32 s2, 256")
    a("s_cbranch_scc1 L_end")
    a(f"v_lshrrev_b32 v1, 6, v0")
    a(f"v_and_b32 v{VL}, 63, v0")
    a(f"v_readfirstlane_b32 s{sW}, v1")
    if DIAG!=-2:
        a("s_memrealtime s[100:101]")
        a("s_waitcnt lgkmcnt(0)")
    if PROF:
        a(f"v_mov_b32 v{PV}, 0")
        stamp(a,0)
    a("s_and_b32 s30, s2, 0x38")
    a("s_cbranch_scc1 L_nopf")
    a("s_getpc_b64 s[28:29]")
    a.label("L_pc")
    a("v_lshlrev_b32 v2, 7, v0")
    a("v_min_u32 v2, (L_codeend-L_pc-4), v2")
    a("global_load_dword v251, v2, s[28:29]")
    a.label("L_nopf")
    a(f"s_and_b32 s{sXC}, s2, 7")
    a(f"s_lshr_b32 s{sS}, s2, 3")
    a(f"s_and_b32 s30, s{sXC}, 3")
    a("s_lshl_b32 s30, s30, 2")
    a(f"s_and_b32 s31, s{sS}, 3")
    a(f"s_add_u32 s{sMT}, s30, s31")
    a(f"s_lshl_b32 s30, s{sXC}, 2")
    a(f"s_add_u32 s{sH}, s30, s31")
    a(f"s_lshr_b32 s30, s{sXC}, 2")
    a("s_lshl_b32 s30, s30, 3")
    a(f"s_lshr_b32 s31, s{sS}, 2")
    a(f"s_add_u32 s{sNT}, s30, s31")
    a("s_lshl_b32 s31, s31, 3")
    a(f"s_add_u32 s{sT}, s31, s{sW}")
    a(f"s_cmp_eq_u32 s{sNT}, 15")
    a("s_cbranch_scc1 L_spare")
    a(f"s_cmp_lt_u32 s{sW}, 4")
    a("s_cbranch_scc1 L_compute")
    gen_aux(a)
    a("s_branch L_att")
    a.label("L_spare")
    gen_spare(a)
    a(f"s_cmp_lt_u32 s{sW}, 4")
    a("s_cbranch_scc1 L_att")
    a("s_setprio 1")
    a("s_branch L_att")
    a.label("L_compute")
    gen_compute(a)
    slow = gen_att(a)
    gen_final(a)
    a.label("L_end")
    a("s_endpgm")
    a.label("L_codeend")
    slow()
    hdr = open(f"cdna_kernels/{NAME}.s.ref").read().split("; Override launch")[0]
    out = hdr + f"; @launch grid=(256,1,1) block=(512,1,1) lds={LDS}\n"
    out += '.amdgcn_target "amdgcn-amd-amdhsa--gfx950"\n.text\n' + a.text()
    out += f""".section .rodata,"a"
.p2align 6
.amdhsa_kernel {K}
  .amdhsa_next_free_vgpr 256
  .amdhsa_next_free_sgpr 102
  .amdhsa_accum_offset 256
  .amdhsa_group_segment_fixed_size 0
  .amdhsa_kernarg_size 104
  .amdhsa_user_sgpr_count 2
  .amdhsa_user_sgpr_kernarg_segment_ptr 1
  .amdhsa_system_sgpr_workgroup_id_x 1
.end_amdhsa_kernel
"""
    return out
if __name__ == "__main__":
    dst = sys.argv[1] if len(sys.argv) > 1 else f"f11.s"
    open(dst, "w").write(build())
    print("wrote", dst)
```

```python
import sys, math, struct, os
NAME="concat_heads__ssm_conv_s4d__mha_block__prompt"
def f32bits(x): return struct.unpack("<I", struct.pack("<f", x))[0]
class Asm:
    def __init__(self): self.l = []; self.n=0
    def __call__(self, s):
        for x in s.split("\n"):
            x = x.strip()
            if x: self.l.append("    " + x)
    def label(self, n): self.l.append(n + ":")
    def raw(self, s): self.l.append(s)
    def uid(self, p): self.n+=1; return f"L_{p}_{self.n}"
    def text(self): return "\n".join(self.l) + "\n"
def vr(b, n): return f"v[{b}:{b+n-1}]" if n > 1 else f"v{b}"
def sr(b, n): return f"s[{b}:{b+n-1}]" if n > 1 else f"s{b}"

PROF = int(os.environ.get("PROF","0"))
X = os.environ.get("X","")
FLD = os.environ.get("FLD","sc1"); FST = os.environ.get("FST","sc1")
PS   = 5120
HKV  = 32*PS
WS_Q  = 0
WS_KV = 0x280000
WS_O  = 0x7B0000
WS_UT = 0xA40000
WS_YT = 0xCD0000
WS_FL = 0x1000000
FG = int(os.environ.get('FG','5')); FS = int(os.environ.get('FS','4352'))
WS_F1 = 0
WS_FU = WS_F1 + 0x1000
WS_FY = WS_F1 + 0x2000
WS_F2 = WS_F1 + 0x3000
WS_PROF = 0xF80000
WS_SIZE = 0x1800000
LDS = 163840
CTL = LDS-128
cT = CTL
cV,cE,cP,cF = [CTL+48+4*i for i in range(4)]
cWO = CTL+40
cG = CTL+44
NA = int(os.environ.get('NA','4'))
DX=220; DW=224; sLX=46; sLW=47; sLD=53; sLE=54; sST0=55
cM = CTL+112
cH = CTL+96
CTB = 71680
HOF = 5120
cPROG = CTL+64
WOB = 20480
TRS = 99072
TBL = 111360
XST = 1040; STG = 16*XST+16384; WOFF = 16*XST
UB0 = 92864; UBS = 8464; U1_OFF = 4224
RB0 = UB0+4*UBS; RBS = 9216; R1_OFF = 4640
pU,pLAR,pAIM,pCR,pCI,pLDT,pDSK,pX,pW,pWO,pOUT,pDBG,pWS = [64+2*i for i in range(13)]
sWS=16; sA=8; sB_=12; sC=20; sD_=24
sW,sMT,sNT,sWM,sWN,sXC,sS,sH,sT = 32,33,34,35,36,37,38,39,40
sN0,sN1=42,43
VL=250
PV=255
SPIN=200000

def srd(a, s, ptr, size):
    a(f"s_mov_b32 s{s}, s{ptr}")
    a(f"s_and_b32 s{s+1}, s{ptr+1}, 0xffff")
    a(f"s_mov_b32 s{s+2}, {size}")
    a(f"s_mov_b32 s{s+3}, 0x00020000")

DIAG = int(os.environ.get("DIAG","-2"))
def stamp(a, idx):
    if DIAG==idx:
        a("s_memrealtime s[100:101]")
        a("s_waitcnt lgkmcnt(0)")
    if not PROF: return
    a("s_memrealtime s[96:97]")
    a("s_memtime s[98:99]")
    a("s_waitcnt lgkmcnt(0)")
    a(f"v_writelane_b32 v{PV}, s96, {2*idx}")
    a(f"v_writelane_b32 v{PV}, s98, {2*idx+1}")
def prof_end(a, idx):
    if DIAG!=-2:
        a("s_waitcnt vmcnt(0)")
        stamp(a, idx)
        if DIAG==-1: a(f"s_mov_b32 s100, s{sN0}")
        a("s_add_u32 s100, s100, 6000")
        a.label("L_diag")
        a("s_sleep 1")
        a("s_memrealtime s[96:97]")
        a("s_waitcnt lgkmcnt(0)")
        a("s_sub_u32 s96, s96, s100")
        a("s_cmp_lt_i32 s96, 0")
        a("s_cbranch_scc1 L_diag")
    if not PROF: return
    a("s_mov_b64 exec, -1")
    a("s_waitcnt vmcnt(0)")
    stamp(a, idx)
    a(f"v_writelane_b32 v{PV}, s100, 0")
    a(f"v_lshlrev_b32 v{PV-1}, 2, v{VL}")
    a(f"s_lshl_b32 s100, s2, 3")
    a(f"s_add_u32 s100, s100, s{sW}")
    a(f"s_lshl_b32 s100, s100, 7")
    a(f"s_add_u32 s100, s100, {WS_PROF}")
    a("s_mov_b32 exec_hi, 0")
    a(f"buffer_store_dword v{PV}, v{PV-1}, s[{sWS}:{sWS+3}], s100 offen")

def nonce_issue(a, v, vz):
    a(f"global_load_dwordx2 {vr(v,2)}, v{vz}, s[{pDBG}:{pDBG+1}] sc1")
def nonce_get(a, v, vz, first_issued):
    L=a.uid("ng"); D=a.uid("nd")
    a(f"s_mov_b32 s44, {SPIN}")
    if first_issued:
        a(f"s_branch {L}_w")
    a.label(L)
    nonce_issue(a, v, vz)
    a.label(L+"_w")
    a("s_waitcnt vmcnt(0)")
    a(f"v_readfirstlane_b32 s{sN0}, v{v}")
    a(f"v_readfirstlane_b32 s{sN1}, v{v+1}")
    a(f"s_cmp_lg_u32 s{sN1}, 0")
    a(f"s_cbranch_scc1 {D}")
    a("s_sleep 2")
    a("s_sub_u32 s44, s44, 1")
    a("s_cmp_lg_u32 s44, 0")
    a(f"s_cbranch_scc1 {L}")
    a.label(D)

def v_spread(a, v, t):
    a(f"v_lshrrev_b32 v{t}, {FG}, v{v}")
    a(f"v_mul_u32_u24 v{t}, {FS}, v{t}")
    a(f"v_and_b32 v{v}, {(1<<FG)-1}, v{v}")
    a(f"v_add_u32 v{v}, v{v}, v{t}")
    a(f"v_add_u32 v{v}, {WS_FL}, v{v}")
def flag_store(a, soff, t):
    a(f"s_lshr_b32 s31, s{soff}, {FG}")
    a(f"s_mul_i32 s31, s31, {FS}")
    a(f"s_and_b32 s{soff}, s{soff}, {(1<<FG)-1}")
    a(f"s_add_u32 s{soff}, s{soff}, s31")
    a(f"s_add_u32 s{soff}, s{soff}, {WS_FL}")
    a(f"v_mov_b32 v{t}, s{sN0}")
    a(f"v_mov_b32 v{t+1}, s{sN1}")
    a(f"v_mov_b32 v{t+2}, 0")
    a("s_mov_b64 exec, 1")
    a(f"buffer_store_dwordx2 {vr(t,2)}, v{t+2}, s[{sWS}:{sWS+3}], s{soff} offen {FST}")
    a("s_mov_b64 exec, -1")

def poll(a, addrs, t, sl=6):
    L=a.uid("pl"); D=a.uid("pd")
    a(f"s_mov_b32 s44, {SPIN}")
    a.label(L)
    for k,ad in enumerate(addrs):
        a(f"buffer_load_dwordx2 {vr(t+2*k,2)}, v{ad}, s[{sWS}:{sWS+3}], 0 offen {FLD}")
    a("s_waitcnt vmcnt(0)")
    for k in range(len(addrs)):
        if k==0: a(f"v_cmp_eq_u64 s[46:47], s[{sN0}:{sN1}], {vr(t,2)}")
        else:
            a(f"v_cmp_eq_u64 vcc, s[{sN0}:{sN1}], {vr(t+2*k,2)}")
            a("s_and_b64 s[46:47], s[46:47], vcc")
    a("s_cmp_eq_u64 s[46:47], -1")
    a(f"s_cbranch_scc1 {D}")
    a(f"s_sleep {sl}")
    a("s_sub_u32 s44, s44, 1")
    a("s_cmp_lg_u32 s44, 0")
    a(f"s_cbranch_scc1 {L}")
    a.label(D)

def lds_add(a, addr, t, val=1):
    a(f"v_mov_b32 v{t}, {addr}")
    a(f"v_mov_b32 v{t+1}, {val}")
    a("s_mov_b64 exec, 1")
    a(f"ds_add_u32 v{t}, v{t+1}")
    a("s_mov_b64 exec, -1")
def lds_add_rtn(a, addr, t, sdst):
    a(f"v_mov_b32 v{t}, {addr}")
    a(f"v_mov_b32 v{t+1}, 1")
    a("s_mov_b64 exec, 1")
    a(f"ds_add_rtn_u32 v{t+1}, v{t}, v{t+1}")
    a("s_waitcnt lgkmcnt(0)")
    a(f"v_readfirstlane_b32 s{sdst}, v{t+1}")
    a("s_mov_b64 exec, -1")
def lds_wait(a, addr, val, t):
    L=a.uid("lw"); D=a.uid("ld")
    a(f"s_mov_b32 s44, {SPIN}")
    a(f"v_mov_b32 v{t}, {addr}")
    a.label(L)
    a(f"ds_read_b32 v{t+1}, v{t}")
    a("s_waitcnt lgkmcnt(0)")
    a(f"v_readfirstlane_b32 s45, v{t+1}")
    a(f"s_cmp_ge_u32 s45, {val}")
    a(f"s_cbranch_scc1 {D}")
    a("s_sleep 2")
    a("s_sub_u32 s44, s44, 1")
    a("s_cmp_lg_u32 s44, 0")
    a(f"s_cbranch_scc1 {L}")
    a.label(D)

def transpose8(a, IN, OB):
    for d in range(4):
        for hi in range(2):
            cc=2*d+hi
            for e in range(4):
                a(f"v_perm_b32 v{OB+4*cc+e}, v{IN+4*(2*e+1)+d}, v{IN+4*(2*e)+d}, s{54+hi}")

def w_tr_addr(a, dst, t0, t1, t2, j):
    a(f"v_bfe_u32 v{t0}, v{VL}, 2, 2")
    a(f"v_bfe_u32 v{t1}, v{VL}, 4, 1")
    a(f"v_lshlrev_b32 v{t1}, 1, v{t1}")
    a(f"v_bfe_u32 v{t2}, v{VL}, 1, 1")
    a(f"v_add_u32 v{t1}, v{t1}, v{t2}")
    a(f"s_lshl_b32 s30, s{sWN}, 3")
    a(f"s_add_u32 s30, s30, {4*j}")
    a(f"v_add_u32 v{t1}, s30, v{t1}")
    a(f"v_lshlrev_b32 v{t2}, 2, v{t0}")
    a(f"v_xor_b32 v{t1}, v{t1}, v{t2}")
    a(f"v_lshlrev_b32 v{t1}, 4, v{t1}")
    a(f"v_and_b32 v{t2}, 1, v{VL}")
    a(f"v_lshl_add_u32 v{t1}, v{t2}, 3, v{t1}")
    a(f"v_lshrrev_b32 v{t2}, 5, v{VL}")
    a(f"v_lshl_add_u32 v{t2}, v{t2}, 3, v{t0}")
    a(f"v_lshl_add_u32 v{t1}, v{t2}, 8, v{t1}")
    a(f"v_add_u32 v{dst}, {WOFF}, v{t1}")

def gen_compute(a):
    ACC=0; XF=64; WF=80; AX=200; AW=204; CX=206; CW=210; EA=212
    T0,T1,T2,T3,T4,T5=240,241,242,243,244,245
    loader_setup(a)
    for g in dma_groups():
        for x in g: a(x)
    a("s_barrier")
    a(f"s_and_b32 s{sWM}, s{sW}, 1")
    a(f"s_lshr_b32 s{sWN}, s{sW}, 1")
    a(f"v_mov_b32 v{T5}, 0")
    a(f"v_bfe_u32 v{T0}, v{VL}, 3, 2")
    a(f"v_mul_u32_u24 v{T0}, {XST}, v{T0}")
    a(f"v_and_b32 v{T1}, 7, v{VL}")
    a(f"v_lshl_add_u32 v{T0}, v{T1}, 7, v{T0}")
    a(f"v_lshrrev_b32 v{T2}, 5, v{VL}")
    a(f"v_lshl_add_u32 v{T0}, v{T2}, 4, v{T0}")
    a(f"s_mul_i32 s30, s{sWM}, {8*XST}")
    a(f"v_add_u32 v{T0}, s30, v{T0}")
    a(f"v_bfe_u32 v{T1}, v{VL}, 1, 1")
    a(f"v_lshl_add_u32 v{AX}, v{T1}, 6, v{T0}")
    a(f"v_xor_b32 v{T1}, 1, v{T1}")
    a(f"v_lshl_add_u32 v{AX+1}, v{T1}, 6, v{T0}")
    for j in range(2): w_tr_addr(a, AW+j, T0, T1, T2, j)
    for k in range(2): a(f"v_mov_b32 v{CX+k}, v{AX+k}")
    for k in range(2): a(f"v_mov_b32 v{CW+k}, v{AW+k}")
    a(f"s_lshl_b32 s56, s{sMT}, 1")
    a(f"s_add_u32 s56, s56, s{sWM}")
    a(f"s_lshl_b32 s57, s{sNT}, 7")
    a(f"s_lshl_b32 s58, s{sMT}, 3")
    a(f"s_add_u32 s57, s57, s58")
    a(f"s_add_u32 s57, s57, {WS_F1}")
    a(f"s_cmp_ge_u32 s{sNT}, 10")
    a("s_cbranch_scc1 L_c_vaddr")
    a(f"s_cmp_ge_u32 s{sNT}, 5")
    a(f"s_cselect_b32 s58, {HKV}, 0")
    a(f"s_cselect_b32 s59, {PS}, 0")
    a(f"s_cselect_b32 s60, {WS_KV}, 0")
    a(f"s_cselect_b32 s61, 5, 0")
    a(f"s_cselect_b32 s62, 1.0, {hex(f32bits(20**-0.5*math.log2(math.e)))}")
    a(f"s_cselect_b64 vcc, -1, 0")
    a(f"s_cselect_b32 s30, 0, 81920")
    a(f"s_cselect_b32 s31, 0, 2560")
    a("s_add_u32 s58, s58, s30")
    a("s_add_u32 s59, s59, s31")
    a(f"s_sub_u32 s61, s{sNT}, s61")
    a("s_lshl_b32 s61, s61, 4")
    a(f"s_lshl_b32 s30, s{sWN}, 3")
    a("s_add_u32 s61, s61, s30")
    a("s_mul_i32 s30, s56, s59")
    a("s_add_u32 s60, s60, s30")
    a(f"v_and_b32 v{T0}, 31, v{VL}")
    a(f"v_and_b32 v{T1}, 19, v{T0}")
    a(f"v_bfe_u32 v{T2}, v{T0}, 2, 1")
    a(f"v_lshl_add_u32 v{T1}, v{T2}, 3, v{T1}")
    a(f"v_bfe_u32 v{T2}, v{T0}, 3, 1")
    a(f"v_lshl_add_u32 v{T1}, v{T2}, 2, v{T1}")
    a(f"v_cndmask_b32 v{T0}, v{T0}, v{T1}, vcc")
    a(f"v_lshlrev_b32 v{T0}, 4, v{T0}")
    a(f"v_add_u32 v{T0}, s60, v{T0}")
    a(f"v_lshrrev_b32 v{T1}, 5, v{VL}")
    a(f"v_add_u32 v{T1}, s61, v{T1}")
    a("s_lshl_b32 s63, s58, 1")
    HS=247
    a(f"v_mov_b32 v{HS}, s58")
    for jp in range(4):
        e=EA+2*jp
        sm=90+2*jp if jp<3 else 28
        a(f"v_add_u32 v{T2}, {2*jp}, v{T1}")
        a(f"v_mul_u32_u24 v{T3}, 52429, v{T2}")
        a(f"v_lshrrev_b32 v{T3}, 18, v{T3}")
        a(f"v_mul_u32_u24 v{T4}, 5, v{T3}")
        a(f"v_sub_u32 v{T2}, v{T2}, v{T4}")
        a(f"v_mul_u32_u24 v{T3}, s63, v{T3}")
        a(f"v_add_u32 v{T3}, v{T3}, v{T0}")
        a(f"v_cmp_lt_u32 vcc, 2, v{T2}")
        a(f"v_cmp_eq_u32 s[{sm}:{sm+1}], 2, v{T2}")
        a(f"v_lshlrev_b32 v{T4}, 9, v{T2}")
        a(f"v_add_u32 v{T3}, v{T3}, v{T4}")
        a(f"v_subrev_u32 v{T4}, 1536, v{HS}")
        a(f"v_cndmask_b32 v{T4}, 0, v{T4}, vcc")
        a(f"v_add_u32 v{T3}, v{T3}, v{T4}")
        a(f"v_mov_b32 v{T4}, 1024")
        a(f"v_cndmask_b32 v{T2}, 0, v{T4}, s[{sm}:{sm+1}]")
        a(f"v_add_u32 v{e}, v{T3}, v{T2}")
        a(f"v_cndmask_b32 v{T4}, v{T4}, v{HS}, s[{sm}:{sm+1}]")
        a(f"v_add_u32 v{e+1}, v{e}, v{T4}")
    a("s_branch L_c_addrdone")
    a.label("L_c_vaddr")
    a(f"s_sub_u32 s61, s{sNT}, 10")
    a("s_lshl_b32 s61, s61, 7")
    a(f"s_lshl_b32 s30, s{sWN}, 6")
    a("s_add_u32 s61, s61, s30")
    a(f"s_mul_i32 s60, s56, {PS}")
    a(f"s_add_u32 s60, s60, {WS_KV+2560}")
    a(f"s_mov_b32 s58, {HKV}")
    a(f"v_lshrrev_b32 v{T0}, 5, v{VL}")
    a(f"v_mul_u32_u24 v{T0}, 320, v{T0}")
    a(f"v_add_u32 v{T0}, s60, v{T0}")
    a(f"v_and_b32 v{T1}, 31, v{VL}")
    a(f"v_add_u32 v{T1}, s61, v{T1}")
    for j in range(2):
        a(f"v_add_u32 v{T2}, {32*j}, v{T1}")
        a(f"v_mul_u32_u24 v{T3}, 52429, v{T2}")
        a(f"v_lshrrev_b32 v{T3}, 20, v{T3}")
        a(f"v_mul_u32_u24 v{T4}, 20, v{T3}")
        a(f"v_sub_u32 v{T2}, v{T2}, v{T4}")
        a(f"v_mul_u32_u24 v{T3}, s58, v{T3}")
        a(f"v_lshl_add_u32 v{T3}, v{T2}, 4, v{T3}")
        a(f"v_add_u32 v{EA+j}, v{T3}, v{T0}")
    for k in range(2,8): a(f"v_mov_b32 v{EA+k}, v{EA}")
    a.label("L_c_addrdone")
    for r in range(0,64,2): a(f"v_mov_b64 {vr(ACC+r,2)}, 0")
    srd(a, sWS, pWS, WS_SIZE)
    a(f"v_mov_b32 v236, {cG}")
    a("v_mov_b32 v237, 1")
    stamp(a,1)
    for g in dma_groups():
        for x in g: a(x)
    def sync4(L):
        a("s_mov_b64 exec, 1")
        a("ds_add_u32 v236, v237")
        a("s_mov_b64 exec, -1")
        a(f"s_mov_b32 s44, {SPIN}")
        a.label(L)
        a("ds_read_b32 v238, v236")
        a("s_sub_u32 s44, s44, 1")
        a("s_waitcnt lgkmcnt(0)")
        a("v_readfirstlane_b32 s45, v238")
        a("s_cmp_eq_u32 s44, 0")
        a("s_cselect_b32 s45, s50, s45")
        a("s_cmp_lt_u32 s45, s50")
        a(f"s_cbranch_scc1 {L}")
        a("s_add_u32 s50, s50, 4")
    a("s_mov_b32 s50, 4")
    a("s_waitcnt vmcnt(8)")
    sync4("L_c_s0")
    def rd(ks):
        b=ks&1
        X=lambda i: f"ds_read_b128 {vr(XF+8*b+4*i,4)}, v{CX+(ks>>1)} offset:{4*XST*i+32*(ks&1)}"
        W=lambda j,sec: f"ds_read_b64_tr_b16 {vr(WF+8*b+4*j+2*sec,2)}, v{CW+j} offset:{4096*ks+1024*sec}"
        if "R" in globals()["X"]: return ["s_nop 0"]*6
        return [X(0),W(0,0),W(0,1),X(1),W(1,0),W(1,1)]
    def mf(ks, swap):
        b=ks&1; out=[]
        for j in range(2):
            for i in range(2):
                acc=vr(ACC+16*(2*j+i),16)
                X=vr(XF+8*b+4*i,4); W=vr(WF+8*b+4*j,4)
                if swap: out.append(f"v_mfma_f32_32x32x16_bf16 {acc}, {X}, {W}, {acc}")
                else:    out.append(f"v_mfma_f32_32x32x16_bf16 {acc}, {W}, {X}, {acc}")
        if "S" in globals()["X"]:
            out=[]
            for j in range(2):
                for i in range(2):
                    base=ACC+16*(2*j+i)+8*(ks&1)
                    X1=vr(XF+8*b+4*i,4); W1=vr(WF+8*b+4*j,4); X2=vr(XF+8*b+4*(1-i),4)
                    out.append(f"v_mfma_f32_16x16x32_bf16 {vr(base,4)}, {W1}, {X1}, {vr(base,4)}\nv_mfma_f32_16x16x32_bf16 {vr(base+4,4)}, {X1}, {W1}, {vr(base+4,4)}")
        if "M" in globals()["X"]: out=["s_nop 0"]*4
        return out
    def body(swap, L, early):
        a.label(L)
        if PROF and (early == (NA>3)):
            a("s_cmp_lg_u32 s49, 3")
            a(f"s_cbranch_scc1 {L}_pp")
            stamp(a,14)
            a.label(f"{L}_pp")
        G=dma_groups() if early else []
        def D():
            if G:
                for x in G.pop(0): a(x)
        for ks in range(3):
            R=rd(ks+1); M=mf(ks,swap)
            a("s_waitcnt lgkmcnt(3)"); a(M[0]); a(R[0]); a(R[1]); D()
            a("s_waitcnt lgkmcnt(4)"); a(M[1]); a(R[2]); a(R[3]); D()
            a("s_waitcnt lgkmcnt(4)"); a(M[2]); a(R[4]); a(R[5])
            if ks==1:
                a(f"s_add_u32 s48, s48, {STG}")
                a(f"s_cmp_eq_u32 s48, {3*STG}")
                a("s_cselect_b32 s48, 0, s48")
            a(M[3]); D()
            if ks==2:
                for k in range(2): a(f"v_add_u32 v{CX+k}, s48, v{AX+k}")
        R=rd(0); M=mf(3,swap)
        a("s_waitcnt lgkmcnt(3)"); a(M[0])
        for k in range(2): a(f"v_add_u32 v{CW+k}, s48, v{AW+k}")
        if early:
            a("s_waitcnt lgkmcnt(0)"); a(M[1])
            a("s_waitcnt vmcnt(8)")
            a(f"s_cmp_eq_u32 s49, {NA-1}")
            a(f"s_cbranch_scc1 {L[:-1]}_b")
            sync4(L+"_s")
        else:
            a(f"s_cmp_eq_u32 s49, {NA}")
            a(f"s_cbranch_scc1 {L}_x")
            a.label(f"{L}_r")
            a("s_waitcnt lgkmcnt(0)"); a(M[1])
            a.label(f"{L}_b")
            a("s_barrier")
        a(R[0]); a(R[1]); a(R[2])
        a(M[2])
        a(R[3]); a(R[4]); a(R[5])
        a("s_add_u32 s49, s49, 1")
        if not early: a("s_cmp_lt_u32 s49, 10")
        a(M[3])
        if early: a(f"s_branch {L}")
        else: a(f"s_cbranch_scc1 {L}")
    def loop(swap, L):
        a("s_mov_b32 s48, 0")
        a("s_mov_b32 s49, 0")
        stamp(a,2)
        for x in rd(0): a(x)
        body(swap, L+"e", True)
        body(swap, L, False)
    def loop_x(L):
        a.label(f"{L}_x")
        a("s_waitcnt vmcnt(0)")
        nonce_issue(a, 248, T5)
        a(f"s_branch {L}_r")
    a(f"s_cmp_ge_u32 s{sNT}, 10")
    a("s_cbranch_scc1 L_c_v")
    loop(False, "L_c_qk")
    stamp(a,3)
    a("s_setprio 3")
    a("s_waitcnt lgkmcnt(0)")
    a("s_nop 11")
    PK=64
    for j in range(2):
        for p in range(2):
            jp=2*j+p
            sm=90+2*jp if jp<3 else 28
            P=[PK+8*jp, PK+8*jp+4]
            for i in range(2):
                b=16*(2*j+i)+8*p
                for q in range(4):
                    a(f"v_pk_mul_f32 {vr(b+2*q,2)}, {vr(b+2*q,2)}, s[62:63] op_sel_hi:[1,0]")
                for q in range(4):
                    a(f"v_cvt_pk_bf16_f32 v{P[i]+q}, v{b+2*q}, v{b+2*q+1}")
            a("s_nop 0")
            for i in range(2):
                a(f"v_permlane32_swap_b32 v{P[i]}, v{P[i]+2}")
                a(f"v_permlane32_swap_b32 v{P[i]+1}, v{P[i]+3}")
            a(f"s_mov_b64 exec, s[{sm}:{sm+1}]")
            a(f"v_swap_b32 v{P[0]+2}, v{P[1]}")
            a(f"v_swap_b32 v{P[0]+3}, v{P[1]+1}")
            a("s_mov_b64 exec, -1")
            for i in range(2):
                a(f"buffer_store_dwordx4 {vr(P[i],4)}, v{EA+2*jp+i}, s[{sWS}:{sWS+3}], 0 offen sc1")
    a("s_branch L_c_sig")
    loop_x("L_c_qk")
    loop_x("L_c_vl")
    a.label("L_c_v")
    loop(True, "L_c_vl")
    stamp(a,3)
    a("s_setprio 3")
    a("s_waitcnt lgkmcnt(0)")
    a("s_nop 11")
    n=0
    for j in range(2):
        for i in range(2):
            for s_ in range(2):
                b=16*(2*j+i)+8*s_
                p=PK+4*n; n+=1
                for q in range(4):
                    a(f"v_cvt_pk_bf16_f32 v{p+q}, v{b+2*q}, v{b+2*q+1}")
                a(f"buffer_store_dwordx4 {vr(p,4)}, v{EA+j}, s[{sWS}:{sWS+3}], 0 offen offset:{1280*i+640*s_} sc1")
    a.label("L_c_sig")
    def signal(tag):
        lds_add_rtn(a, cE, T0, 60)
        a("s_mov_b32 s61, 0")
        a("s_cmp_lg_u32 s60, 3")
        a(f"s_cbranch_scc1 L_c_post{tag}")
        flag_store(a, 57, T0)
        a("s_mov_b32 s61, 1")
        a.label(f"L_c_post{tag}")
        stamp(a,4)
    stamp(a,6)
    a("s_waitcnt vmcnt(8)")
    nonce_fast(a, 248, T5, "c")
    a("s_waitcnt vmcnt(0)")
    signal("n")

UT_SEG=int(os.environ.get("UTSEG","2"))
UA,UB,UD=228,229,192
def ut_setup(a):
    a(f"v_lshrrev_b32 v{UA}, 3, v{VL}")
    a(f"v_mul_u32_u24 v{UA}, 1280, v{UA}")
    a(f"v_and_b32 v{UB}, 7, v{VL}")
    a(f"v_lshl_add_u32 v{UA}, v{UB}, 4, v{UA}")
    a(f"v_bfe_u32 v{UB}, v{VL}, 2, 2")
    a(f"v_lshlrev_b32 v{UB}, 7, v{UB}")
    a(f"v_lshrrev_b32 v230, 4, v{VL}")
    a(f"v_lshl_add_u32 v{UB}, v230, 5, v{UB}")
    a(f"v_and_b32 v230, 3, v{VL}")
    a(f"v_lshl_add_u32 v{UB}, v230, 3, v{UB}")
    a(f"s_mul_i32 s94, s{sW}, 3072")
    a(f"s_add_u32 s94, s94, {TRS-4*3072}")
    a(f"v_add_u32 v{UB}, s94, v{UB}")
    a(f"v_lshlrev_b32 v230, 4, v{VL}")
    a("s_mul_i32 s95, s2, 10240")
    a(f"s_sub_u32 s90, s{sW}, 4")
    a(f"s_mov_b32 s91, s{sW}")
    a(f"s_add_u32 s92, s{sW}, 4")
    a("s_min_u32 s92, s92, 9")
def ut_dma(a):
    for n in range(3):
        a(f"s_add_u32 m0, s94, {1024*n}")
        a(f"s_lshl_b32 s30, s{90+n}, 7")
        a("s_add_u32 s30, s30, s95")
        a(f"buffer_load_dwordx4 v{UA}, s[{sC}:{sC+3}], s30 offen lds")
def ut_store(a):
    for n in range(3):
        for sec in range(2):
            a(f"ds_read_b64_tr_b16 {vr(UD+4*n+2*sec,2)}, v{UB} offset:{1024*n+512*sec}")
    a("s_waitcnt lgkmcnt(0)")
    for n in range(3):
        a(f"s_lshl_b32 s30, s{90+n}, 10")
        a("s_add_u32 s30, s30, s95")
        a(f"s_add_u32 s30, s30, {WS_UT}")
        a(f"buffer_store_dwordx4 {vr(UD+4*n,4)}, v230, s[{sWS}:{sWS+3}], s30 offen sc1")
def nonce_fast(a, v, vz, tag):
    a(f"v_readfirstlane_b32 s{sN0}, v{v}")
    a(f"v_readfirstlane_b32 s{sN1}, v{v+1}")
    a(f"s_cmp_lg_u32 s{sN1}, 0")
    a(f"s_cbranch_scc1 L_nf_{tag}")
    nonce_get(a, v, vz, False)
    a.label(f"L_nf_{tag}")

def gen_spare(a):
    T0,ZR=240,244
    a(f"v_mov_b32 v{ZR}, 0")
    a(f"v_lshlrev_b32 v{T0}, 2, v{VL}")
    a(f"v_min_u32 v{T0}, 124, v{T0}")
    a(f"v_add_u32 v{T0}, {CTL}, v{T0}")
    ut_setup(a)
    a("s_waitcnt lgkmcnt(0)")
    a(f"ds_write_b32 v{T0}, v{ZR}")
    srd(a, sWS, pWS, WS_SIZE)
    srd(a, sC, pU, 2048*1280)
    a(f"s_cmp_lt_u32 s{sW}, 4")
    a("s_cbranch_scc1 L_sp_d")
    ut_dma(a)
    a("s_waitcnt vmcnt(0)")
    ut_store(a)
    a.label("L_sp_d")
    nonce_get(a, 246, ZR, False)
    a("s_waitcnt lgkmcnt(0)")
    a("s_barrier")
    a("s_mov_b32 s61, 0")
    a(f"s_cmp_lg_u32 s{sW}, 0")
    a("s_cbranch_scc1 L_sp_e")
    a("s_lshl_b32 s53, s2, 3")
    a(f"s_add_u32 s53, s53, {WS_FU}")
    flag_store(a, 53, T0)
    a("s_mov_b32 s61, 1")
    a.label("L_sp_e")
    stamp(a,4)

LOG2E = math.log2(math.e)
def exp_bf16(a, dst, src, t0, t1, sLh, sLl, sLn2):
    a(f"v_mul_f32 v{t0}, s{sLh}, v{src}")
    a(f"v_fma_f32 v{t1}, v{src}, s{sLh}, -v{t0}")
    a(f"v_fma_f32 v{t1}, v{src}, s{sLl}, v{t1}")
    a(f"v_exp_f32 v{t0}, v{t0}")
    a(f"v_mul_f32 v{t1}, s{sLn2}, v{t1}")
    a(f"v_fma_f32 v{t0}, v{t0}, v{t1}, v{t0}")
    a(f"v_cvt_pk_bf16_f32 v{t0}, v{t0}, v{t0}")
    a(f"v_lshlrev_b32 v{dst}, 16, v{t0}")
def cmul(a, d, x, w, t):
    a(f"v_pk_mul_f32 {vr(t,2)}, {vr(x,2)}, {vr(w,2)} op_sel:[0,0] op_sel_hi:[0,1]")
    a(f"v_pk_fma_f32 {vr(d,2)}, {vr(x,2)}, {vr(w,2)}, {vr(t,2)} op_sel:[1,1,0] op_sel_hi:[1,0,1] neg_lo:[0,1,0]")
def cpow(a, d, al, be, mult, t0, t1):
    m = hex(f32bits(float(mult)))
    a(f"v_mul_f32 v{t0}, {m}, v{al}")
    a(f"v_mul_f32 v{t1}, {m}, v{be}")
    a(f"v_exp_f32 v{t0}, v{t0}")
    a(f"v_fract_f32 v{t1}, v{t1}")
    a(f"v_cos_f32 v{d}, v{t1}")
    a(f"v_sin_f32 v{d+1}, v{t1}")
    a("s_nop 0")
    a(f"v_mul_f32 v{d}, v{d}, v{t0}")
    a(f"v_mul_f32 v{d+1}, v{d+1}, v{t0}")

sCH=50; sRB=51; sTB=53; sUB=93
UR=176
PRM=144
def param_loads(a, T0, T1):
    a(f"v_lshlrev_b32 v{T0}, 2, v{VL}")
    a(f"s_lshl_b32 s30, s{sCH}, 8")
    a(f"v_add_u32 v{T0}, s30, v{T0}")
    a(f"s_lshl_b32 s30, s{sCH}, 1")
    a(f"v_mov_b32 v{T1}, s30")
    a("s_waitcnt lgkmcnt(0)")
    a(f"global_load_ushort v{PRM+4}, v{T1}, s[{pLDT}:{pLDT+1}]")
    for k,p in enumerate((pLAR,pAIM,pCR,pCI)):
        a(f"global_load_dword v{PRM+k}, v{T0}, s[{p}:{p+1}]")
    a(f"global_load_ushort v{PRM+5}, v{T1}, s[{pDSK}:{pDSK+1}]")

def gen_kgen(a, second, scalar=False, sbase=None, KEEP=152, first=True):
    P=PRM
    T0,T1,T2,T3=8,9,10,11
    TW=15; TR=20; DT=21; DSK=22; AL,BE=23,7
    W1,G=0,2
    TMP=[12,16,18,150]
    PKR=24; ACC=32; VAL=48; BF=112; AF=160
    sLh,sLl,sLn2,sI2P=24,25,26,27
    def cm(ops):
        if scalar:
            for k,(d,x,w) in enumerate(ops):
                a(f"v_mul_f32 v{TMP[k]}, v{x}, v{w}")
                a(f"v_mul_f32 v{TMP[k]+1}, v{x}, v{w+1}")
            for k,(d,x,w) in enumerate(ops):
                assert d!=w
                a(f"v_fma_f32 v{d}, -v{x+1}, v{w+1}, v{TMP[k]}")
                a(f"v_fma_f32 v{d+1}, v{x+1}, v{w}, v{TMP[k]+1}")
            return
        for k,(d,x,w) in enumerate(ops):
            a(f"v_pk_mul_f32 {vr(TMP[k],2)}, {vr(x,2)}, {vr(w,2)} op_sel:[0,0] op_sel_hi:[0,1]")
        for k,(d,x,w) in enumerate(ops):
            a(f"v_pk_fma_f32 {vr(d,2)}, {vr(x,2)}, {vr(w,2)}, {vr(TMP[k],2)} op_sel:[1,1,0] op_sel_hi:[1,0,1] neg_lo:[0,1,0]")
    Y=lambda b: VAL+2*b
    C0=4
    TWS=[0,1,2,3]; TRS_=[4,5]
    if sbase is not None:
        a(f"v_bfe_u32 v{T0}, v{VL}, 1, 2")
        a(f"v_lshlrev_b32 v{T0}, 4, v{T0}")
        a(f"v_lshl_add_u32 v{T0}, v{VL}, 6, v{T0}")
        a(f"v_add_u32 v{TWS[0]}, s{sbase}, v{T0}")
        for q in range(1,4): a(f"v_xor_b32 v{TWS[q]}, {16*q}, v{TWS[0]}")
        a(f"v_lshrrev_b32 v{T0}, 5, v{VL}")
        a(f"v_bfe_u32 v{T1}, v{VL}, 2, 2")
        a(f"v_lshl_add_u32 v{T0}, v{T0}, 3, v{T1}")
        a(f"v_bfe_u32 v{T1}, v{VL}, 4, 1")
        a(f"v_bfe_u32 v{T2}, v{VL}, 1, 1")
        a(f"v_lshl_add_u32 v{T1}, v{T1}, 1, v{T2}")
        a(f"v_bfe_u32 v{T2}, v{VL}, 3, 1")
        a(f"v_xor_b32 v{T1}, v{T1}, v{T2}")
        a(f"v_lshlrev_b32 v{T1}, 4, v{T1}")
        a(f"v_lshl_add_u32 v{T0}, v{T0}, 6, v{T1}")
        a(f"v_and_b32 v{T1}, 1, v{VL}")
        a(f"v_lshl_add_u32 v{T0}, v{T1}, 3, v{T0}")
        a(f"v_add_u32 v{TRS_[0]}, s{sbase}, v{T0}")
        a(f"v_xor_b32 v{TRS_[1]}, 32, v{TRS_[0]}")
    if not second:
        hi = struct.unpack("<f", struct.pack("<f", LOG2E))[0]; lo = LOG2E-hi
        a(f"s_mov_b32 s{sLh}, {hex(f32bits(hi))}")
        a(f"s_mov_b32 s{sLl}, {hex(f32bits(lo))}")
        a(f"s_mov_b32 s{sLn2}, {hex(f32bits(math.log(2.0)))}")
        a(f"s_mov_b32 s{sI2P}, {hex(f32bits(1/(2*math.pi)))}")
        a(f"v_lshlrev_b32 v{P+4}, 16, v{P+4}")
        exp_bf16(a, DT, P+4, T0, T1, sLh, sLl, sLn2)
        D2=22
        a(f"v_add_f32 v{D2}, v{DT}, v{DT}")
        for hf in range(2):
            X=[60,61,62,63]
            for k in range(4):
                if hf: a(f"v_and_b32 v{X[k]}, 0xffff0000, v{P+k}")
                else:  a(f"v_lshlrev_b32 v{X[k]}, 16, v{P+k}")
            exp_bf16(a, X[0], X[0], T2, T3, sLh, sLl, sLn2)
            d8,d1,dg,dc = (KEEP,KEEP+2,KEEP+4,KEEP+6) if hf else (212,214,216,218)
            a(f"v_mul_f32 v{AL}, v{X[0]}, v{DT}")
            a(f"v_mul_f32 v{BE}, v{X[1]}, v{DT}")
            a(f"v_mul_f32 v{AL}, s{sLh}, v{AL}")
            a(f"v_mul_f32 v{BE}, s{sI2P}, v{BE}")
            a(f"v_sub_f32 v{AL}, 0, v{AL}")
            a(f"v_mul_f32 v{dc}, v{X[2]}, v{D2}")
            a(f"v_mul_f32 v{dc+1}, v{X[3]}, v{D2}")
            c1=Asm(); cpow(c1, d8, AL, BE, 8, T0, T1)
            c2=Asm(); cpow(c2, d1, AL, BE, 1, T2, T3)
            c3=Asm(); cpow(c3, dg, AL, BE, 256, 12, 13)
            for xs in zip(c1.l,c2.l,c3.l):
                for x in xs:
                    if "s_nop" not in x: a(x)
        return
    else:
        W1,G,C0=KEEP+2,KEEP+4,KEEP+6
        a(f"v_mov_b32 v{Y(1)}, v{KEEP}")
        a(f"v_mov_b32 v{Y(1)+1}, v{KEEP+1}")
    a(f"v_mov_b32 v{Y(0)}, 1.0")
    a(f"v_mov_b32 v{Y(0)+1}, 0")
    npk=[0]
    def pack(regs, q, comp, neg):
        p=PKR+4*(npk[0]&1); npk[0]+=1
        n_='-' if neg else ''
        for e in range(4): a(f"v_cvt_pk_bf16_f32 v{p+e}, {n_}v{regs[2*e]+comp}, {n_}v{regs[2*e+1]+comp}")
        a(f"ds_write_b128 v{TWS[q]}, {vr(p,4)} offset:{4096*comp}")
    def fr(F, ks):
        for sec in range(2):
            a(f"ds_read_b64_tr_b16 {vr(F+2*sec,2)}, v{TRS_[sec]} offset:{(16*ks+4*sec)*64}")
    TC=lambda c: VAL+2*c
    R1=lambda k: VAL+18+2*k
    R2=lambda h,k: VAL+28+6*h+2*k
    R3=lambda aa,k: VAL+40+4*(aa-4)+2*k
    W2,W4,G2,G4=8,10,20,22
    oct_=lambda q: [Y(b) for b in range(8*q,8*q+8)]
    cm([(Y(2),Y(1),Y(1)),(W2,W1,W1),(G2,G,G)])
    cm([(Y(3),Y(2),Y(1)),(Y(4),Y(2),Y(2)),(W4,W2,W2),(G4,G2,G2)])
    cm([(Y(b),Y(b-4),Y(4)) for b in (5,6,7,8)])
    cm([(Y(b),Y(b-4),Y(4)) for b in (9,10,11,12)])
    pack(oct_(0),0,0,False)
    cm([(Y(b),Y(b-4),Y(4)) for b in (13,14,15,16)])
    pack(oct_(0),0,1,False)
    cm([(Y(b),Y(b-4),Y(4)) for b in (17,18,19,20)])
    pack(oct_(1),1,0,False)
    cm([(Y(b),Y(b-4),Y(4)) for b in (21,22,23,24)])
    pack(oct_(1),1,1,False)
    cm([(Y(b),Y(b-4),Y(4)) for b in (25,26,27,28)])
    pack(oct_(2),2,0,False)
    cm([(Y(b),Y(b-4),Y(4)) for b in (29,30,31)]+[(TC(1),C0,W1)])
    pack(oct_(2),2,1,False)
    a(f"v_mov_b64 {vr(TC(0),2)}, {vr(C0,2)}")
    cm([(TC(2),C0,W2),(TC(3),TC(1),W2),(TC(4),C0,W4),(TC(5),TC(1),W4)])
    pack(oct_(3),3,0,False)
    cm([(TC(6),TC(2),W4),(TC(7),TC(3),W4),(TC(8),TC(4),W4),(R1(0),C0,G)])
    pack(oct_(3),3,1,False)
    for ks in range(4): fr(BF+4*ks, ks)
    cm([(R1(1),TC(2),G),(R1(2),TC(4),G),(R1(3),TC(6),G),(R1(4),TC(8),G)])
    for ks in range(4,8): fr(BF+4*ks, ks)
    r1=[R1(0),R1(0),R1(1),R1(2),R1(2),R1(2),R1(3),R1(4)]
    XO=[[TC(0),TC(1),TC(2),TC(3)]+r1[:4], [TC(4),TC(5),TC(6),TC(7)]+r1[4:],
        [R2(0,0),R2(0,1),R2(0,2),R3(4,0),R2(1,0),R2(1,1),R2(1,2),R3(6,0)],
        [R3(4,1),R3(5,0),R3(5,1),R3(5,1),R3(6,1),R3(7,0),R3(7,1),R3(7,1)]]
    pack(XO[0],0,0,False)
    cm([(R2(0,0),C0,G2),(R2(0,1),TC(4),G2),(R2(0,2),TC(8),G2),(R2(1,0),R1(0),G2)])
    pack(XO[1],1,0,False)
    cm([(R2(1,1),R1(2),G2),(R2(1,2),R1(4),G2),(R3(4,0),C0,G4),(R3(6,0),R2(0,0),G4)])
    pack(XO[0],0,1,True)
    cm([(R3(4,1),TC(8),G4),(R3(5,0),R1(0),G4),(R3(5,1),R1(4),G4)])
    pack(XO[2],2,0,False)
    cm([(R3(6,1),R2(0,2),G4),(R3(7,0),R2(1,0),G4),(R3(7,1),R2(1,2),G4)])
    pack(XO[1],1,1,True)
    pack(XO[3],3,0,False)
    for ks in range(4): fr(AF+4*ks, ks)
    def mf(ks,F): a(f"v_mfma_f32_32x32x16_bf16 {vr(ACC,16)}, {vr(F,4)}, {vr(BF+4*ks,4)}, {vr(ACC,16) if (ks or not first) else '0'}")
    pack(XO[2],2,1,True)
    a("s_waitcnt lgkmcnt(7)"); mf(0,AF)
    pack(XO[3],3,1,True)
    a("s_waitcnt lgkmcnt(6)"); mf(1,AF+4)
    for ks in range(4,6): fr(VAL+4*(ks-4), ks)
    a("s_waitcnt lgkmcnt(8)"); mf(2,AF+8)
    for ks in range(6,8): fr(VAL+4*(ks-4), ks)
    a("s_waitcnt lgkmcnt(10)"); mf(3,AF+12)
    for ks in range(4,8):
        a(f"s_waitcnt lgkmcnt({14-2*ks})"); mf(ks,VAL+4*(ks-4))

CAA,CAB,CUW,CPD,CYW,CYR,CZ=204,205,206,207,209,210,16
def gen_expand(a):
    T0,T1,T2,T3=8,9,10,11
    HB=13; BB=14; Z=CZ; ACC=32
    a(f"v_lshrrev_b32 v{HB}, 5, v{VL}")
    a(f"v_and_b32 v{BB}, 31, v{VL}")
    for r in range(4): a(f"v_mov_b32 v{Z+r}, 0")
    a(f"v_cmp_eq_u32 vcc, 0, v{VL}")
    a(f"v_mul_u32_u24 v{T1}, {R1_OFF}, v{HB}")
    a(f"v_min_u32 v{T2}, 28, v{BB}")
    a(f"v_lshlrev_b32 v{T3}, 16, v{PRM+5}")
    a(f"v_cndmask_b32 v{T3}, 0, v{T3}, vcc")
    a(f"v_lshl_add_u32 v{T1}, v{T2}, 4, v{T1}")
    a(f"v_add_u32 v{T1}, s{sRB}, v{T1}")
    a(f"ds_write_b128 v{T1}, {vr(Z,4)} offset:{2*2040}")
    a(f"v_add_f32 v{ACC}, v{ACC}, v{T3}")
    EA1=T0; EA2=T1
    a(f"v_lshlrev_b32 v{T2}, 4, v{VL}")
    a(f"v_sub_u32 v{T2}, {4080-16*64}, v{T2}")
    a(f"v_add_u32 v{EA1}, s{sRB}, v{T2}")
    a(f"v_lshlrev_b32 v{T2}, 10, v{HB}")
    a(f"v_lshl_add_u32 v{T2}, v{BB}, 4, v{T2}")
    a(f"v_sub_u32 v{T2}, {4080-16*160}, v{T2}")
    a(f"v_add_u32 v{EA2}, s{sRB}, v{T2}")
    a(f"v_and_b32 v{T2}, 1, v{VL}")
    a(f"v_cmp_eq_u32 vcc, 1, v{T2}")
    def pk(d,lo_,hi_): a(f"v_cvt_pk_bf16_f32 v{d}, v{lo_}, v{hi_}")
    def mv(d,s_): a(f"v_mov_b32 v{d}, v{s_}")
    E=lambda e: ACC+e
    B0,B1,B2,B3=64,68,72,76
    pk(B0,E(7),E(6)); pk(B0+1,E(5),E(4)); pk(B0+2,E(3),E(2)); pk(B0+3,E(1),E(0))
    a(f"v_cndmask_b32 v96, v{E(11)}, v{E(12)}, vcc")
    a(f"v_cndmask_b32 v97, v{E(13)}, v{E(14)}, vcc")
    a(f"ds_write_b128 v{EA1}, {vr(B0,4)} offset:{R1_OFF+1024}")
    pk(B1,E(6),E(5)); pk(B1+1,E(4),E(3)); pk(B1+2,E(2),E(1))
    a(f"ds_write_b96 v{EA1}, {vr(B1,3)} offset:{1024}")
    a(f"ds_write_b16_d16_hi v{EA1}, v{B0+3} offset:{1024+12}")
    v0,v4,v8=E(8),E(9),E(10)
    pk(B2,v8,v8); pk(B2+1,v4,v4); pk(B2+2,v4,v0); pk(B2+3,v0,v0)
    a(f"ds_write_b128 v{EA1}, {vr(B2,4)} offset:{R1_OFF}")
    pk(B3,v8,v4); mv(B3+1,B2+1); mv(B3+2,B2+3); mv(B3+3,B2+3)
    a(f"ds_write_b128 v{EA1}, {vr(B3,4)}")
    a(f"ds_write_b16 v{EA1}, v{B0} offset:{1024-2}")
    for k in range(2):
        v0,v8=E(11+2*k),E(12+2*k)
        M=96+k
        C1,C0=80+8*k,84+8*k
        pk(C1,v8,v8); pk(C1+1,v8,M); pk(C1+2,v0,v0); mv(C1+3,C1+2)
        a(f"ds_write_b128 v{EA2}, {vr(C1,4)} offset:{R1_OFF+512*(1-k)}")
        mv(C0,C1); pk(C0+1,M,v0); mv(C0+2,C1+2); mv(C0+3,C1+2)
        a(f"ds_write_b128 v{EA2}, {vr(C0,4)} offset:{512*(1-k)}")
    for r in range(0,32,2): a(f"v_mov_b64 {vr(32+r,2)}, 0")

def gen_convaddr(a):
    T0,T1,T2,T3=8,9,10,11
    a(f"v_and_b32 v{T3}, 15, v{VL}")
    a(f"v_and_b32 v{T0}, 1, v{VL}")
    a(f"v_mul_u32_u24 v{CAA}, {R1_OFF}, v{T0}")
    a(f"v_bfe_u32 v{T1}, v{VL}, 1, 3")
    a(f"v_lshlrev_b32 v{T1}, 6, v{T1}")
    a(f"v_sub_u32 v{CAA}, v{CAA}, v{T1}")
    a(f"v_lshrrev_b32 v{T2}, 4, v{VL}")
    a(f"v_lshl_add_u32 v{CAA}, v{T2}, 4, v{CAA}")
    a(f"s_add_u32 s56, s{sRB}, {2*(2240-32*63)+64*5}")
    a(f"v_add_u32 v{CAA}, s56, v{CAA}")
    a(f"v_mul_u32_u24 v{T0}, {U1_OFF-4}, v{T0}")
    a(f"v_lshlrev_b32 v{T1}, 2, v{T3}")
    a(f"v_sub_u32 v{T0}, v{T1}, v{T0}")
    a(f"v_lshl_add_u32 v{T0}, v{T2}, 4, v{T0}")
    a(f"s_add_u32 s56, s{sUB}, {U1_OFF+64+2*(192-224)+64*5}")
    a(f"v_add_u32 v{CAB}, s56, v{T0}")
    a(f"v_lshl_add_u32 v{T1}, v{T2}, 7, v{T1}")
    a(f"v_add_u32 v{CYW}, s{sRB}, v{T1}")
    a(f"v_lshlrev_b32 v{T2}, 4, v{VL}")
    a(f"v_add_u32 v{CYR}, s{sRB}, v{T2}")

def u_setup(a):
    T0,T1,T2,T3=240,241,242,243
    a(f"v_and_b32 v{T0}, 3, v{VL}")
    a(f"v_lshrrev_b32 v{T1}, 2, v{VL}")
    a(f"v_mul_u32_u24 v{T2}, {UBS}, v{T0}")
    a(f"v_lshl_add_u32 v{T2}, v{T1}, 6, v{T2}")
    a(f"s_lshl_b32 s5, s41, 10")
    a(f"s_add_u32 s5, s5, {UB0+64-4}")
    a(f"v_add_u32 v{CUW}, s5, v{T2}")
    a(f"v_mul_u32_u24 v{T1}, 40960, v{T1}")
    a(f"v_lshl_add_u32 v231, v{T0}, 4, v{T1}")
    a(f"v_bfe_u32 v{T2}, v{VL}, 4, 1")
    a(f"v_mul_u32_u24 v{T2}, {U1_OFF}, v{T2}")
    a(f"v_and_b32 v{T3}, 15, v{VL}")
    a(f"v_lshl_add_u32 v{T2}, v{T3}, 2, v{T2}")
    a(f"s_mul_i32 s5, s41, {UBS}")
    a(f"s_add_u32 s5, s5, {UB0}")
    a(f"v_add_u32 v{CPD}, s5, v{T2}")
    a(f"s_mul_i32 s5, s{sXC}, 20")
    a(f"s_add_u32 s5, s5, s{sS}")
    a("s_lshl_b32 s5, s5, 6")
    a(f"s_mul_i32 s6, s41, {64*10240}")
    a("s_add_u32 s6, s6, s5")
    a(f"s_add_u32 s6, s6, {WS_UT}")
    a(f"s_lshl_b32 s7, s41, 9")
    a(f"s_add_u32 s7, s7, {WS_FU}")
    a(f"v_lshlrev_b32 v211, 3, v{VL}")
    a("v_add_u32 v211, s7, v211")
    v_spread(a, 211, T0)
def fu_load(a):
    a(f"buffer_load_dwordx2 v[232:233], v211, s[{sWS}:{sWS+3}], 0 offen {FLD}")
def fu_test(a):
    a(f"v_cmp_eq_u64 s[46:47], s[{sN0}:{sN1}], v[232:233]")
    a("s_cmp_eq_u64 s[46:47], -1")
def u_loads(a):
    for n in range(4):
        a(f"buffer_load_dwordx4 {vr(UR+4*n,4)}, v231, s[{sWS}:{sWS+3}], s6 offen sc1")
        a("s_add_u32 s6, s6, 10240")

def gen_uwrite(a):
    SH=160
    a("s_mov_b32 exec_hi, 0")
    a("s_mov_b32 exec_lo, 0x7fffffff")
    a(f"ds_write_b32 v{CPD}, v244")
    a("s_mov_b64 exec, -1")
    a("s_waitcnt vmcnt(0)")
    for n in range(4):
        a(f"ds_write_b128 v{CUW}, {vr(UR+4*n,4)} offset:{4+16*n}")
    for k in range(7):
        a(f"v_pk_mov_b32 {vr(SH+2*k,2)}, {vr(UR+2*k,2)}, {vr(UR+2*k+2,2)} op_sel:[1,0]")
    a(f"v_mov_b32 v{SH+14}, v{UR+15}")
    a(f"ds_write_b32 v{CUW}, v{UR} offset:{U1_OFF}")
    for n in range(3):
        a(f"ds_write_b128 v{CUW}, {vr(SH+4*n,4)} offset:{U1_OFF+4+16*n}")
    a(f"ds_write_b96 v{CUW}, {vr(SH+12,3)} offset:{U1_OFF+4+48}")
    lds_add(a, cV, 240)

YS=176
def gen_conv(a):
    AA=CAA; AB=CAB; Y=32
    FA=[64,128]; FB=[96,160]
    def rA(buf,rho): return [f"ds_read_b128 {vr(FA[buf]+4*k,4)}, v{AA} offset:{64*(56-8*k+2-rho)}" for k in range(8)]
    def rB(buf,rho): return [f"ds_read_b64 {vr(FB[buf]+4*k+2*hf,2)}, v{AB} offset:{64*(8*k+2-rho)+8*hf}" for k in range(8) for hf in range(2)]
    def reads(buf, rho):
        A_=rA(buf,rho); B_=rB(buf,rho); out=[]
        for k in range(8): out += [A_[k],B_[2*k],B_[2*k+1]]
        return out
    for x in rA(0,0): a(x)
    lds_wait(a, cV, 4, 6)
    stamp(a,5)
    a(f"s_setprio {os.environ.get('CPRIO','1')}")
    for x in rB(0,0): a(x)
    a("s_mov_b32 s3, 0")
    a.label("L_ssm_conv")
    for rho in range(2):
        buf=rho&1
        nxt = reads(buf^1, rho+1)
        a("s_waitcnt lgkmcnt(0)")
        mm=[(aa,c) for aa in range(8) for c in range(aa,8)]
        for n_,(aa,c) in enumerate(mm):
            a(f"v_mfma_f32_16x16x32_bf16 {vr(Y+4*c,4)}, {vr(FA[buf]+4*aa,4)}, {vr(FB[buf]+4*(c-aa),4)}, {vr(Y+4*c,4)}")
            if n_ < len(nxt): a(nxt[n_])
    a(f"v_subrev_u32 v{AA}, 128, v{AA}")
    a(f"v_subrev_u32 v{AB}, 128, v{AB}")
    a("s_add_u32 s3, s3, 1")
    a("s_cmp_lt_u32 s3, 4")
    a("s_cbranch_scc1 L_ssm_conv")
    stamp(a,6)
    a("s_setprio 3")
    lds_wait(a, cP, 1, 6)
    q_loads(a)
    for c in range(8):
        for z in range(2):
            a(f"v_cvt_pk_bf16_f32 v{64+2*c+z}, v{Y+4*c+2*z}, v{Y+4*c+2*z+1}")
        a(f"ds_write2_b32 v{CYW}, v{64+2*c}, v{65+2*c} offset0:{128*(c&1)} offset1:{128*(c&1)+16}")
        if c&1: a(f"v_add_u32 v{CYW}, 1024, v{CYW}")
    for k in range(4):
        a(f"ds_read_b128 {vr(YS+4*k,4)}, v{CYR} offset:{1024*k}")
    lds_add(a, cV, 8)

def loader_setup(a):
    T0,T1,T2,T3=240,241,242,243
    sAW=41
    a(f"s_and_b32 s{sAW}, s{sW}, 3")
    a(f"v_lshrrev_b32 v{T0}, 4, v{VL}")
    a(f"v_and_b32 v{T3}, 1, v{T0}")
    a(f"v_lshlrev_b32 v{T3}, 2, v{T3}")
    a(f"v_and_b32 v{T1}, 7, v{VL}")
    a(f"v_xor_b32 v{T3}, v{T3}, v{T1}")
    a(f"v_lshlrev_b32 v{T3}, 4, v{T3}")
    a(f"v_lshrrev_b32 v{T1}, 3, v{VL}")
    a(f"v_mul_u32_u24 v{T1}, 1280, v{T1}")
    a(f"v_add_u32 v{T3}, v{T3}, v{T1}")
    a(f"s_mul_i32 s30, s{sAW}, {8*1280}")
    a(f"s_mul_i32 s31, s{sMT}, {128*1280}")
    a("s_add_u32 s30, s30, s31")
    a(f"v_add_u32 v{DX}, s30, v{T3}")
    for k in range(1,4): a(f"v_add_u32 v{DX+k}, {k*40960}, v{DX}")
    a(f"v_lshlrev_b32 v{T1}, 2, v{T0}")
    a(f"v_and_b32 v{T2}, 15, v{VL}")
    a(f"v_xor_b32 v{T1}, v{T1}, v{T2}")
    a(f"v_lshlrev_b32 v{T1}, 4, v{T1}")
    a(f"v_mul_u32_u24 v{T0}, 3840, v{T0}")
    a(f"v_add_u32 v{T0}, v{T0}, v{T1}")
    a(f"s_mul_i32 s30, s{sAW}, {4*3840}")
    a(f"s_lshl_b32 s31, s{sNT}, 8")
    a("s_add_u32 s30, s30, s31")
    a(f"v_add_u32 v{DW}, s30, v{T0}")
    for k in range(1,4): a(f"v_add_u32 v{DW+k}, {k*16*3840}, v{DW}")
    a(f"s_lshr_b32 s30, s{sS}, 2")
    a(f"s_add_u32 s30, s30, s{sS}")
    a("s_and_b32 s30, s30, 3")
    a("s_lshl_b32 s30, s30, 2")
    a(f"s_lshr_b32 s{sST0}, {os.environ.get('ROT','0x8530')}, s30")
    a(f"s_and_b32 s{sST0}, s{sST0}, 15")
    a(f"s_lshl_b32 s{sLX}, s{sST0}, 7")
    a(f"s_mul_i32 s{sLW}, s{sST0}, {64*3840}")
    a(f"s_mul_i32 s{sLD}, s{sAW}, {XST}")
    a(f"s_lshl_b32 s{sLE}, s{sAW}, 4")
    a(f"s_sub_u32 s{sLE}, {WOFF}, s{sLE}")
    a("s_waitcnt lgkmcnt(0)")
    srd(a, sA, pX, 2048*1280)
    srd(a, sB_, pW, 640*3840)
def dma_groups():
    G=[]
    for k in range(4):
        m = f"s_mov_b32 m0, s{sLD}" if k==0 else f"s_add_u32 m0, s{sLD}, {4*XST*k}"
        G.append([m, "s_nop 0", f"buffer_load_dwordx4 v{DX+k}, s[{sA}:{sA+3}], s{sLX} offen lds"])
    for k in range(4):
        m = f"s_add_u32 m0, s{sLD}, s{sLE}" if k==0 else "s_add_u32 m0, m0, 4096"
        G.append([m, "s_nop 0", f"buffer_load_dwordx4 v{DW+k}, s[{sB_}:{sB_+3}], s{sLW} offen lds"])
    G[-1] += [f"s_add_u32 s{sLX}, s{sLX}, 128", f"s_add_u32 s{sLW}, s{sLW}, {64*3840}", f"s_cmp_eq_u32 s{sLX}, 1280",
              f"s_cselect_b32 s{sLX}, 0, s{sLX}", f"s_cselect_b32 s{sLW}, 0, s{sLW}", f"s_add_u32 s{sLD}, s{sLD}, {STG}",
              f"s_sub_u32 s30, s{sLD}, {3*STG}", f"s_cmp_ge_u32 s{sLD}, {3*STG}", f"s_cselect_b32 s{sLD}, s30, s{sLD}"]
    return G

def gen_aux(a):
    T0,T1,T2,T3=240,241,242,243
    sAW=41; ZR=244
    a("s_memrealtime s[60:61]")
    a(f"s_setprio {os.environ.get('EPRIO','2')}")
    a(f"s_and_b32 s{sAW}, s{sW}, 3")
    a(f"s_mul_i32 s{sCH}, s{sXC}, 20")
    a(f"s_add_u32 s{sCH}, s{sCH}, s{sS}")
    a(f"s_lshl_b32 s{sCH}, s{sCH}, 2")
    a(f"s_add_u32 s{sCH}, s{sCH}, s{sAW}")
    a(f"s_cmp_ge_u32 s{sS}, 20")
    a("s_cbranch_scc1 L_a_np")
    param_loads(a, T0, T1)
    a.label("L_a_np")
    a("s_waitcnt lgkmcnt(0)")
    a(f"v_mov_b32 v{ZR}, 0")
    a(f"v_lshlrev_b32 v{T2}, 2, v{VL}")
    a(f"v_min_u32 v{T2}, 124, v{T2}")
    a(f"v_add_u32 v{T2}, {CTL}, v{T2}")
    a(f"ds_write_b32 v{T2}, v{ZR}")
    a(f"s_or_b32 s30, s2, s{sAW}")
    a("s_cmp_lg_u32 s30, 0")
    a("s_cbranch_scc1 L_a_nonn")
    a("s_or_b32 s61, s61, 0x80000000")
    a(f"v_mov_b32 v{T0}, s60")
    a(f"v_mov_b32 v{T1}, s61")
    a(f"v_mov_b32 v{T2}, 0")
    a(f"v_mov_b32 v{T3}, 0")
    a("s_mov_b64 exec, 1")
    a(f"global_atomic_cmpswap_x2 v{ZR}, {vr(T0,4)}, s[{pDBG}:{pDBG+1}] sc1")
    a("s_mov_b64 exec, -1")
    a("s_nop 1")
    a.label("L_a_nonn")
    a("s_waitcnt lgkmcnt(0)")
    a("s_barrier")
    loader_setup(a)
    srd(a, sWS, pWS, WS_SIZE)
    srd(a, sC, pU, 2048*1280)
    ut_setup(a)
    u_setup(a)
    a(f"s_add_u32 s{sST0}, s{sST0}, {NA+2}")
    a(f"s_sub_u32 s30, s{sST0}, 10")
    a(f"s_cmp_ge_u32 s{sST0}, 10")
    a(f"s_cselect_b32 s{sST0}, s30, s{sST0}")
    a(f"s_lshl_b32 s{sLX}, s{sST0}, 7")
    a(f"s_mul_i32 s{sLW}, s{sST0}, {64*3840}")
    a(f"s_add_u32 s{sLD}, s{sLD}, {((NA+2)%3)*STG}")
    a(f"s_cmp_ge_u32 s{sS}, 20")
    a("s_cbranch_scc1 L_a_plain")
    a(f"s_mul_i32 s{sRB}, s{sAW}, {RBS}")
    a(f"s_add_u32 s{sRB}, s{sRB}, {RB0}")
    a(f"s_mul_i32 s{sUB}, s{sAW}, {UBS}")
    a(f"s_add_u32 s{sUB}, s{sUB}, {UB0}")
    gen_convaddr(a)
    kg=Asm(); gen_kgen(kg, False, sbase=sRB); K=[x.strip() for x in kg.l]
    p=[n for n,x in enumerate(K) if f"v{PRM+4}" in x][0]
    for x in K[:p]: a(x)
    a("s_waitcnt vmcnt(0)")
    stamp(a,1)
    for x in K[p:]: a(x)
    LATE=int(os.environ.get("LATE","0"))
    gen_kgen(a, True, KEEP=212, first=True)
    if not LATE: gen_kgen(a, True, KEEP=152, first=False)
    stamp(a,4)
    ut_dma(a); nonce_issue(a, 246, ZR)
    if not LATE: gen_expand(a)
    a("s_waitcnt vmcnt(0)")
    ut_store(a)
    a("s_branch L_a_join")
    a.label("L_a_plain")
    lds_wait(a, cG, 4*int(os.environ.get("UAT","2")), T0)
    ut_dma(a); nonce_issue(a, 246, ZR)
    a("s_waitcnt vmcnt(0)")
    ut_store(a)
    a.label("L_a_join")
    nonce_fast(a, 246, ZR, "a")
    a("s_setprio 0")
    stamp(a,14)
    a("s_barrier")
    for seg in range(NA+1,9):
        if seg==NA+2:
            a(f"s_cmp_lg_u32 s{sAW}, 0")
            a("s_cbranch_scc1 L_a_nf")
            a("s_lshl_b32 s30, s2, 3")
            a(f"s_add_u32 s30, s30, {WS_FU}")
            flag_store(a, 30, T0)
            a.label("L_a_nf")
        for g in dma_groups():
            for x in g: a(x)
        a("s_waitcnt vmcnt(8)")
        a("s_barrier")
    ap=Asm(); att_pre(ap); AP=[x.strip() for x in ap.l]
    h=[n for n,x in enumerate(AP) if x=="s_mov_b64 exec, -1"][0]+1
    for x in AP[:h]: a(x)
    a("s_waitcnt vmcnt(0)")
    a(f"s_cmp_ge_u32 s{sS}, 20")
    a("s_cbranch_scc1 L_a_nfu")
    fu_load(a)
    a.label("L_a_nfu")
    a("s_barrier")
    for x in AP[h:]: a(x)
    a("s_mov_b32 s61, 0")
    stamp(a,2)
    a("s_barrier")
    stamp(a,3)
    a("s_setprio 1")
    a(f"s_cmp_ge_u32 s{sS}, 20")
    a("s_cbranch_scc1 L_att2")
    a(f"s_mov_b32 s44, {SPIN}")
    a.label("L_a_fu")
    a("s_waitcnt vmcnt(0)")
    fu_test(a)
    a("s_cbranch_scc1 L_a_fud")
    a("s_sleep 8")
    fu_load(a)
    a("s_sub_u32 s44, s44, 1")
    a("s_cmp_lg_u32 s44, 0")
    a("s_cbranch_scc1 L_a_fu")
    a.label("L_a_fud")
    u_loads(a)
    stamp(a,15)
    if LATE:
        gen_kgen(a, True, KEEP=152, first=False)
        gen_expand(a)
    gen_uwrite(a)
    gen_conv(a)
    stamp(a,7)
    a("s_branch L_att3")

aS=[0,16]; aO=32; aQ=240; aQT=244
IDX=192; AK=193; AV=194; L16=195; PA=196; PB=197; VFA=198; VONES=199; VQF=200
VIT,VCN,VONE,VCA,VCT,VTH,VVL=224,225,226,227,228,229,230
sIT=48; sSTEP=49; sKV=52; sAUX=53; sVM=28; sPL=41; sLOW=63; sSTK=61; sYH=4
def att_pre(a):
    T0,T1,T2,T3=240,241,242,243
    a(f"s_cmp_ge_u32 s{sW}, 4")
    a(f"s_cselect_b32 s{sAUX}, 1, 0")
    a(f"v_lshlrev_b32 v{L16}, 4, v{VL}")
    a(f"s_mul_i32 s56, s{sH}, 81920")
    a(f"s_lshr_b32 s54, s{sT}, 1")
    a("s_mul_i32 s54, s54, 2560")
    a("s_add_u32 s56, s56, s54")
    a(f"s_and_b32 s55, s{sT}, 1")
    a("s_lshl_b32 s54, s55, 10")
    a("s_add_u32 s57, s56, s54")
    a("s_lshl_b32 s54, s55, 3")
    a("s_add_u32 s58, s56, s54")
    a(f"s_mul_i32 s{sKV}, s{sH}, {HKV}")
    a(f"s_add_u32 s{sKV}, s{sKV}, {WS_KV}")
    a(f"v_and_b32 v{T0}, 31, v{VL}")
    a(f"v_lshrrev_b32 v{T1}, 5, v{VL}")
    a(f"v_mul_u32_u24 v{T1}, 320, v{T1}")
    a(f"v_lshl_add_u32 v{AV}, v{T0}, 4, v{T1}")
    a(f"v_cmp_eq_u32 vcc, 20, v{T0}")
    a(f"v_mov_b32 v{T1}, 0x3f803f80")
    a(f"v_mov_b32 v{AK}, v{L16}")
    a(f"v_cndmask_b32 v{VONES}, 0, v{T1}, vcc")
    a(f"s_mov_b32 s{sVM}, 0x000fffff")
    a(f"s_mov_b32 s{sVM+1}, 0x000fffff")
    a(f"v_mov_b32 v{IDX}, 0xdddddddd")
    a(f"s_lshl_b32 s54, s{sW}, 2")
    a(f"s_add_u32 s55, s54, {cPROG}")
    a(f"v_mov_b32 v{PA}, s55")
    a(f"s_xor_b32 s{sPL}, s{sW}, 4")
    a(f"s_add_u32 s{sPL}, s{sPL}, 16")
    a(f"v_mov_b32 v{VIT}, 0")
    a(f"v_mov_b32 v{VCN}, {cT+4}")
    a(f"v_mov_b32 v{VONE}, 1")
    a(f"v_lshlrev_b32 v{VCA}, 2, v{T0}")
    a(f"v_add_u32 v{VCA}, {CTL}, v{VCA}")
    a(f"v_mov_b32 v{VVL}, 4")
    a(f"v_mov_b32 v{VTH}, v{T0}")
    a("s_mov_b32 exec_lo, 0xff00ff00")
    a("s_mov_b32 exec_hi, 0xff00ff00")
    a(f"v_mov_b32 v{VTH}, 99")
    a("s_mov_b32 exec_lo, 0x00ff0000")
    a("s_mov_b32 exec_hi, 0x00ff0000")
    a(f"v_mov_b32 v{VTH}, 4")
    a(f"v_mov_b32 v{VVL}, 1")
    a(f"s_cmp_lt_u32 s{sS}, 20")
    a("s_cselect_b32 s54, 2, 99")
    a("s_mov_b32 exec_lo, 0x1000")
    a("s_mov_b32 exec_hi, 0x1000")
    a(f"v_mov_b32 v{VTH}, s54")
    a(f"v_mov_b32 v{VVL}, 8")
    a("s_mov_b64 exec, -1")
    a(f"s_mov_b32 s{sLOW}, 1")
    a(f"s_add_u32 s92, s{sW}, 9")
    a(f"s_mul_i32 s90, s92, {PS}")
    a(f"s_add_u32 s91, s90, s{sKV}")
    a(f"v_mul_u32_u24 v{T1}, 52429, v{VL}")
    a(f"v_lshrrev_b32 v{T1}, 19, v{T1}")
    a(f"v_mul_u32_u24 v{T2}, 10, v{T1}")
    a(f"v_sub_u32 v{T3}, v{VL}, v{T2}")
    a(f"v_mul_u32_u24 v{T1}, 1280, v{T1}")
    a(f"v_lshl_add_u32 v{T3}, v{T3}, 4, v{T1}")
    a(f"s_lshr_b32 s54, s{sS}, 2")
    a("s_mul_i32 s54, s54, 160")
    a(f"v_add_u32 v{PB}, s54, v{T3}")
    srd(a, sA, pWO, 640*1280)
    srd(a, sB_, pOUT, 2048*2560)
    a(f"s_mul_i32 s62, s{sXC}, 12")
    a(f"s_add_u32 s62, s62, s{sS}")
    a("s_sub_u32 s62, s62, 21")
    a("s_lshl_b32 s62, s62, 2")
    a(f"s_add_u32 s62, s62, s{sW}")
    a(f"s_cmp_ge_u32 s{sS}, 20")
    a("s_cselect_b32 s62, s62, 999")
    a(f"s_cmp_eq_u32 s{sAUX}, 1")
    a("s_cselect_b32 s62, s62, 999")
    a(f"s_cmp_lt_u32 s{sS}, 20")
    a(f"s_cselect_b32 s{sYH}, s{sAUX}, 0")
    a(f"s_xor_b32 s{sYH}, s{sYH}, 1")
    a(f"s_lshl_b32 s{sYH}, s{sYH}, 4")
    a(f"s_mov_b32 s{sIT}, 0")
    a(f"s_mov_b32 s{sSTEP}, {4*PS}")
    a(f"s_mul_i32 s54, s{sH}, 20")
    a(f"v_bfe_u32 v{T0}, v{VL}, 4, 1")
    a(f"v_mul_u32_u24 v{T0}, 19, v{T0}")
    a(f"v_add_u32 v{T0}, s54, v{T0}")
    a(f"v_and_b32 v{T0}, 0xff80, v{T0}")
    a(f"v_lshrrev_b32 v{T1}, 5, v{VL}")
    a(f"v_mul_u32_u24 v{T1}, 640, v{T1}")
    a(f"v_and_b32 v{T2}, 15, v{VL}")
    a(f"v_lshl_add_u32 v{T1}, v{T2}, 3, v{T1}")
    a(f"v_add_u32 v{T1}, v{T1}, v{T0}")
    a(f"v_add_u32 v{VFA}, {WS_F1+640}, v{T1}")
    a(f"v_and_b32 v{T2}, 1, v{VL}")
    a(f"v_lshl_add_u32 v{T0}, v{T2}, 3, v{T0}")
    a(f"s_lshr_b32 s54, s{sS}, 2")
    a("s_lshl_b32 s54, s54, 4")
    a(f"s_add_u32 s54, s54, {WS_F1}")
    a(f"v_add_u32 v{VQF}, s54, v{T0}")
    v_spread(a, VFA, T1)
    v_spread(a, VQF, T1)

def q_loads(a):
    a(f"v_mov_b32 v{aQT}, 0")
    a(f"v_mov_b32 v{aQT+1}, 0")
    a(f"buffer_load_dwordx4 {vr(aQ,4)}, v{L16}, s[{sWS}:{sWS+3}], s57 offen sc1")
    a("s_mov_b32 exec_hi, 0")
    a(f"buffer_load_dwordx2 {vr(aQT,2)}, v{L16}, s[{sWS}:{sWS+3}], s58 offen offset:2048 sc1")
    a("s_mov_b64 exec, -1")

def gen_att(a):
    S=aS; O=aO; Q=aQ; QT=aQT
    KM=[56,60,232,236]; KT=[64,68]; V=[72,80,208,216]
    T0=92; T1=93; T2=94; T3=95; MX=96
    PL=100
    a.label("L_att")
    a("s_setprio 0")
    a.label("L_att1")
    att_pre(a)
    a.label("L_att2")
    def setup_av():
        a(f"v_and_b32 v{T0}, 31, v{VL}")
        a(f"v_lshrrev_b32 v{T1}, 5, v{VL}")
        a(f"v_mul_u32_u24 v{T1}, 320, v{T1}")
        a(f"v_lshl_add_u32 v{AV}, v{T0}, 4, v{T1}")
    def reginit():
        for b in V:
            for r in range(8): a(f"v_mov_b32 v{b+r}, v{VONES}")
        for r in range(16): a(f"v_mov_b32 v{O+r}, 0")
        for r in range(8,16): a(f"v_mov_b32 v{S[1]+r}, 0")
    def qloads(): q_loads(a)
    def load_pairs(tag):
        a.label(f"L_lp_{tag}")
        a(f"s_mul_i32 s56, s54, {PS}")
        a(f"s_add_u32 s59, s56, s{sKV}")
        a(f"s_sub_u32 s60, s56, {28*PS}")
        a("s_cmp_ge_u32 s54, 28")
        a("s_cselect_b32 m0, s60, s56")
        a("s_add_u32 s54, s54, 1")
        for k in range(4):
            a(f"buffer_load_dwordx4 v{L16}, s[{sWS}:{sWS+3}], s59 offen offset:{1024*k} sc1 lds")
        a("s_add_u32 m0, m0, 4096")
        a("s_add_u32 s59, s59, 4096")
        a(f"buffer_load_dwordx4 v{L16}, s[{sWS}:{sWS+3}], s59 offen sc1 lds")
        a("s_cmp_lt_u32 s54, s55")
        a(f"s_cbranch_scc1 L_lp_{tag}")
    a("s_cmp_eq_u32 s61, 0")
    a("s_cbranch_scc1 L_att_np")
    def kvload(): a(f"buffer_load_dwordx2 {vr(PL,2)}, v{VFA}, s[{sWS}:{sWS+3}], 0 offen {FLD}")
    def kvtest():
        a(f"v_cmp_eq_u64 s[46:47], s[{sN0}:{sN1}], {vr(PL,2)}")
        a("s_and_b32 s31, s46, s47")
        a("s_and_b32 s31, s31, s30")
        a("s_cmp_eq_u32 s31, s30")
    def kvspin(tag):
        a(f"s_mov_b32 s44, {SPIN}")
        a.label(f"L_kv_{tag}")
        kvload()
        a("s_waitcnt vmcnt(0)")
        kvtest()
        a(f"s_cbranch_scc1 L_kv_{tag}_d")
        a("s_sleep 4")
        a("s_sub_u32 s44, s44, 1")
        a("s_cmp_lg_u32 s44, 0")
        a(f"s_cbranch_scc1 L_kv_{tag}")
        a.label(f"L_kv_{tag}_d")
    reginit()
    FIRST=os.environ.get("FIRST","0x00070007")
    a(f"s_mov_b32 s30, {FIRST}")
    a(f"s_mov_b32 s44, {SPIN}")
    a.label("L_att_pl")
    a(f"buffer_load_dwordx2 {vr(PL+2,2)}, v{VQF}, s[{sWS}:{sWS+3}], 0 offen {FLD}")
    kvload()
    a("s_waitcnt vmcnt(0)")
    a(f"v_cmp_eq_u64 vcc, s[{sN0}:{sN1}], {vr(PL+2,2)}")
    kvtest()
    a("s_cselect_b64 vcc, vcc, 0")
    a("s_cmp_eq_u64 vcc, -1")
    a("s_cbranch_scc1 L_att_pd")
    a("s_sleep 4")
    a("s_sub_u32 s44, s44, 1")
    a("s_cmp_lg_u32 s44, 0")
    a("s_cbranch_scc1 L_att_pl")
    a.label("L_att_pd")
    a("s_cmp_eq_u64 s[46:47], -1")
    a(f"s_cselect_b32 s{sSTK}, 2, 1")
    lds_add(a, cP, T0, f"s{sSTK}")
    stamp(a,7)
    qloads()
    a("s_mov_b32 s30, 0x001f001f")
    a("s_and_b32 s31, s46, s47")
    a("s_and_b32 s31, s31, s30")
    a("s_cmp_eq_u32 s31, s30")
    a("s_cselect_b32 s55, 9, 5")
    a("s_mov_b32 s54, 0")
    load_pairs("first")
    a("s_cmp_eq_u32 s55, 9")
    a("s_cbranch_scc1 L_att_p9")
    a("s_waitcnt vmcnt(0)")
    lds_add(a, cT, T0, 4)
    kvspin("p")
    a("s_mov_b32 s55, 9")
    load_pairs("second")
    a("s_branch L_att_go")
    a.label("L_att_p9")
    a("s_waitcnt vmcnt(20)")
    lds_add(a, cT, T0, 4)
    a("s_branch L_att_go")
    a.label("L_att_np")
    lds_wait(a, cP, 1, T0)
    a(f"s_mov_b32 s{sSTK}, s45")
    stamp(a,7)
    qloads()
    a.label("L_att3")
    reginit()
    lds_wait(a, cT, 4, T0)
    a("s_waitcnt vmcnt(0)")
    a.label("L_att_go")
    def koff(t): return (t>>1)*PS + (t&1)*1024
    def toff(t): return (t>>1)*PS + 2048
    def voff(t,s_): return (t>>1)*PS + 2560 + (t&1)*1280 + 640*s_
    def readK(t, trel):
        a(f"ds_read_b128 {vr(KM[t&3],4)}, v{AK} offset:{koff(trel)}")
        if t&1==0:
            a(f"ds_read_b128 {vr(KT[(t>>1)&1],4)}, v{AK} offset:{toff(trel)}")
    def readV2(t, trel):
        a(f"s_mov_b64 exec, s[{sVM}:{sVM+1}]")
        for d in range(2):
            a(f"ds_read_b128 {vr(V[(t+d)&3],4)}, v{AV} offset:{voff(trel+d,0)}")
            a(f"ds_read_b128 {vr(V[(t+d)&3]+4,4)}, v{AV} offset:{voff(trel+d,1)}")
        a("s_mov_b64 exec, -1")
    def qk1(t): a(f"v_mfma_f32_32x32x16_bf16 {vr(S[t&1],16)}, {vr(KM[t&3],4)}, {vr(Q,4)}, 0")
    def qk2(t): a(f"v_mfma_f32_32x32x8_bf16 {vr(S[t&1],16)}, {vr(KT[(t>>1)&1]+2*(t&1),2)}, {vr(QT,2)}, {vr(S[t&1],16)}")
    def pv(t,s_): a(f"v_smfmac_f32_32x32x32_bf16 {vr(O,16)}, {vr(V[t&3]+4*s_,4)}, {vr(S[t&1]+8*s_,8)}, v{IDX}")
    def ex(t,r): a(f"v_exp_f32 v{S[t&1]+r}, v{S[t&1]+r}")
    readK(0,0); readK(1,1); readV2(0,0)
    a("s_waitcnt lgkmcnt(0)")
    stamp(a,8)
    qk1(0); qk2(0)
    a("s_nop 9")
    a(f"s_cmp_eq_u32 s{sAUX}, 0")
    a("s_cbranch_scc1 L_att_topc")
    a("s_setprio 1")
    a("s_branch L_att_top")
    def wait_prog(val):
        L=a.uid("wp")
        a(f"s_mov_b32 s44, {SPIN}")
        a.label(L)
        a(f"v_cmp_le_u32 vcc, {val}, v{VCT}")
        a("s_and_b32 s54, vcc_lo, 0x00ff0000")
        a("s_cmp_eq_u32 s54, 0x00ff0000")
        a(f"s_cbranch_scc1 {L}_d")
        a("s_sleep 1")
        a(f"ds_read_b32 v{VCT}, v{VCA}")
        a("s_waitcnt lgkmcnt(0)")
        a("s_sub_u32 s44, s44, 1")
        a("s_cmp_lg_u32 s44, 0")
        a(f"s_cbranch_scc1 {L}")
        a.label(f"{L}_d")
    a.label("L_act1")
    a(f"s_lshl_b32 s54, s{sCH}, 12")
    a(f"s_add_u32 s54, s54, {WS_YT}")
    for k in range(4):
        a(f"buffer_store_dwordx4 {vr(YS+4*k,4)}, v{L16}, s[{sWS}:{sWS+3}], s54 offen offset:{1024*k} sc1")
    a("s_branch L_att_top")
    a.label("L_act2")
    a("s_waitcnt vmcnt(0)")
    lds_add_rtn(a, cE, T0, 54)
    a("s_cmp_lg_u32 s54, 7")
    a("s_cbranch_scc1 L_att_top")
    a(f"s_lshr_b32 s54, s{sCH}, 2")
    a("s_lshl_b32 s54, s54, 3")
    a(f"s_add_u32 s54, s54, {WS_FY}")
    flag_store(a, 54, T0)
    a("s_branch L_att_top")
    YI=104; YO=136; WV=PB
    a.label("L_act3")
    a(f"s_lshl_b32 s54, s{sS}, 2")
    a(f"s_add_u32 s54, s54, s{sW}")
    a("s_sub_u32 s54, s54, 4")
    a("s_mul_i32 s54, s54, 6400")
    a(f"v_min_u32 v{T0}, 49, v{VL}")
    a(f"v_lshlrev_b32 v{T0}, 7, v{T0}")
    a(f"buffer_load_dword v{MX}, v{T0}, s[{sA}:{sA+3}], s54 offen")
    a("s_branch L_att_top")
    a.label("L_act4")
    a("s_cmp_ge_u32 s62, 320")
    a("s_cbranch_scc1 L_att_top")
    a(f"v_and_b32 v{T0}, 15, v{VL}")
    a(f"v_lshlrev_b32 v{T0}, 3, v{T0}")
    a("s_lshr_b32 s57, s62, 5")
    a("s_and_b32 s58, s62, 31")
    a("s_lshl_b32 s54, s57, 7")
    a(f"s_add_u32 s54, s54, {WS_FY}")
    a(f"v_add_u32 v{T0}, s54, v{T0}")
    v_spread(a, T0, T1)
    poll(a, [T0], PL)
    a(f"v_lshrrev_b32 v{T1}, 3, v{VL}")
    a(f"v_and_b32 v{T0}, 7, v{VL}")
    a(f"v_lshlrev_b32 v{T2}, 15, v{T0}")
    a(f"v_lshl_add_u32 v{T2}, v{T1}, 4, v{T2}")
    a("s_lshl_b32 s54, s57, 18")
    a("s_lshl_b32 s55, s58, 7")
    a("s_add_u32 s54, s54, s55")
    a(f"s_add_u32 s59, s54, {WS_YT}")
    for cc in range(8):
        a(f"buffer_load_dwordx4 {vr(YI+4*cc,4)}, v{T2}, s[{sWS}:{sWS+3}], s59 offen sc1")
        a("s_add_u32 s59, s59, 4096")
    a("s_branch L_att_top")
    a.label("L_act5")
    a("s_cmp_ge_u32 s62, 320")
    a("s_cbranch_scc1 L_att_top")
    a(f"v_lshrrev_b32 v{T1}, 3, v{VL}")
    a(f"v_and_b32 v{T0}, 7, v{VL}")
    a(f"v_mul_u32_u24 v{T3}, {8*2560}, v{T1}")
    a(f"v_lshl_add_u32 v{T3}, v{T0}, 4, v{T3}")
    a(f"s_mul_i32 s59, s58, {64*2560}")
    a("s_lshl_b32 s57, s57, 7")
    a("s_add_u32 s59, s59, s57")
    a("s_mov_b32 s54, 0x05040100")
    a("s_mov_b32 s55, 0x07060302")
    a("s_waitcnt vmcnt(0)")
    transpose8(a, YI, YO)
    for rr in range(8):
        a(f"buffer_store_dwordx4 {vr(YO+4*rr,4)}, v{T3}, s[{sB_}:{sB_+3}], s59 offen {os.environ.get('YFL','sc1')}")
        a("s_add_u32 s59, s59, 2560")
    a("s_branch L_att_top")
    def wo_code(tag):
        a.label(f"L_wo_{tag}")
        a(f"s_cmp_eq_u32 s{sIT}, 7")
        a(f"s_cbranch_scc1 L_wo2_{tag}")
        wait_prog(5)
        a(f"s_mul_i32 s55, s{sW}, 960")
        a(f"s_add_u32 m0, s55, {WOB}")
        a(f"s_mul_i32 s55, s{sW}, 7680")
        a("s_mov_b32 exec_hi, 0x0fffffff")
        for n in range(10):
            a(f"buffer_load_dwordx4 v{WV}, s[{sA}:{sA+3}], s55 offen lds")
            if n<9:
                a(f"s_add_u32 m0, m0, {8*960}")
                a(f"s_add_u32 s55, s55, {8*7680}")
        a("s_mov_b64 exec, -1")
        a(f"s_branch L_att_nold{tag}")
        a.label(f"L_wo2_{tag}")
        wait_prog(6)
        a("s_mov_b32 exec_hi, 0x0fffffff")
        for n in range(10,14):
            a(f"s_add_u32 s54, s{sW}, {8*n}")
            a("s_mul_i32 s54, s54, 6")
            a("s_min_u32 s54, s54, 634")
            a("s_mul_i32 s55, s54, 160")
            a(f"s_add_u32 m0, s55, {WOB}")
            a("s_mul_i32 s55, s54, 1280")
            a(f"buffer_load_dwordx4 v{WV}, s[{sA}:{sA+3}], s55 offen lds")
        a("s_mov_b64 exec, -1")
        a(f"s_branch L_att_nold{tag}")
    wo_code("a"); wo_code("c")
    def test():
        a(f"v_cmp_lt_u32 s[54:55], s{sIT}, v{VTH}")
        a(f"v_cmp_le_u32 vcc, v{VVL}, v{VCT}")
        a("s_or_b64 s[54:55], s[54:55], vcc")
        a("s_cmp_eq_u64 s[54:55], -1")
    a.label("L_att_nr")
    a("s_mov_b64 exec, 1")
    a(f"ds_write_b32 v{PA}, v{VIT}")
    a("s_mov_b64 exec, -1")
    a(f"s_mov_b32 s44, {SPIN}")
    a.label("L_att_nr1")
    a(f"ds_read_b32 v{VCT}, v{VCA}")
    a("s_waitcnt lgkmcnt(0)")
    test()
    a("s_cbranch_scc1 L_att_h4")
    a("s_sleep 1")
    a("s_sub_u32 s44, s44, 1")
    a("s_cmp_lg_u32 s44, 0")
    a("s_cbranch_scc1 L_att_nr1")
    a.label("L_att_h4")
    a(f"s_cmp_eq_u32 s{sAUX}, 0")
    a("s_cbranch_scc1 L_att_topc")
    a.label("L_att_h5")
    for k in (3,4,5):
        a(f"s_cmp_eq_u32 s{sIT}, {k}")
        a(f"s_cbranch_scc1 L_act{k}")
    a(f"s_add_u32 s54, s{sIT}, s{sYH}")
    for k in (1,2):
        a(f"s_cmp_eq_u32 s54, {k}")
        a(f"s_cbranch_scc1 L_act{k}")
    a.label("L_att_top")
    UN=8
    LOWN=int(os.environ.get("LOWN","28")); LOWE=int(os.environ.get("LOWE","48"))
    def body(aux):
        tag="a" if aux else "c"
        if not aux: a.raw(".p2align 6")
        a.label(f"L_att_top{tag}")
        for t in range(UN):
            def e(r):
                if not aux and 16*t+r==128-LOWN:
                    a(f"s_cmp_eq_u32 s{sLOW}, 2")
                    a("s_cbranch_scc1 L_att_nolow")
                    a("s_setprio 0")
                    a.label("L_att_nolow")
                if not aux and 16*t+r==128-LOWE:
                    a(f"s_cmp_lt_i32 s{sLOW}, 1")
                    a("s_cbranch_scc1 L_att_early")
                    a.label("L_att_earlyr")
                ex(t,r)
            if t==0 and not aux:
                a(f"s_cmp_lt_i32 s{sLOW}, 0")
                a("s_cbranch_scc1 L_att_nohi")
                a("s_setprio 2")
                a.label("L_att_nohi")
            e(0); e(1)
            pv(t-1,1)
            e(2); e(3)
            if t==6:
                a(f"v_add_u32 v{AK}, s{sSTEP}, v{AK}")
                a(f"v_add_u32 v{AV}, s{sSTEP}, v{AV}")
            e(4)
            if t&1: a("s_waitcnt lgkmcnt(0)")
            qk1(t+1)
            if t&1==0:
                readK(t+2, (t+2)%8); readK(t+3, (t+3)%8)
            if t==6:
                a(f"ds_read_b32 v{VCT}, v{VCA}")
                if PROF==2: a("s_memtime s[98:99]")
            if t==1:
                if not aux: a("s_waitcnt vmcnt(0)")
                a("s_mov_b64 exec, 1")
                a(f"ds_write_b32 v{PA}, v{VIT}")
                if not aux: a(f"ds_add_u32 v{VCN}, v{VONE}")
                a("s_mov_b64 exec, -1")
            if t==3 and aux:
                a(f"s_cmp_ge_u32 s{sIT}, 6")
                a("s_cbranch_scc1 L_wo_a")
                a.label("L_att_nolda")
            if t==3 and not aux:
                a(f"s_cmp_lt_u32 s{sSTK}, 2")
                a("s_cbranch_scc1 L_att_fl")
                a.label("L_att_flr")
            if t==5 and not aux:
                a(f"s_cmp_ge_u32 s{sIT}, 6")
                a("s_cbranch_scc1 L_wo_c")
                a(f"s_cmp_lt_u32 s{sSTK}, 2")
                a("s_cbranch_scc1 L_att_ft")
                a.label("L_att_ftr")
                a("s_mov_b32 m0, s90")
                a("s_add_u32 s59, s91, 4096")
                for k in range(4):
                    a(f"buffer_load_dwordx4 v{L16}, s[{sWS}:{sWS+3}], s91 offen offset:{1024*k} sc1 lds")
                a("s_add_u32 m0, m0, 4096")
                a("s_nop 0")
                a(f"buffer_load_dwordx4 v{L16}, s[{sWS}:{sWS+3}], s59 offen sc1 lds")
                a.label("L_att_noldc")
            if t==7 and not aux:
                a("s_add_u32 s92, s92, 4")
                a("s_min_u32 s92, s92, 31")
                a(f"s_mul_i32 s90, s92, {PS}")
                a(f"s_add_u32 s91, s90, s{sKV}")
                a(f"s_sub_u32 s60, s90, {28*PS}")
                a("s_cmp_ge_u32 s92, 28")
                a("s_cselect_b32 s90, s60, s90")
            e(5); e(6); e(7); e(8)
            qk2(t+1)
            e(9); e(10); e(11); e(12)
            pv(t,0)
            if t&1==0: readV2(t+2, (t+2)%8)
            e(13); e(14); e(15)
        if PROF==2:
            a(f"s_lshl_b32 s96, s{sIT}, 1")
            a("s_add_u32 s96, s96, 3")
            a("s_mov_b32 m0, s96")
            a(f"v_writelane_b32 v{PV}, s98, m0")
        a(f"s_add_u32 s{sIT}, s{sIT}, 1")
        a(f"s_cmp_eq_u32 s{sIT}, 8")
        a("s_cbranch_scc1 L_att_done")
        a(f"s_cmp_eq_u32 s{sIT}, 6")
        a(f"s_cselect_b32 s{sSTEP}, {(-24*PS)&0xffffffff}, s{sSTEP}")
        a(f"v_add_u32 v{VIT}, 1, v{VIT}")
        if not aux:
            a(f"v_add_u32 v{VCN}, 4, v{VCN}")
            a(f"v_readlane_b32 s56, v{VCT}, s{sPL}")
            a(f"s_sub_u32 s56, s56, s{sIT}")
            a("s_add_u32 s56, s56, 2")
            a(f"s_min_i32 s{sLOW}, s56, 2")
        test()
        a(f"s_cbranch_scc1 {'L_att_h5' if aux else 'L_att_topc'}")
        a("s_branch L_att_nr")
    body(True)
    a.label("L_att_fl")
    kvload()
    a("s_branch L_att_flr")
    a.label("L_att_ft")
    a("s_lshr_b32 s30, s92, 1")
    a("s_lshl_b32 s30, 0x00010001, s30")
    a("s_waitcnt vmcnt(0)")
    kvtest()
    a("s_cbranch_scc1 L_att_ft2")
    kvspin("l")
    a.label("L_att_ft2")
    a("s_cmp_eq_u64 s[46:47], -1")
    a(f"s_cselect_b32 s{sSTK}, 2, 1")
    a("s_branch L_att_ftr")
    a.label("L_att_early")
    a("s_setprio 0")
    a("s_branch L_att_earlyr")
    body(False)
    a.label("L_att_done")
    pv(UN-1,1)
    a("s_setprio 1")
    stamp(a,9)
    a("s_waitcnt vmcnt(0)")
    lds_add(a, cWO, T0)
    a(f"s_mul_i32 s6, s{sT}, 40960")
    a(f"s_add_u32 s6, s6, {WS_O}")
    a(f"s_lshl_b32 s7, s{sH}, 7")
    a("s_add_u32 s7, s7, s6")
    a(f"s_add_u32 s7, s7, {16*1024}")
    a(f"s_lshl_b32 s54, s{sH}, 9")
    a("s_add_u32 s6, s6, s54")
    OA,OB=98,99
    a(f"v_bfe_u32 v{OB}, v{VL}, 4, 1")
    a(f"v_mul_u32_u24 v{OB}, 20480, v{OB}")
    a(f"v_and_b32 v{T3}, 15, v{VL}")
    a(f"v_lshl_add_u32 v{OA}, v{T3}, 4, v{OB}")
    a(f"v_lshl_add_u32 v{OB}, v{T3}, 3, v{OB}")
    a(f"v_lshrrev_b32 v{T3}, 5, v{VL}")
    a(f"v_lshl_add_u32 v{OA}, v{T3}, 8, v{OA}")
    a(f"s_mov_b32 s46, {hex(f32bits(2.0**-64))}")
    a(f"s_mov_b32 s47, {hex(f32bits(2.0**64))}")
    a(f"v_mov_b32 v{T0}, v{O+8}")
    a(f"v_mov_b32 v{T1}, v{O+8}")
    a("s_nop 1")
    a(f"v_permlane32_swap_b32 v{T0}, v{T1}")
    a(f"v_cmp_le_f32 vcc, s46, v{T1}")
    a(f"v_cmp_ge_f32 s[54:55], s47, v{T1}")
    a("s_and_b64 s[54:55], s[54:55], vcc")
    a("s_cmp_eq_u64 s[54:55], -1")
    if X=="": a("s_cbranch_scc0 L_att_slow")
    a.label("L_att_fin")
    a(f"v_rcp_f32 v{T1}, v{T1}")
    a("s_waitcnt lgkmcnt(0)")
    for r in range(12): a(f"v_mul_f32 v{O+r}, v{O+r}, v{T1}")
    for q in range(6): a(f"v_cvt_pk_bf16_f32 v{q}, v{O+2*q}, v{O+2*q+1}")
    a(f"buffer_store_dwordx4 v[0:3], v{OA}, s[{sWS}:{sWS+3}], s6 offen sc1")
    a("s_mov_b32 exec_hi, 0")
    a(f"buffer_store_dwordx2 v[4:5], v{OB}, s[{sWS}:{sWS+3}], s7 offen sc1")
    a("s_mov_b64 exec, -1")
    def slow():
        a.label("L_att_slow")
        def scores(t):
            a(f"buffer_load_dwordx4 {vr(KM[0],4)}, v{L16}, s[{sWS}:{sWS+3}], s56 offen offset:{koff(t)} sc1")
            a(f"buffer_load_dwordx4 {vr(KT[0],4)}, v{L16}, s[{sWS}:{sWS+3}], s56 offen offset:{toff(t)} sc1")
            a("s_waitcnt vmcnt(0)")
            a(f"v_mfma_f32_32x32x16_bf16 {vr(S[0],16)}, {vr(KM[0],4)}, {vr(Q,4)}, 0")
            a(f"v_mfma_f32_32x32x8_bf16 {vr(S[0],16)}, {vr(KT[0]+2*t,2)}, {vr(QT,2)}, {vr(S[0],16)}")
            a("s_nop 15")
        a("s_waitcnt vmcnt(0) lgkmcnt(0)")
        a(f"v_mov_b32 v{MX}, 0xff800000")
        a(f"s_mov_b32 s{sIT}, 0")
        a(f"s_mov_b32 s56, s{sKV}")
        a.label("L_att_slow1")
        for t in range(2):
            scores(t)
            for r in range(0,16,2): a(f"v_max3_f32 v{MX}, v{S[0]+r}, v{S[0]+r+1}, v{MX}")
        a(f"s_add_u32 s56, s56, {PS}")
        a(f"s_add_u32 s{sIT}, s{sIT}, 1")
        a(f"s_cmp_lt_u32 s{sIT}, 32")
        a("s_cbranch_scc1 L_att_slow1")
        a(f"v_mov_b32 v{T0}, v{MX}")
        a("s_nop 1")
        a(f"v_permlane32_swap_b32 v{T0}, v{MX}")
        a("s_nop 1")
        a(f"v_max_f32 v{MX}, v{MX}, v{T0}")
        setup_av()
        for r in range(16): a(f"v_mov_b32 v{O+r}, 0")
        a(f"s_mov_b32 s{sIT}, 0")
        a(f"s_mov_b32 s56, s{sKV}")
        a.label("L_att_slow2")
        for t in range(2):
            a(f"s_add_u32 s57, s56, {2560+1280*t}")
            a(f"s_mov_b64 exec, s[{sVM}:{sVM+1}]")
            a(f"buffer_load_dwordx4 {vr(V[0],4)}, v{AV}, s[{sWS}:{sWS+3}], s57 offen sc1")
            a(f"buffer_load_dwordx4 {vr(V[0]+4,4)}, v{AV}, s[{sWS}:{sWS+3}], s57 offen offset:640 sc1")
            a("s_mov_b64 exec, -1")
            scores(t)
            for r in range(16): a(f"v_sub_f32 v{S[0]+r}, v{S[0]+r}, v{MX}")
            for r in range(16): a(f"v_exp_f32 v{S[0]+r}, v{S[0]+r}")
            a("s_nop 2")
            a(f"v_smfmac_f32_32x32x32_bf16 {vr(O,16)}, {vr(V[0],4)}, {vr(S[0],8)}, v{IDX}")
            a(f"v_smfmac_f32_32x32x32_bf16 {vr(O,16)}, {vr(V[0]+4,4)}, {vr(S[0]+8,8)}, v{IDX}")
            a("s_nop 15")
        a(f"s_add_u32 s56, s56, {PS}")
        a(f"s_add_u32 s{sIT}, s{sIT}, 1")
        a(f"s_cmp_lt_u32 s{sIT}, 32")
        a("s_cbranch_scc1 L_att_slow2")
        a(f"v_mov_b32 v{T0}, v{O+8}")
        a(f"v_mov_b32 v{T1}, v{O+8}")
        a("s_nop 1")
        a(f"v_permlane32_swap_b32 v{T0}, v{T1}")
        a("s_nop 1")
        a("s_branch L_att_fin")
    return slow

def gen_final(a):
    T0,T1,T2,T3=8,9,10,11
    sFT=49
    AM,AT,L8,RA,SW,FA=12,13,14,15,16,17
    LL=18; SR=[20,21,22]; GO=[23,24,25]; FL=26
    ACC=28; OF=48
    WB=[88+20*k for k in range(8)]
    WB=WB+[WB[0],WB[1]]
    a(f"s_lshr_b32 s{sFT}, s{sS}, 2")
    a(f"s_and_b32 s56, s{sW}, 3")
    a(f"s_lshr_b32 s57, s{sW}, 2")
    a(f"v_bfe_u32 v{T1}, v{VL}, 2, 2")
    a(f"v_and_b32 v{T2}, 3, v{VL}")
    a(f"v_lshrrev_b32 v{T3}, 5, v{VL}")
    a(f"v_mul_u32_u24 v{AM}, 20, v{T3}")
    a(f"v_bfe_u32 v{T3}, v{VL}, 4, 1")
    a(f"v_lshl_add_u32 v{AM}, v{T3}, 2, v{AM}")
    a(f"v_add_u32 v{AM}, v{AM}, v{T1}")
    a(f"v_mul_u32_u24 v{AM}, 160, v{AM}")
    a(f"v_lshl_add_u32 v{AM}, v{T2}, 3, v{AM}")
    a(f"v_lshrrev_b32 v{T3}, 4, v{VL}")
    a(f"v_mul_u32_u24 v{AT}, 20, v{T3}")
    a(f"v_add_u32 v{AT}, v{AT}, v{T1}")
    a(f"v_mul_u32_u24 v{AT}, 160, v{AT}")
    a(f"v_lshl_add_u32 v{AT}, v{T2}, 3, v{AT}")
    a(f"s_mul_i32 s55, s57, {320*160}")
    a(f"s_add_u32 s55, s55, {WOB}")
    a(f"v_add_u32 v{AM}, s55, v{AM}")
    a(f"v_add_u32 v{AT}, s55, v{AT}")
    a(f"s_lshl_b32 s58, s{sH}, 2")
    a("s_add_u32 s58, s58, s56")
    a(f"v_lshlrev_b32 v{LL}, 4, v{VL}")
    a(f"v_lshlrev_b32 v{L8}, 3, v{VL}")
    a(f"v_and_b32 v{FA}, 31, v{VL}")
    a(f"v_lshlrev_b32 v{FA}, 3, v{FA}")
    a(f"s_lshl_b32 s54, s{sXC}, 8")
    a(f"s_add_u32 s54, s54, {WS_F2}")
    a(f"v_add_u32 v{FA}, s54, v{FA}")
    v_spread(a, FA, T1)
    for r in range(0,20,2): a(f"v_mov_b64 {vr(ACC+r,2)}, 0")
    a("s_mul_i32 s59, s58, 20480")
    a(f"s_add_u32 s59, s59, {WS_O}")
    a("s_lshl_b32 s55, s57, 13")
    a("s_add_u32 s60, s59, s55")
    a("s_add_u32 s61, s60, 4096")
    a("s_lshl_b32 s55, s57, 11")
    a("s_add_u32 s62, s59, s55")
    a(f"s_add_u32 s62, s62, {16*1024}")
    STGO = 124928
    a("s_mul_i32 s55, s56, 5120")
    a(f"v_add_u32 v{RA}, s55, v{LL}")
    a(f"v_and_b32 v{T1}, 15, v{VL}")
    a(f"v_mul_u32_u24 v{T1}, 176, v{T1}")
    a(f"v_lshrrev_b32 v{T2}, 4, v{VL}")
    a(f"v_lshl_add_u32 v{T1}, v{T2}, 3, v{T1}")
    a("s_mul_i32 s55, s56, 2816")
    a(f"s_add_u32 s55, s55, {STGO}")
    a(f"v_add_u32 v{SW}, s55, v{T1}")
    for n in range(3):
        a(f"v_add_u32 v{T2}, {64*n}, v{VL}")
        a(f"v_mul_u32_u24 v{T3}, 52429, v{T2}")
        a(f"v_lshrrev_b32 v{T3}, 19, v{T3}")
        a(f"v_mul_u32_u24 v{SR[n]}, 10, v{T3}")
        a(f"v_sub_u32 v{T2}, v{T2}, v{SR[n]}")
        a(f"v_lshlrev_b32 v{T2}, 4, v{T2}")
        a(f"v_mul_u32_u24 v{SR[n]}, 176, v{T3}")
        a(f"v_add3_u32 v{SR[n]}, v{SR[n]}, v{T2}, s55")
        a(f"v_mul_u32_u24 v{GO[n]}, 2560, v{T3}")
        a(f"v_add_u32 v{GO[n]}, v{GO[n]}, v{T2}")
    a(f"s_mul_i32 s53, s{sFT}, 160")
    a(f"s_mul_i32 s54, s58, {16*2560}")
    a("s_add_u32 s53, s53, s54")
    a("s_add_u32 s53, s53, 1280")
    def wreads(k):
        for f in range(5):
            for sec in range(2):
                if k<8: ad=AM; off=(40*k+8*sec)*160+32*f
                else:   ad=AT; off=(160*(k-8)+80*sec+16)*160+32*f
                a(f"ds_read_b64_tr_b16 {vr(WB[k]+4*f+2*sec,2)}, v{ad} offset:{off}")
    def mfs(k):
        for f in range(5):
            a(f"v_mfma_f32_16x16x32_bf16 {vr(ACC+4*f,4)}, {vr(WB[k]+4*f,4)}, {vr(OF+4*k,4)}, {vr(ACC+4*f,4)}")
    a("s_waitcnt vmcnt(0)")
    lds_add_rtn(a, cF, T0, 63)
    stamp(a,10)
    a("s_cmp_lg_u32 s63, 7")
    a("s_cbranch_scc1 L_f_nf")
    a(f"s_lshl_b32 s54, s{sFT}, 8")
    a(f"s_lshl_b32 s55, s{sH}, 3")
    a("s_add_u32 s54, s54, s55")
    a(f"s_add_u32 s54, s54, {WS_F2}")
    flag_store(a, 54, T0)
    a(f"buffer_load_dwordx2 {vr(FL,2)}, v{FA}, s[{sWS}:{sWS+3}], 0 offen {FLD}")
    a("s_branch L_f_w")
    a.label("L_f_nf")
    lds_wait(a, cWO, 8, T0)
    a.label("L_f_w")
    for k in range(8): wreads(k)
    a("s_cmp_lg_u32 s63, 7")
    a("s_cbranch_scc1 L_f_np")
    a("s_waitcnt vmcnt(0)")
    a(f"v_cmp_eq_u64 s[46:47], s[{sN0}:{sN1}], {vr(FL,2)}")
    a("s_cmp_eq_u64 s[46:47], -1")
    a("s_cbranch_scc1 L_f_np")
    poll(a, [FA], FL, int(os.environ.get("PSL","3")))
    a.label("L_f_np")
    a("s_barrier")
    stamp(a,11)
    for k in range(10):
        so = 60 if k<4 else (61 if k<8 else 62)
        if k<8: a(f"buffer_load_dwordx4 {vr(OF+4*k,4)}, v{LL}, s[{sWS}:{sWS+3}], s{so} offen offset:{1024*(k&3)} sc1")
        else:
            for jq in range(2):
                a(f"buffer_load_dwordx2 {vr(OF+4*k+2*jq,2)}, v{L8}, s[{sWS}:{sWS+3}], s{so} offen offset:{1024*(k-8)+512*jq} sc1")
    for k in range(10):
        vm = 11-k if k<8 else (2 if k==8 else 0)
        a(f"s_waitcnt vmcnt({vm})" + (" lgkmcnt(0)" if k in (0,8) else ""))
        mfs(k)
        if k<2: wreads(8+k)
    stamp(a,12)
    a("s_cmp_eq_u32 s57, 0")
    a("s_nop 6")
    a("s_cbranch_scc1 L_f_lo")
    for f in range(5):
        a(f"ds_write_b128 v{RA}, {vr(ACC+4*f,4)} offset:{1024*f}")
    a("s_waitcnt lgkmcnt(0)")
    a("s_barrier")
    a("s_branch L_f_end")
    a.label("L_f_lo")
    a("s_barrier")
    P=48
    for f in range(5):
        a(f"ds_read_b128 {vr(P+4*f,4)}, v{RA} offset:{1024*f}")
    for f in range(5):
        a(f"s_waitcnt lgkmcnt(4)")
        for r in range(0,4,2): a(f"v_pk_add_f32 {vr(P+4*f+r,2)}, {vr(P+4*f+r,2)}, {vr(ACC+4*f+r,2)}")
        a(f"v_cvt_pk_bf16_f32 v{72+2*f}, v{P+4*f}, v{P+4*f+1}")
        a(f"v_cvt_pk_bf16_f32 v{73+2*f}, v{P+4*f+2}, v{P+4*f+3}")
        a(f"ds_write_b64 v{SW}, {vr(72+2*f,2)} offset:{32*f}")
    for n in range(3):
        a(f"ds_read_b128 {vr(88+4*n,4)}, v{SR[n]}")
    for n in range(3):
        a(f"s_waitcnt lgkmcnt({2-n})")
        if n==2: a("s_mov_b32 exec_hi, 0")
        a(f"buffer_store_dwordx4 {vr(88+4*n,4)}, v{GO[n]}, s[{sB_}:{sB_+3}], s53 offen {os.environ.get('OFL','')}")
    a.label("L_f_end")
    prof_end(a,13)

def build():
    a = Asm()
    K=NAME+"_kernel"
    a.raw(f".globl {K}"); a.raw(".p2align 8"); a.raw(f".type {K},@function"); a.label(K)
    if PROF: a("s_memrealtime s[100:101]")
    a("s_load_dwordx16 s[64:79], s[0:1], 0")
    a("s_load_dwordx8 s[80:87], s[0:1], 64")
    a("s_load_dwordx2 s[88:89], s[0:1], 96")
    a("s_cmp_ge_u32 s2, 256")
    a("s_cbranch_scc1 L_end")
    a(f"v_lshrrev_b32 v1, 6, v0")
    a(f"v_and_b32 v{VL}, 63, v0")
    a(f"v_readfirstlane_b32 s{sW}, v1")
    if DIAG!=-2:
        a("s_memrealtime s[100:101]")
        a("s_waitcnt lgkmcnt(0)")
    if PROF:
        a(f"v_mov_b32 v{PV}, 0")
    a("s_and_b32 s30, s2, 0x38")
    a("s_cbranch_scc1 L_nopf")
    a("s_getpc_b64 s[28:29]")
    a.label("L_pc")
    a("v_lshlrev_b32 v2, 7, v0")
    a("v_min_u32 v2, (L_codeend-L_pc-4), v2")
    a("global_load_dword v251, v2, s[28:29]")
    a.label("L_nopf")
    a(f"s_and_b32 s{sXC}, s2, 7")
    a(f"s_lshr_b32 s{sS}, s2, 3")
    a(f"s_and_b32 s30, s{sXC}, 3")
    a("s_lshl_b32 s30, s30, 2")
    a(f"s_and_b32 s31, s{sS}, 3")
    a(f"s_add_u32 s{sMT}, s30, s31")
    a(f"s_lshl_b32 s30, s{sXC}, 2")
    a(f"s_add_u32 s{sH}, s30, s31")
    a(f"s_lshr_b32 s30, s{sXC}, 2")
    a("s_lshl_b32 s30, s30, 3")
    a(f"s_lshr_b32 s31, s{sS}, 2")
    a(f"s_add_u32 s{sNT}, s30, s31")
    a("s_lshl_b32 s31, s31, 3")
    a(f"s_add_u32 s{sT}, s31, s{sW}")
    a(f"s_cmp_eq_u32 s{sNT}, 15")
    a("s_cbranch_scc1 L_spare")
    a(f"s_cmp_lt_u32 s{sW}, 4")
    a("s_cbranch_scc1 L_compute")
    gen_aux(a)
    a.label("L_spare")
    gen_spare(a)
    a(f"s_cmp_lt_u32 s{sW}, 4")
    a("s_cbranch_scc1 L_att")
    a("s_setprio 1")
    a("s_branch L_att1")
    a.label("L_compute")
    gen_compute(a)
    slow = gen_att(a)
    gen_final(a)
    a.label("L_end")
    a("s_endpgm")
    a.label("L_codeend")
    slow()
    hdr = open(f"cdna_kernels/{NAME}.s.ref").read().split("; Override launch")[0]
    out = hdr + f"; @launch grid=(256,1,1) block=(512,1,1) lds={LDS}\n"
    out += '.amdgcn_target "amdgcn-amd-amdhsa--gfx950"\n.text\n' + a.text()
    out += f""".section .rodata,"a"
.p2align 6
.amdhsa_kernel {K}
  .amdhsa_next_free_vgpr 256
  .amdhsa_next_free_sgpr 102
  .amdhsa_accum_offset 256
  .amdhsa_group_segment_fixed_size 0
  .amdhsa_kernarg_size 104
  .amdhsa_user_sgpr_count 2
  .amdhsa_user_sgpr_kernarg_segment_ptr 1
  .amdhsa_system_sgpr_workgroup_id_x 1
.end_amdhsa_kernel
"""
    return out
if __name__ == "__main__":
    dst = sys.argv[1] if len(sys.argv) > 1 else f"f34.s"
    open(dst, "w").write(build())
    print("wrote", dst)
```

```python
import sys, math, struct, os
NAME="concat_heads__ssm_conv_s4d__mha_block__prompt"
def f32bits(x): return struct.unpack("<I", struct.pack("<f", x))[0]
class Asm:
    def __init__(self): self.l = []; self.n=0
    def __call__(self, s):
        for x in s.split("\n"):
            x = x.strip()
            if x: self.l.append("    " + x)
    def label(self, n): self.l.append(n + ":")
    def raw(self, s): self.l.append(s)
    def uid(self, p): self.n+=1; return f"L_{p}_{self.n}"
    def text(self): return "\n".join(self.l) + "\n"
def vr(b, n): return f"v[{b}:{b+n-1}]" if n > 1 else f"v{b}"
def sr(b, n): return f"s[{b}:{b+n-1}]" if n > 1 else f"s{b}"

PROF = int(os.environ.get("PROF","0"))
X = os.environ.get("X","")
FLD = os.environ.get("FLD","sc1"); FST = os.environ.get("FST","sc1")
PS   = 5120
HKV  = 32*PS
WS_Q  = 0
WS_KV = 0x280000
WS_O  = 0x7B0000
WS_UT = 0xA40000
WS_YT = 0xCD0000
WS_FL = 0x1000000
FG = int(os.environ.get('FG','5')); FS = int(os.environ.get('FS','4352'))
WS_F1 = 0
WS_FU = WS_F1 + 0x1000
WS_FY = WS_F1 + 0x2000
WS_F2 = WS_F1 + 0x3000
WS_PROF = 0xF80000
WS_SIZE = 0x1800000
LDS = 163840
CTL = LDS-128
cT = CTL
cV,cE,cP,cF = [CTL+48+4*i for i in range(4)]
cWO = CTL+40
cG = CTL+44
NA = int(os.environ.get('NA','3'))
DX=220; DW=234; sLX=46; sLW=47; sLD=3; sLE=1; sST0=0
cM = CTL+112
cH = CTL+96
CTB = 71680
HOF = 5120
cPROG = CTL+64
WOB = 20480
TRS = 99072
TBL = 111360
XST = 1040; STG = 16*XST+16384; WOFF = 16*XST
UB0 = 92864; UBS = 8464; U1_OFF = 4224
RB0 = UB0+4*UBS; RBS = 9216; R1_OFF = 4640
pU,pLAR,pAIM,pCR,pCI,pLDT,pDSK,pX,pW,pWO,pOUT,pDBG,pWS = [64+2*i for i in range(13)]
sWS=16; sA=8; sB_=12; sC=20; sD_=24
sW,sMT,sNT,sWM,sWN,sXC,sS,sH,sT = 32,33,34,35,36,37,38,39,40
sN0,sN1=42,43
VL=250
PV=255
SPIN=1000000

def srd(a, s, ptr, size):
    a(f"s_mov_b32 s{s}, s{ptr}")
    a(f"s_and_b32 s{s+1}, s{ptr+1}, 0xffff")
    a(f"s_mov_b32 s{s+2}, {size}")
    a(f"s_mov_b32 s{s+3}, 0x00020000")

DIAG = int(os.environ.get("DIAG","-2"))
def stamp(a, idx):
    if DIAG==idx:
        a("s_memrealtime s[100:101]")
        a("s_waitcnt lgkmcnt(0)")
    if not PROF: return
    a("s_memrealtime s[96:97]")
    a("s_memtime s[98:99]")
    a("s_waitcnt lgkmcnt(0)")
    a(f"v_writelane_b32 v{PV}, s96, {2*idx}")
    a(f"v_writelane_b32 v{PV}, s98, {2*idx+1}")
def prof_end(a, idx):
    if DIAG!=-2:
        a("s_waitcnt vmcnt(0)")
        stamp(a, idx)
        if DIAG==-1: a(f"s_mov_b32 s100, s{sN0}")
        a("s_add_u32 s100, s100, 6000")
        a.label("L_diag")
        a("s_sleep 1")
        a("s_memrealtime s[96:97]")
        a("s_waitcnt lgkmcnt(0)")
        a("s_sub_u32 s96, s96, s100")
        a("s_cmp_lt_i32 s96, 0")
        a("s_cbranch_scc1 L_diag")
    if not PROF: return
    a("s_mov_b64 exec, -1")
    a("s_waitcnt vmcnt(0)")
    stamp(a, idx)
    a(f"v_writelane_b32 v{PV}, s100, 0")
    a(f"v_lshlrev_b32 v{PV-1}, 2, v{VL}")
    a(f"s_lshl_b32 s100, s2, 3")
    a(f"s_add_u32 s100, s100, s{sW}")
    a(f"s_lshl_b32 s100, s100, 7")
    a(f"s_add_u32 s100, s100, {WS_PROF}")
    a("s_mov_b32 exec_hi, 0")
    a(f"buffer_store_dword v{PV}, v{PV-1}, s[{sWS}:{sWS+3}], s100 offen")

def nonce_issue(a, v, vz):
    a(f"global_load_dwordx2 {vr(v,2)}, v{vz}, s[{pDBG}:{pDBG+1}] sc1")
def nonce_get(a, v, vz, first_issued):
    L=a.uid("ng"); D=a.uid("nd")
    a(f"s_mov_b32 s44, {SPIN}")
    if first_issued:
        a(f"s_branch {L}_w")
    a.label(L)
    nonce_issue(a, v, vz)
    a.label(L+"_w")
    a("s_waitcnt vmcnt(0)")
    a(f"v_readfirstlane_b32 s{sN0}, v{v}")
    a(f"v_readfirstlane_b32 s{sN1}, v{v+1}")
    a(f"s_cmp_lg_u32 s{sN1}, 0")
    a(f"s_cbranch_scc1 {D}")
    a("s_sleep 2")
    a("s_sub_u32 s44, s44, 1")
    a("s_cmp_lg_u32 s44, 0")
    a(f"s_cbranch_scc1 {L}")
    a.label(D)

def v_spread(a, v, t):
    a(f"v_lshrrev_b32 v{t}, {FG}, v{v}")
    a(f"v_mul_u32_u24 v{t}, {FS}, v{t}")
    a(f"v_and_b32 v{v}, {(1<<FG)-1}, v{v}")
    a(f"v_add_u32 v{v}, v{v}, v{t}")
    a(f"v_add_u32 v{v}, {WS_FL}, v{v}")
def flag_store(a, soff, t):
    a(f"s_lshr_b32 s31, s{soff}, {FG}")
    a(f"s_mul_i32 s31, s31, {FS}")
    a(f"s_and_b32 s{soff}, s{soff}, {(1<<FG)-1}")
    a(f"s_add_u32 s{soff}, s{soff}, s31")
    a(f"s_add_u32 s{soff}, s{soff}, {WS_FL}")
    a(f"v_mov_b32 v{t}, s{sN0}")
    a(f"v_mov_b32 v{t+1}, s{sN1}")
    a(f"v_mov_b32 v{t+2}, 0")
    a("s_mov_b64 exec, 1")
    a(f"buffer_store_dwordx2 {vr(t,2)}, v{t+2}, s[{sWS}:{sWS+3}], s{soff} offen {FST}")
    a("s_mov_b64 exec, -1")

def poll(a, addrs, t, sl=6):
    L=a.uid("pl"); D=a.uid("pd")
    a(f"s_mov_b32 s44, {SPIN}")
    a.label(L)
    for k,ad in enumerate(addrs):
        a(f"buffer_load_dwordx2 {vr(t+2*k,2)}, v{ad}, s[{sWS}:{sWS+3}], 0 offen {FLD}")
    a("s_waitcnt vmcnt(0)")
    for k in range(len(addrs)):
        if k==0: a(f"v_cmp_eq_u64 s[46:47], s[{sN0}:{sN1}], {vr(t,2)}")
        else:
            a(f"v_cmp_eq_u64 vcc, s[{sN0}:{sN1}], {vr(t+2*k,2)}")
            a("s_and_b64 s[46:47], s[46:47], vcc")
    a("s_cmp_eq_u64 s[46:47], -1")
    a(f"s_cbranch_scc1 {D}")
    a(f"s_sleep {sl}")
    a("s_sub_u32 s44, s44, 1")
    a("s_cmp_lg_u32 s44, 0")
    a(f"s_cbranch_scc1 {L}")
    a.label(D)

def lds_add(a, addr, t, val=1):
    a(f"v_mov_b32 v{t}, {addr}")
    a(f"v_mov_b32 v{t+1}, {val}")
    a("s_mov_b64 exec, 1")
    a(f"ds_add_u32 v{t}, v{t+1}")
    a("s_mov_b64 exec, -1")
def lds_add_rtn(a, addr, t, sdst):
    a(f"v_mov_b32 v{t}, {addr}")
    a(f"v_mov_b32 v{t+1}, 1")
    a("s_mov_b64 exec, 1")
    a(f"ds_add_rtn_u32 v{t+1}, v{t}, v{t+1}")
    a("s_waitcnt lgkmcnt(0)")
    a(f"v_readfirstlane_b32 s{sdst}, v{t+1}")
    a("s_mov_b64 exec, -1")
def lds_wait(a, addr, val, t, sl=2):
    L=a.uid("lw"); D=a.uid("ld")
    a(f"s_mov_b32 s44, {SPIN}")
    a(f"v_mov_b32 v{t}, {addr}")
    a.label(L)
    a(f"ds_read_b32 v{t+1}, v{t}")
    a("s_waitcnt lgkmcnt(0)")
    a(f"v_readfirstlane_b32 s45, v{t+1}")
    a(f"s_cmp_ge_u32 s45, {val}")
    a(f"s_cbranch_scc1 {D}")
    if sl: a(f"s_sleep {sl}")
    a("s_sub_u32 s44, s44, 1")
    a("s_cmp_lg_u32 s44, 0")
    a(f"s_cbranch_scc1 {L}")
    a.label(D)

def transpose8(a, IN, OB):
    for d in range(4):
        for hi in range(2):
            cc=2*d+hi
            for e in range(4):
                a(f"v_perm_b32 v{OB+4*cc+e}, v{IN+4*(2*e+1)+d}, v{IN+4*(2*e)+d}, s{54+hi}")

def w_tr_addr(a, dst, t0, t1, t2, j):
    a(f"v_bfe_u32 v{t0}, v{VL}, 2, 2")
    a(f"v_bfe_u32 v{t1}, v{VL}, 4, 1")
    a(f"v_lshlrev_b32 v{t1}, 1, v{t1}")
    a(f"v_bfe_u32 v{t2}, v{VL}, 1, 1")
    a(f"v_add_u32 v{t1}, v{t1}, v{t2}")
    a(f"s_lshl_b32 s30, s{sWN}, 3")
    a(f"s_add_u32 s30, s30, {4*j}")
    a(f"v_add_u32 v{t1}, s30, v{t1}")
    a(f"v_lshlrev_b32 v{t2}, 2, v{t0}")
    a(f"v_xor_b32 v{t1}, v{t1}, v{t2}")
    a(f"v_lshlrev_b32 v{t1}, 4, v{t1}")
    a(f"v_and_b32 v{t2}, 1, v{VL}")
    a(f"v_lshl_add_u32 v{t1}, v{t2}, 3, v{t1}")
    a(f"v_lshrrev_b32 v{t2}, 5, v{VL}")
    a(f"v_lshl_add_u32 v{t2}, v{t2}, 3, v{t0}")
    a(f"v_lshl_add_u32 v{t1}, v{t2}, 8, v{t1}")
    a(f"v_add_u32 v{dst}, {WOFF}, v{t1}")

def gen_compute(a):
    ACC=0; XF=64; WF=80; AX=200; AW=204; CX=206; CW=210; EA=212
    T0,T1,T2,T3,T4,T5=240,241,242,243,244,245
    loader_setup(a)
    for g in dma_groups():
        for x in g: a(x)
    a("s_barrier")
    a(f"s_and_b32 s{sWM}, s{sW}, 1")
    a(f"s_lshr_b32 s{sWN}, s{sW}, 1")
    a(f"v_mov_b32 v{T5}, 0")
    a(f"v_bfe_u32 v{T0}, v{VL}, 3, 2")
    a(f"v_mul_u32_u24 v{T0}, {XST}, v{T0}")
    a(f"v_and_b32 v{T1}, 7, v{VL}")
    a(f"v_lshl_add_u32 v{T0}, v{T1}, 7, v{T0}")
    a(f"v_lshrrev_b32 v{T2}, 5, v{VL}")
    a(f"v_lshl_add_u32 v{T0}, v{T2}, 4, v{T0}")
    a(f"s_mul_i32 s30, s{sWM}, {8*XST}")
    a(f"v_add_u32 v{T0}, s30, v{T0}")
    a(f"v_bfe_u32 v{T1}, v{VL}, 1, 1")
    a(f"v_lshl_add_u32 v{AX}, v{T1}, 6, v{T0}")
    a(f"v_xor_b32 v{T1}, 1, v{T1}")
    a(f"v_lshl_add_u32 v{AX+1}, v{T1}, 6, v{T0}")
    for j in range(2): w_tr_addr(a, AW+j, T0, T1, T2, j)
    for k in range(2): a(f"v_mov_b32 v{CX+k}, v{AX+k}")
    for k in range(2): a(f"v_mov_b32 v{CW+k}, v{AW+k}")
    a(f"s_lshl_b32 s56, s{sMT}, 1")
    a(f"s_add_u32 s56, s56, s{sWM}")
    a(f"s_lshl_b32 s57, s{sNT}, 7")
    a(f"s_lshl_b32 s58, s{sMT}, 3")
    a(f"s_add_u32 s57, s57, s58")
    a(f"s_add_u32 s57, s57, {WS_F1}")
    a(f"s_cmp_ge_u32 s{sNT}, 10")
    a("s_cbranch_scc1 L_c_vaddr")
    a(f"s_cmp_ge_u32 s{sNT}, 5")
    a(f"s_cselect_b32 s58, {HKV}, 0")
    a(f"s_cselect_b32 s59, {PS}, 0")
    a(f"s_cselect_b32 s60, {WS_KV}, 0")
    a(f"s_cselect_b32 s61, 5, 0")
    a(f"s_cselect_b32 s62, 1.0, {hex(f32bits(20**-0.5*math.log2(math.e)))}")
    a(f"s_cselect_b64 vcc, -1, 0")
    a(f"s_cselect_b32 s30, 0, 81920")
    a(f"s_cselect_b32 s31, 0, 2560")
    a("s_add_u32 s58, s58, s30")
    a("s_add_u32 s59, s59, s31")
    a(f"s_sub_u32 s61, s{sNT}, s61")
    a("s_lshl_b32 s61, s61, 4")
    a(f"s_lshl_b32 s30, s{sWN}, 3")
    a("s_add_u32 s61, s61, s30")
    a("s_mul_i32 s30, s56, s59")
    a("s_add_u32 s60, s60, s30")
    a(f"v_and_b32 v{T0}, 31, v{VL}")
    a(f"v_and_b32 v{T1}, 19, v{T0}")
    a(f"v_bfe_u32 v{T2}, v{T0}, 2, 1")
    a(f"v_lshl_add_u32 v{T1}, v{T2}, 3, v{T1}")
    a(f"v_bfe_u32 v{T2}, v{T0}, 3, 1")
    a(f"v_lshl_add_u32 v{T1}, v{T2}, 2, v{T1}")
    a(f"v_cndmask_b32 v{T0}, v{T0}, v{T1}, vcc")
    a(f"v_lshlrev_b32 v{T0}, 4, v{T0}")
    a(f"v_add_u32 v{T0}, s60, v{T0}")
    a(f"v_lshrrev_b32 v{T1}, 5, v{VL}")
    a(f"v_add_u32 v{T1}, s61, v{T1}")
    a("s_lshl_b32 s63, s58, 1")
    HS=247
    a(f"v_mov_b32 v{HS}, s58")
    for jp in range(4):
        e=EA+2*jp
        sm=90+2*jp if jp<3 else 28
        a(f"v_add_u32 v{T2}, {2*jp}, v{T1}")
        a(f"v_mul_u32_u24 v{T3}, 52429, v{T2}")
        a(f"v_lshrrev_b32 v{T3}, 18, v{T3}")
        a(f"v_mul_u32_u24 v{T4}, 5, v{T3}")
        a(f"v_sub_u32 v{T2}, v{T2}, v{T4}")
        a(f"v_mul_u32_u24 v{T3}, s63, v{T3}")
        a(f"v_add_u32 v{T3}, v{T3}, v{T0}")
        a(f"v_cmp_lt_u32 vcc, 2, v{T2}")
        a(f"v_cmp_eq_u32 s[{sm}:{sm+1}], 2, v{T2}")
        a(f"v_lshlrev_b32 v{T4}, 9, v{T2}")
        a(f"v_add_u32 v{T3}, v{T3}, v{T4}")
        a(f"v_subrev_u32 v{T4}, 1536, v{HS}")
        a(f"v_cndmask_b32 v{T4}, 0, v{T4}, vcc")
        a(f"v_add_u32 v{T3}, v{T3}, v{T4}")
        a(f"v_mov_b32 v{T4}, 1024")
        a(f"v_cndmask_b32 v{T2}, 0, v{T4}, s[{sm}:{sm+1}]")
        a(f"v_add_u32 v{e}, v{T3}, v{T2}")
        a(f"v_cndmask_b32 v{T4}, v{T4}, v{HS}, s[{sm}:{sm+1}]")
        a(f"v_add_u32 v{e+1}, v{e}, v{T4}")
    a("s_branch L_c_addrdone")
    a.label("L_c_vaddr")
    a(f"s_sub_u32 s61, s{sNT}, 10")
    a("s_lshl_b32 s61, s61, 7")
    a(f"s_lshl_b32 s30, s{sWN}, 6")
    a("s_add_u32 s61, s61, s30")
    a(f"s_mul_i32 s60, s56, {PS}")
    a(f"s_add_u32 s60, s60, {WS_KV+2560}")
    a(f"s_mov_b32 s58, {HKV}")
    a(f"v_lshrrev_b32 v{T0}, 5, v{VL}")
    a(f"v_mul_u32_u24 v{T0}, 320, v{T0}")
    a(f"v_add_u32 v{T0}, s60, v{T0}")
    a(f"v_and_b32 v{T1}, 31, v{VL}")
    a(f"v_add_u32 v{T1}, s61, v{T1}")
    for j in range(2):
        a(f"v_add_u32 v{T2}, {32*j}, v{T1}")
        a(f"v_mul_u32_u24 v{T3}, 52429, v{T2}")
        a(f"v_lshrrev_b32 v{T3}, 20, v{T3}")
        a(f"v_mul_u32_u24 v{T4}, 20, v{T3}")
        a(f"v_sub_u32 v{T2}, v{T2}, v{T4}")
        a(f"v_mul_u32_u24 v{T3}, s58, v{T3}")
        a(f"v_lshl_add_u32 v{T3}, v{T2}, 4, v{T3}")
        a(f"v_add_u32 v{EA+j}, v{T3}, v{T0}")
    for k in range(2,8): a(f"v_mov_b32 v{EA+k}, v{EA}")
    a.label("L_c_addrdone")
    for r in range(0,64,2): a(f"v_mov_b64 {vr(ACC+r,2)}, 0")
    srd(a, sWS, pWS, WS_SIZE)
    a(f"v_mov_b32 v228, {cG}")
    a("v_mov_b32 v229, 1")
    stamp(a,1)
    for g in dma_groups():
        for x in g: a(x)
    def sync4(L):
        a("s_mov_b64 exec, 1")
        a("ds_add_rtn_u32 v230, v228, v229")
        a(f"s_mov_b32 s44, {SPIN}")
        a("s_waitcnt lgkmcnt(0)")
        a("v_readfirstlane_b32 s45, v230")
        a("s_mov_b64 exec, -1")
        a("s_add_u32 s45, s45, 1")
        a("s_cmp_ge_u32 s45, s50")
        a(f"s_cbranch_scc1 {L}_d")
        a.label(L)
        a("ds_read_b32 v230, v228")
        a("s_sub_u32 s44, s44, 1")
        a("s_waitcnt lgkmcnt(0)")
        a("v_readfirstlane_b32 s45, v230")
        a("s_cmp_eq_u32 s44, 0")
        a("s_cselect_b32 s45, s50, s45")
        a("s_cmp_lt_u32 s45, s50")
        a(f"s_cbranch_scc1 {L}")
        a.label(f"{L}_d")
        a("s_add_u32 s50, s50, 4")
    a("s_mov_b32 s50, 4")
    a("s_waitcnt vmcnt(8)")
    sync4("L_c_s0")
    for g in dma_groups()[:int(os.environ.get("NT","2"))]:
        for x in g: a(x)
    def rd(ks):
        b=ks&1
        X=lambda i: f"ds_read_b128 {vr(XF+8*b+4*i,4)}, v{CX+(ks>>1)} offset:{4*XST*i+32*(ks&1)}"
        W=lambda j,sec: f"ds_read_b64_tr_b16 {vr(WF+8*b+4*j+2*sec,2)}, v{CW+j} offset:{4096*ks+1024*sec}"
        if "R" in globals()["X"]: return ["s_nop 0"]*6
        return [X(0),W(0,0),W(0,1),X(1),W(1,0),W(1,1)]
    def mf(ks, swap):
        b=ks&1; out=[]
        for j in range(2):
            for i in range(2):
                acc=vr(ACC+16*(2*j+i),16)
                X=vr(XF+8*b+4*i,4); W=vr(WF+8*b+4*j,4)
                if swap: out.append(f"v_mfma_f32_32x32x16_bf16 {acc}, {X}, {W}, {acc}")
                else:    out.append(f"v_mfma_f32_32x32x16_bf16 {acc}, {W}, {X}, {acc}")
        if "S" in globals()["X"]:
            out=[]
            for j in range(2):
                for i in range(2):
                    base=ACC+16*(2*j+i)+8*(ks&1)
                    X1=vr(XF+8*b+4*i,4); W1=vr(WF+8*b+4*j,4); X2=vr(XF+8*b+4*(1-i),4)
                    out.append(f"v_mfma_f32_16x16x32_bf16 {vr(base,4)}, {W1}, {X1}, {vr(base,4)}\nv_mfma_f32_16x16x32_bf16 {vr(base+4,4)}, {X1}, {W1}, {vr(base+4,4)}")
        if "M" in globals()["X"]: out=["s_nop 0"]*4
        return out
    def body(swap, L, early):
        a.label(L)
        if PROF and (early == (NA>3)):
            a("s_cmp_lg_u32 s49, 3")
            a(f"s_cbranch_scc1 {L}_pp")
            stamp(a,14)
            a.label(f"{L}_pp")
        NT=int(os.environ.get("NT","2"))
        G=dma_groups()[NT:] if early else []
        def D():
            if G:
                for x in G.pop(0): a(x)
        for ks in range(3):
            R=rd(ks+1); M=mf(ks,swap)
            a("s_waitcnt lgkmcnt(3)"); a(M[0]); a(R[0]); a(R[1]); D()
            a("s_waitcnt lgkmcnt(4)"); a(M[1]); a(R[2]); a(R[3]); D()
            a("s_waitcnt lgkmcnt(4)"); a(M[2]); a(R[4]); a(R[5])
            if ks==1:
                a(f"s_add_u32 s48, s48, {STG}")
                a(f"s_cmp_eq_u32 s48, {3*STG}")
                a("s_cselect_b32 s48, 0, s48")
            a(M[3]); D()
            if ks==2:
                for k in range(2): a(f"v_add_u32 v{CX+k}, s48, v{AX+k}")
        R=rd(0); M=mf(3,swap)
        a("s_waitcnt lgkmcnt(3)"); a(M[0])
        for k in range(2): a(f"v_add_u32 v{CW+k}, s48, v{AW+k}")
        if early:
            a("s_waitcnt lgkmcnt(0)"); a(M[1])
            a("s_waitcnt vmcnt(8)")
            a(f"s_cmp_eq_u32 s49, {NA-1}")
            a(f"s_cbranch_scc1 {L[:-1]}_b")
            sync4(L+"_s")
            for g in dma_groups()[:NT]:
                for x in g: a(x)
        else:
            a(f"s_cmp_eq_u32 s49, {NA}")
            a(f"s_cbranch_scc1 {L}_x")
            a.label(f"{L}_r")
            a("s_waitcnt lgkmcnt(0)"); a(M[1])
            a.label(f"{L}_b")
            a("s_barrier")
        a(R[0]); a(R[1]); a(R[2])
        a(M[2])
        a(R[3]); a(R[4]); a(R[5])
        a("s_add_u32 s49, s49, 1")
        if not early: a("s_cmp_lt_u32 s49, 10")
        a(M[3])
        if early: a(f"s_branch {L}")
        else: a(f"s_cbranch_scc1 {L}")
    def loop(swap, L):
        a("s_mov_b32 s48, 0")
        a("s_mov_b32 s49, 0")
        stamp(a,2)
        for x in rd(0): a(x)
        body(swap, L+"e", True)
        body(swap, L, False)
    def loop_x(L):
        a.label(f"{L}_x")
        a("s_waitcnt vmcnt(0)")
        nonce_issue(a, 248, T5)
        a(f"s_branch {L}_r")
    a(f"s_cmp_ge_u32 s{sNT}, 10")
    a("s_cbranch_scc1 L_c_v")
    loop(False, "L_c_qk")
    stamp(a,3)
    a("s_setprio 3")
    a("s_waitcnt lgkmcnt(0)")
    a("s_nop 11")
    PK=64
    a(f"s_cmp_ge_u32 s{sNT}, 5")
    a("s_cbranch_scc1 L_c_nosc")
    for r in range(0,64,2):
        a(f"v_pk_mul_f32 {vr(r,2)}, {vr(r,2)}, s[62:63] op_sel_hi:[1,0]")
    a.label("L_c_nosc")
    for j in range(2):
        for p in range(2):
            jp=2*j+p
            sm=90+2*jp if jp<3 else 28
            P=[PK+8*jp, PK+8*jp+4]
            for i in range(2):
                b=16*(2*j+i)+8*p
                for q in range(4):
                    a(f"v_cvt_pk_bf16_f32 v{P[i]+q}, v{b+2*q}, v{b+2*q+1}")
            a("s_nop 0")
            for i in range(2):
                a(f"v_permlane32_swap_b32 v{P[i]}, v{P[i]+2}")
                a(f"v_permlane32_swap_b32 v{P[i]+1}, v{P[i]+3}")
            a(f"s_mov_b64 exec, s[{sm}:{sm+1}]")
            a(f"v_swap_b32 v{P[0]+2}, v{P[1]}")
            a(f"v_swap_b32 v{P[0]+3}, v{P[1]+1}")
            a("s_mov_b64 exec, -1")
            for i in range(2):
                a(f"buffer_store_dwordx4 {vr(P[i],4)}, v{EA+2*jp+i}, s[{sWS}:{sWS+3}], 0 offen sc1")
    a("s_branch L_c_sig")
    loop_x("L_c_qk")
    loop_x("L_c_vl")
    a.label("L_c_v")
    loop(True, "L_c_vl")
    stamp(a,3)
    a("s_setprio 3")
    a("s_waitcnt lgkmcnt(0)")
    a("s_nop 11")
    n=0
    for j in range(2):
        for i in range(2):
            for s_ in range(2):
                b=16*(2*j+i)+8*s_
                p=PK+4*n; n+=1
                for q in range(4):
                    a(f"v_cvt_pk_bf16_f32 v{p+q}, v{b+2*q}, v{b+2*q+1}")
                a(f"buffer_store_dwordx4 {vr(p,4)}, v{EA+j}, s[{sWS}:{sWS+3}], 0 offen offset:{1280*i+640*s_} sc1")
    a.label("L_c_sig")
    def signal(tag):
        lds_add_rtn(a, cE, T0, 60)
        a("s_mov_b32 s61, 0")
        a("s_cmp_lg_u32 s60, 3")
        a(f"s_cbranch_scc1 L_c_post{tag}")
        flag_store(a, 57, T0)
        a("s_mov_b32 s61, 1")
        a.label(f"L_c_post{tag}")
        stamp(a,4)
    stamp(a,6)
    a("s_waitcnt vmcnt(8)")
    nonce_fast(a, 248, T5, "c")
    a("s_waitcnt vmcnt(0)")
    signal("n")

UT_SEG=int(os.environ.get("UTSEG","2"))
UA,UB,UD=238,239,176
def ut_setup(a):
    a(f"v_lshrrev_b32 v{UA}, 3, v{VL}")
    a(f"v_mul_u32_u24 v{UA}, 1280, v{UA}")
    a(f"v_and_b32 v{UB}, 7, v{VL}")
    a(f"v_lshl_add_u32 v{UA}, v{UB}, 4, v{UA}")
    a(f"v_bfe_u32 v{UB}, v{VL}, 2, 2")
    a(f"v_lshlrev_b32 v{UB}, 7, v{UB}")
    a(f"v_lshrrev_b32 v201, 4, v{VL}")
    a(f"v_lshl_add_u32 v{UB}, v201, 5, v{UB}")
    a(f"v_and_b32 v201, 3, v{VL}")
    a(f"v_lshl_add_u32 v{UB}, v201, 3, v{UB}")
    a(f"s_mul_i32 s94, s{sW}, 3072")
    a(f"s_add_u32 s94, s94, {TRS-4*3072}")
    a(f"v_add_u32 v{UB}, s94, v{UB}")
    a(f"v_lshlrev_b32 v201, 4, v{VL}")
    a("s_mul_i32 s95, s2, 10240")
    a(f"s_sub_u32 s90, s{sW}, 4")
    a(f"s_mov_b32 s91, s{sW}")
    a(f"s_add_u32 s92, s{sW}, 4")
    a("s_min_u32 s92, s92, 9")
def ut_dma(a):
    for n in range(3):
        a(f"s_add_u32 m0, s94, {1024*n}")
        a(f"s_lshl_b32 s30, s{90+n}, 7")
        a("s_add_u32 s30, s30, s95")
        a(f"buffer_load_dwordx4 v{UA}, s[{sC}:{sC+3}], s30 offen lds")
def ut_store(a):
    for n in range(3):
        for sec in range(2):
            a(f"ds_read_b64_tr_b16 {vr(UD+4*n+2*sec,2)}, v{UB} offset:{1024*n+512*sec}")
    a("s_waitcnt lgkmcnt(0)")
    for n in range(3):
        a(f"s_lshl_b32 s30, s{90+n}, 10")
        a("s_add_u32 s30, s30, s95")
        a(f"s_add_u32 s30, s30, {WS_UT}")
        a(f"buffer_store_dwordx4 {vr(UD+4*n,4)}, v201, s[{sWS}:{sWS+3}], s30 offen sc1")
def nonce_fast(a, v, vz, tag):
    a(f"v_readfirstlane_b32 s{sN0}, v{v}")
    a(f"v_readfirstlane_b32 s{sN1}, v{v+1}")
    a(f"s_cmp_lg_u32 s{sN1}, 0")
    a(f"s_cbranch_scc1 L_nf_{tag}")
    nonce_get(a, v, vz, False)
    a.label(f"L_nf_{tag}")

def gen_spare(a):
    T0,ZR=240,244
    a(f"v_mov_b32 v{ZR}, 0")
    a(f"v_lshlrev_b32 v{T0}, 2, v{VL}")
    a(f"v_min_u32 v{T0}, 124, v{T0}")
    a(f"v_add_u32 v{T0}, {CTL}, v{T0}")
    ut_setup(a)
    a("s_waitcnt lgkmcnt(0)")
    a(f"ds_write_b32 v{T0}, v{ZR}")
    srd(a, sWS, pWS, WS_SIZE)
    srd(a, sC, pU, 2048*1280)
    a(f"s_cmp_lt_u32 s{sW}, 4")
    a("s_cbranch_scc1 L_sp_d")
    ut_dma(a)
    a("s_waitcnt vmcnt(0)")
    ut_store(a)
    a.label("L_sp_d")
    nonce_get(a, 246, ZR, False)
    a("s_waitcnt lgkmcnt(0)")
    a("s_barrier")
    a("s_mov_b32 s61, 0")
    a(f"s_cmp_lg_u32 s{sW}, 0")
    a("s_cbranch_scc1 L_sp_e")
    a("s_lshl_b32 s53, s2, 3")
    a(f"s_add_u32 s53, s53, {WS_FU}")
    flag_store(a, 53, T0)
    a("s_mov_b32 s61, 1")
    a.label("L_sp_e")
    stamp(a,4)

LOG2E = math.log2(math.e)
def exp_bf16(a, dst, src, t0, t1, sLh, sLl, sLn2):
    a(f"v_mul_f32 v{t0}, s{sLh}, v{src}")
    a(f"v_fma_f32 v{t1}, v{src}, s{sLh}, -v{t0}")
    a(f"v_fma_f32 v{t1}, v{src}, s{sLl}, v{t1}")
    a(f"v_exp_f32 v{t0}, v{t0}")
    a(f"v_mul_f32 v{t1}, s{sLn2}, v{t1}")
    a(f"v_fma_f32 v{t0}, v{t0}, v{t1}, v{t0}")
    a(f"v_cvt_pk_bf16_f32 v{t0}, v{t0}, v{t0}")
    a(f"v_lshlrev_b32 v{dst}, 16, v{t0}")
def cmul(a, d, x, w, t):
    a(f"v_pk_mul_f32 {vr(t,2)}, {vr(x,2)}, {vr(w,2)} op_sel:[0,0] op_sel_hi:[0,1]")
    a(f"v_pk_fma_f32 {vr(d,2)}, {vr(x,2)}, {vr(w,2)}, {vr(t,2)} op_sel:[1,1,0] op_sel_hi:[1,0,1] neg_lo:[0,1,0]")
def cpow(a, d, al, be, mult, t0, t1):
    m = hex(f32bits(float(mult)))
    a(f"v_mul_f32 v{t0}, {m}, v{al}")
    a(f"v_mul_f32 v{t1}, {m}, v{be}")
    a(f"v_exp_f32 v{t0}, v{t0}")
    a(f"v_fract_f32 v{t1}, v{t1}")
    a(f"v_cos_f32 v{d}, v{t1}")
    a(f"v_sin_f32 v{d+1}, v{t1}")
    a("s_nop 0")
    a(f"v_mul_f32 v{d}, v{d}, v{t0}")
    a(f"v_mul_f32 v{d+1}, v{d+1}, v{t0}")

sCH=50; sRB=51; sTB=53; sUB=93
UR=176
PRM=144
def param_loads(a, T0, T1):
    a(f"v_lshlrev_b32 v{T0}, 2, v{VL}")
    a(f"s_lshl_b32 s30, s{sCH}, 8")
    a(f"v_add_u32 v{T0}, s30, v{T0}")
    a(f"s_lshl_b32 s30, s{sCH}, 1")
    a(f"v_mov_b32 v{T1}, s30")
    a("s_waitcnt lgkmcnt(0)")
    a(f"global_load_ushort v{PRM+4}, v{T1}, s[{pLDT}:{pLDT+1}]")
    for k,p in enumerate((pLAR,pAIM,pCR,pCI)):
        a(f"global_load_dword v{PRM+k}, v{T0}, s[{p}:{p+1}]")
    a(f"global_load_ushort v{PRM+5}, v{T1}, s[{pDSK}:{pDSK+1}]")

def gen_kgen(a, second, scalar=False, sbase=None, KEEP=152, first=True):
    P=PRM
    T0,T1,T2,T3=8,9,10,11
    TW=15; TR=20; DT=21; DSK=22; AL,BE=23,7
    W1,G=0,2
    TMP=[12,16,18,150]
    PKR=24; ACC=32; VAL=48; BF=112; AF=160
    sLh,sLl,sLn2,sI2P=24,25,26,27
    def cm(ops):
        if scalar:
            for k,(d,x,w) in enumerate(ops):
                a(f"v_mul_f32 v{TMP[k]}, v{x}, v{w}")
                a(f"v_mul_f32 v{TMP[k]+1}, v{x}, v{w+1}")
            for k,(d,x,w) in enumerate(ops):
                assert d!=w
                a(f"v_fma_f32 v{d}, -v{x+1}, v{w+1}, v{TMP[k]}")
                a(f"v_fma_f32 v{d+1}, v{x+1}, v{w}, v{TMP[k]+1}")
            return
        for k,(d,x,w) in enumerate(ops):
            a(f"v_pk_mul_f32 {vr(TMP[k],2)}, {vr(x,2)}, {vr(w,2)} op_sel:[0,0] op_sel_hi:[0,1]")
        for k,(d,x,w) in enumerate(ops):
            a(f"v_pk_fma_f32 {vr(d,2)}, {vr(x,2)}, {vr(w,2)}, {vr(TMP[k],2)} op_sel:[1,1,0] op_sel_hi:[1,0,1] neg_lo:[0,1,0]")
    Y=lambda b: VAL+2*b
    C0=4
    TWS=[0,1,2,3]; TRS_=[4,5]
    if sbase is not None:
        a(f"v_bfe_u32 v{T0}, v{VL}, 1, 2")
        a(f"v_lshlrev_b32 v{T0}, 4, v{T0}")
        a(f"v_lshl_add_u32 v{T0}, v{VL}, 6, v{T0}")
        a(f"v_add_u32 v{TWS[0]}, s{sbase}, v{T0}")
        for q in range(1,4): a(f"v_xor_b32 v{TWS[q]}, {16*q}, v{TWS[0]}")
        a(f"v_lshrrev_b32 v{T0}, 5, v{VL}")
        a(f"v_bfe_u32 v{T1}, v{VL}, 2, 2")
        a(f"v_lshl_add_u32 v{T0}, v{T0}, 3, v{T1}")
        a(f"v_bfe_u32 v{T1}, v{VL}, 4, 1")
        a(f"v_bfe_u32 v{T2}, v{VL}, 1, 1")
        a(f"v_lshl_add_u32 v{T1}, v{T1}, 1, v{T2}")
        a(f"v_bfe_u32 v{T2}, v{VL}, 3, 1")
        a(f"v_xor_b32 v{T1}, v{T1}, v{T2}")
        a(f"v_lshlrev_b32 v{T1}, 4, v{T1}")
        a(f"v_lshl_add_u32 v{T0}, v{T0}, 6, v{T1}")
        a(f"v_and_b32 v{T1}, 1, v{VL}")
        a(f"v_lshl_add_u32 v{T0}, v{T1}, 3, v{T0}")
        a(f"v_add_u32 v{TRS_[0]}, s{sbase}, v{T0}")
        a(f"v_xor_b32 v{TRS_[1]}, 32, v{TRS_[0]}")
    if not second:
        hi = struct.unpack("<f", struct.pack("<f", LOG2E))[0]; lo = LOG2E-hi
        a(f"s_mov_b32 s{sLh}, {hex(f32bits(hi))}")
        a(f"s_mov_b32 s{sLl}, {hex(f32bits(lo))}")
        a(f"s_mov_b32 s{sLn2}, {hex(f32bits(math.log(2.0)))}")
        a(f"s_mov_b32 s{sI2P}, {hex(f32bits(1/(2*math.pi)))}")
        a(f"v_lshlrev_b32 v{P+4}, 16, v{P+4}")
        exp_bf16(a, DT, P+4, T0, T1, sLh, sLl, sLn2)
        D2=22
        a(f"v_add_f32 v{D2}, v{DT}, v{DT}")
        for hf in range(2):
            X=[60,61,62,63]
            for k in range(4):
                if hf: a(f"v_and_b32 v{X[k]}, 0xffff0000, v{P+k}")
                else:  a(f"v_lshlrev_b32 v{X[k]}, 16, v{P+k}")
            exp_bf16(a, X[0], X[0], T2, T3, sLh, sLl, sLn2)
            d8,d1,dg,dc = (KEEP,KEEP+2,KEEP+4,KEEP+6) if hf else (212,214,216,218)
            a(f"v_mul_f32 v{AL}, v{X[0]}, v{DT}")
            a(f"v_mul_f32 v{BE}, v{X[1]}, v{DT}")
            a(f"v_mul_f32 v{AL}, s{sLh}, v{AL}")
            a(f"v_mul_f32 v{BE}, s{sI2P}, v{BE}")
            a(f"v_sub_f32 v{AL}, 0, v{AL}")
            a(f"v_mul_f32 v{dc}, v{X[2]}, v{D2}")
            a(f"v_mul_f32 v{dc+1}, v{X[3]}, v{D2}")
            c1=Asm(); cpow(c1, d8, AL, BE, 8, T0, T1)
            c2=Asm(); cpow(c2, d1, AL, BE, 1, T2, T3)
            c3=Asm(); cpow(c3, dg, AL, BE, 256, 12, 13)
            for xs in zip(c1.l,c2.l,c3.l):
                for x in xs:
                    if "s_nop" not in x: a(x)
        return
    else:
        W1,G,C0=KEEP+2,KEEP+4,KEEP+6
        a(f"v_mov_b32 v{Y(1)}, v{KEEP}")
        a(f"v_mov_b32 v{Y(1)+1}, v{KEEP+1}")
    a(f"v_mov_b32 v{Y(0)}, 1.0")
    a(f"v_mov_b32 v{Y(0)+1}, 0")
    npk=[0]
    def pack(regs, q, comp, neg):
        p=PKR+4*(npk[0]&1); npk[0]+=1
        n_='-' if neg else ''
        for e in range(4): a(f"v_cvt_pk_bf16_f32 v{p+e}, {n_}v{regs[2*e]+comp}, {n_}v{regs[2*e+1]+comp}")
        a(f"ds_write_b128 v{TWS[q]}, {vr(p,4)} offset:{4096*comp}")
    def fr(F, ks):
        for sec in range(2):
            a(f"ds_read_b64_tr_b16 {vr(F+2*sec,2)}, v{TRS_[sec]} offset:{(16*ks+4*sec)*64}")
    TC=lambda c: VAL+2*c
    R1=lambda k: VAL+18+2*k
    R2=lambda h,k: VAL+28+6*h+2*k
    R3=lambda aa,k: VAL+40+4*(aa-4)+2*k
    W2,W4,G2,G4=8,10,20,22
    oct_=lambda q: [Y(b) for b in range(8*q,8*q+8)]
    cm([(Y(2),Y(1),Y(1)),(W2,W1,W1),(G2,G,G)])
    cm([(Y(3),Y(2),Y(1)),(Y(4),Y(2),Y(2)),(W4,W2,W2),(G4,G2,G2)])
    cm([(Y(b),Y(b-4),Y(4)) for b in (5,6,7,8)])
    cm([(Y(b),Y(b-4),Y(4)) for b in (9,10,11,12)])
    pack(oct_(0),0,0,False)
    cm([(Y(b),Y(b-4),Y(4)) for b in (13,14,15,16)])
    pack(oct_(0),0,1,False)
    cm([(Y(b),Y(b-4),Y(4)) for b in (17,18,19,20)])
    pack(oct_(1),1,0,False)
    cm([(Y(b),Y(b-4),Y(4)) for b in (21,22,23,24)])
    pack(oct_(1),1,1,False)
    cm([(Y(b),Y(b-4),Y(4)) for b in (25,26,27,28)])
    pack(oct_(2),2,0,False)
    cm([(Y(b),Y(b-4),Y(4)) for b in (29,30,31)]+[(TC(1),C0,W1)])
    pack(oct_(2),2,1,False)
    a(f"v_mov_b64 {vr(TC(0),2)}, {vr(C0,2)}")
    cm([(TC(2),C0,W2),(TC(3),TC(1),W2),(TC(4),C0,W4),(TC(5),TC(1),W4)])
    pack(oct_(3),3,0,False)
    cm([(TC(6),TC(2),W4),(TC(7),TC(3),W4),(TC(8),TC(4),W4),(R1(0),C0,G)])
    pack(oct_(3),3,1,False)
    for ks in range(4): fr(BF+4*ks, ks)
    cm([(R1(1),TC(2),G),(R1(2),TC(4),G),(R1(3),TC(6),G),(R1(4),TC(8),G)])
    for ks in range(4,8): fr(BF+4*ks, ks)
    r1=[R1(0),R1(0),R1(1),R1(2),R1(2),R1(2),R1(3),R1(4)]
    XO=[[TC(0),TC(1),TC(2),TC(3)]+r1[:4], [TC(4),TC(5),TC(6),TC(7)]+r1[4:],
        [R2(0,0),R2(0,1),R2(0,2),R3(4,0),R2(1,0),R2(1,1),R2(1,2),R3(6,0)],
        [R3(4,1),R3(5,0),R3(5,1),R3(5,1),R3(6,1),R3(7,0),R3(7,1),R3(7,1)]]
    pack(XO[0],0,0,False)
    cm([(R2(0,0),C0,G2),(R2(0,1),TC(4),G2),(R2(0,2),TC(8),G2),(R2(1,0),R1(0),G2)])
    pack(XO[1],1,0,False)
    cm([(R2(1,1),R1(2),G2),(R2(1,2),R1(4),G2),(R3(4,0),C0,G4),(R3(6,0),R2(0,0),G4)])
    pack(XO[0],0,1,True)
    cm([(R3(4,1),TC(8),G4),(R3(5,0),R1(0),G4),(R3(5,1),R1(4),G4)])
    pack(XO[2],2,0,False)
    cm([(R3(6,1),R2(0,2),G4),(R3(7,0),R2(1,0),G4),(R3(7,1),R2(1,2),G4)])
    pack(XO[1],1,1,True)
    pack(XO[3],3,0,False)
    for ks in range(4): fr(AF+4*ks, ks)
    def mf(ks,F): a(f"v_mfma_f32_32x32x16_bf16 {vr(ACC,16)}, {vr(F,4)}, {vr(BF+4*ks,4)}, {vr(ACC,16) if (ks or not first) else '0'}")
    pack(XO[2],2,1,True)
    a("s_waitcnt lgkmcnt(7)"); mf(0,AF)
    pack(XO[3],3,1,True)
    a("s_waitcnt lgkmcnt(6)"); mf(1,AF+4)
    for ks in range(4,6): fr(VAL+4*(ks-4), ks)
    a("s_waitcnt lgkmcnt(8)"); mf(2,AF+8)
    for ks in range(6,8): fr(VAL+4*(ks-4), ks)
    a("s_waitcnt lgkmcnt(10)"); mf(3,AF+12)
    for ks in range(4,8):
        a(f"s_waitcnt lgkmcnt({14-2*ks})"); mf(ks,VAL+4*(ks-4))

CAA,CAB,CUW,CPD,CYW,CYR,CZ=204,205,206,207,209,210,16
def gen_expand(a):
    T0,T1,T2,T3=8,9,10,11
    HB=13; BB=14; Z=CZ; ACC=32
    a(f"v_lshrrev_b32 v{HB}, 5, v{VL}")
    a(f"v_and_b32 v{BB}, 31, v{VL}")
    for r in range(4): a(f"v_mov_b32 v{Z+r}, 0")
    a(f"v_cmp_eq_u32 vcc, 0, v{VL}")
    a(f"v_mul_u32_u24 v{T1}, {R1_OFF}, v{HB}")
    a(f"v_min_u32 v{T2}, 28, v{BB}")
    a(f"v_lshlrev_b32 v{T3}, 16, v{PRM+5}")
    a(f"v_cndmask_b32 v{T3}, 0, v{T3}, vcc")
    a(f"v_lshl_add_u32 v{T1}, v{T2}, 4, v{T1}")
    a(f"v_add_u32 v{T1}, s{sRB}, v{T1}")
    a(f"ds_write_b128 v{T1}, {vr(Z,4)} offset:{2*2040}")
    a(f"v_add_f32 v{ACC}, v{ACC}, v{T3}")
    EA1=T0; EA2=T1
    a(f"v_lshlrev_b32 v{T2}, 4, v{VL}")
    a(f"v_sub_u32 v{T2}, {4080-16*64}, v{T2}")
    a(f"v_add_u32 v{EA1}, s{sRB}, v{T2}")
    a(f"v_lshlrev_b32 v{T2}, 10, v{HB}")
    a(f"v_lshl_add_u32 v{T2}, v{BB}, 4, v{T2}")
    a(f"v_sub_u32 v{T2}, {4080-16*160}, v{T2}")
    a(f"v_add_u32 v{EA2}, s{sRB}, v{T2}")
    a(f"v_and_b32 v{T2}, 1, v{VL}")
    a(f"v_cmp_eq_u32 vcc, 1, v{T2}")
    def pk(d,lo_,hi_): a(f"v_cvt_pk_bf16_f32 v{d}, v{lo_}, v{hi_}")
    def mv(d,s_): a(f"v_mov_b32 v{d}, v{s_}")
    E=lambda e: ACC+e
    B0,B1,B2,B3=64,68,72,76
    pk(B0,E(7),E(6)); pk(B0+1,E(5),E(4)); pk(B0+2,E(3),E(2)); pk(B0+3,E(1),E(0))
    a(f"v_cndmask_b32 v96, v{E(11)}, v{E(12)}, vcc")
    a(f"v_cndmask_b32 v97, v{E(13)}, v{E(14)}, vcc")
    a(f"ds_write_b128 v{EA1}, {vr(B0,4)} offset:{R1_OFF+1024}")
    pk(B1,E(6),E(5)); pk(B1+1,E(4),E(3)); pk(B1+2,E(2),E(1))
    a(f"ds_write_b96 v{EA1}, {vr(B1,3)} offset:{1024}")
    a(f"ds_write_b16_d16_hi v{EA1}, v{B0+3} offset:{1024+12}")
    v0,v4,v8=E(8),E(9),E(10)
    pk(B2,v8,v8); pk(B2+1,v4,v4); pk(B2+2,v4,v0); pk(B2+3,v0,v0)
    a(f"ds_write_b128 v{EA1}, {vr(B2,4)} offset:{R1_OFF}")
    pk(B3,v8,v4); mv(B3+1,B2+1); mv(B3+2,B2+3); mv(B3+3,B2+3)
    a(f"ds_write_b128 v{EA1}, {vr(B3,4)}")
    a(f"ds_write_b16 v{EA1}, v{B0} offset:{1024-2}")
    for k in range(2):
        v0,v8=E(11+2*k),E(12+2*k)
        M=96+k
        C1,C0=80+8*k,84+8*k
        pk(C1,v8,v8); pk(C1+1,v8,M); pk(C1+2,v0,v0); mv(C1+3,C1+2)
        a(f"ds_write_b128 v{EA2}, {vr(C1,4)} offset:{R1_OFF+512*(1-k)}")
        mv(C0,C1); pk(C0+1,M,v0); mv(C0+2,C1+2); mv(C0+3,C1+2)
        a(f"ds_write_b128 v{EA2}, {vr(C0,4)} offset:{512*(1-k)}")
    for r in range(0,32,2): a(f"v_mov_b64 {vr(32+r,2)}, 0")

def gen_convaddr(a, tb=8):
    T0,T1,T2,T3=tb,tb+1,tb+2,tb+3
    a(f"v_and_b32 v{T3}, 15, v{VL}")
    a(f"v_and_b32 v{T0}, 1, v{VL}")
    a(f"v_mul_u32_u24 v{CAA}, {R1_OFF}, v{T0}")
    a(f"v_bfe_u32 v{T1}, v{VL}, 1, 3")
    a(f"v_lshlrev_b32 v{T1}, 6, v{T1}")
    a(f"v_sub_u32 v{CAA}, v{CAA}, v{T1}")
    a(f"v_lshrrev_b32 v{T2}, 4, v{VL}")
    a(f"v_lshl_add_u32 v{CAA}, v{T2}, 4, v{CAA}")
    a(f"s_add_u32 s56, s{sRB}, {2*(2240-32*63)+64*5}")
    a(f"v_add_u32 v{CAA}, s56, v{CAA}")
    a(f"v_mul_u32_u24 v{T0}, {U1_OFF-4}, v{T0}")
    a(f"v_lshlrev_b32 v{T1}, 2, v{T3}")
    a(f"v_sub_u32 v{T0}, v{T1}, v{T0}")
    a(f"v_lshl_add_u32 v{T0}, v{T2}, 4, v{T0}")
    a(f"s_add_u32 s56, s{sUB}, {U1_OFF+64+2*(192-224)+64*5}")
    a(f"v_add_u32 v{CAB}, s56, v{T0}")
    a(f"v_lshl_add_u32 v{T1}, v{T2}, 7, v{T1}")
    a(f"v_add_u32 v{CYW}, s{sRB}, v{T1}")
    a(f"v_lshlrev_b32 v{T2}, 4, v{VL}")
    a(f"v_add_u32 v{CYR}, s{sRB}, v{T2}")

def u_setup(a):
    T0,T1,T2,T3=240,241,242,243
    a(f"v_and_b32 v{T0}, 3, v{VL}")
    a(f"v_lshrrev_b32 v{T1}, 2, v{VL}")
    a(f"v_mul_u32_u24 v{T2}, {UBS}, v{T0}")
    a(f"v_lshl_add_u32 v{T2}, v{T1}, 6, v{T2}")
    a(f"s_lshl_b32 s5, s41, 10")
    a(f"s_add_u32 s5, s5, {UB0+64-4}")
    a(f"v_add_u32 v{CUW}, s5, v{T2}")
    a(f"v_mul_u32_u24 v{T1}, 40960, v{T1}")
    a(f"v_lshl_add_u32 v231, v{T0}, 4, v{T1}")
    a(f"v_bfe_u32 v{T2}, v{VL}, 4, 1")
    a(f"v_mul_u32_u24 v{T2}, {U1_OFF}, v{T2}")
    a(f"v_and_b32 v{T3}, 15, v{VL}")
    a(f"v_lshl_add_u32 v{T2}, v{T3}, 2, v{T2}")
    a(f"s_mul_i32 s5, s41, {UBS}")
    a(f"s_add_u32 s5, s5, {UB0}")
    a(f"v_add_u32 v{CPD}, s5, v{T2}")
    a(f"s_mul_i32 s5, s{sXC}, 20")
    a(f"s_add_u32 s5, s5, s{sS}")
    a("s_lshl_b32 s5, s5, 6")
    a(f"s_mul_i32 s6, s41, {64*10240}")
    a("s_add_u32 s6, s6, s5")
    a(f"s_add_u32 s6, s6, {WS_UT}")
    a(f"s_lshl_b32 s7, s41, 9")
    a(f"s_add_u32 s7, s7, {WS_FU}")
    a(f"v_lshlrev_b32 v211, 3, v{VL}")
    a("v_add_u32 v211, s7, v211")
    v_spread(a, 211, T0)
def fu_load(a):
    a(f"buffer_load_dwordx2 v[232:233], v211, s[{sWS}:{sWS+3}], s7 offen {FLD}")
def fu_test(a):
    a(f"v_cmp_eq_u64 s[46:47], s[{sN0}:{sN1}], v[232:233]")
    a("s_cmp_eq_u64 s[46:47], -1")
def u_loads(a):
    for n in range(4):
        a(f"buffer_load_dwordx4 {vr(UR+4*n,4)}, v231, s[{sWS}:{sWS+3}], s6 offen sc1")
        a("s_add_u32 s6, s6, 10240")

def gen_uwrite(a):
    SH=160
    a("s_mov_b32 exec_hi, 0")
    a("s_mov_b32 exec_lo, 0x7fffffff")
    a(f"ds_write_b32 v{CPD}, v244")
    a("s_mov_b64 exec, -1")
    a("s_waitcnt vmcnt(0)")
    for n in range(4):
        a(f"ds_write_b128 v{CUW}, {vr(UR+4*n,4)} offset:{4+16*n}")
    for k in range(7):
        a(f"v_pk_mov_b32 {vr(SH+2*k,2)}, {vr(UR+2*k,2)}, {vr(UR+2*k+2,2)} op_sel:[1,0]")
    a(f"v_mov_b32 v{SH+14}, v{UR+15}")
    a(f"ds_write_b32 v{CUW}, v{UR} offset:{U1_OFF}")
    for n in range(3):
        a(f"ds_write_b128 v{CUW}, {vr(SH+4*n,4)} offset:{U1_OFF+4+16*n}")
    a(f"ds_write_b96 v{CUW}, {vr(SH+12,3)} offset:{U1_OFF+4+48}")
    lds_add(a, cV, 240)

YS=176
def gen_conv(a):
    AA=CAA; AB=CAB; Y=32
    FA=[64,128]; FB=[96,160]
    def rA(buf,rho): return [f"ds_read_b128 {vr(FA[buf]+4*k,4)}, v{AA} offset:{64*(56-8*k+2-rho)}" for k in range(8)]
    def rB(buf,rho): return [f"ds_read_b64 {vr(FB[buf]+4*k+2*hf,2)}, v{AB} offset:{64*(8*k+2-rho)+8*hf}" for k in range(8) for hf in range(2)]
    def reads(buf, rho):
        A_=rA(buf,rho); B_=rB(buf,rho); out=[]
        for k in range(8): out += [A_[k],B_[2*k],B_[2*k+1]]
        return out
    for x in rA(0,0): a(x)
    lds_wait(a, cV, 4, 6)
    stamp(a,5)
    a(f"s_setprio {os.environ.get('CPRIO','1')}")
    for x in rB(0,0): a(x)
    a("s_mov_b32 s3, 0")
    a.label("L_ssm_conv")
    for rho in range(2):
        buf=rho&1
        nxt = reads(buf^1, rho+1)
        a("s_waitcnt lgkmcnt(0)")
        mm=[(aa,c) for aa in range(8) for c in range(aa,8)]
        for n_,(aa,c) in enumerate(mm):
            a(f"v_mfma_f32_16x16x32_bf16 {vr(Y+4*c,4)}, {vr(FA[buf]+4*aa,4)}, {vr(FB[buf]+4*(c-aa),4)}, {vr(Y+4*c,4)}")
            if n_ < len(nxt): a(nxt[n_])
    a(f"v_subrev_u32 v{AA}, 128, v{AA}")
    a(f"v_subrev_u32 v{AB}, 128, v{AB}")
    a("s_add_u32 s3, s3, 1")
    a("s_cmp_lt_u32 s3, 4")
    a("s_cbranch_scc1 L_ssm_conv")
    stamp(a,6)
    a("s_setprio 3")
    lds_wait(a, cP, 1, 6)
    q_loads(a)
    for c in range(8):
        for z in range(2):
            a(f"v_cvt_pk_bf16_f32 v{64+2*c+z}, v{Y+4*c+2*z}, v{Y+4*c+2*z+1}")
        a(f"ds_write2_b32 v{CYW}, v{64+2*c}, v{65+2*c} offset0:{128*(c&1)} offset1:{128*(c&1)+16}")
        if c&1: a(f"v_add_u32 v{CYW}, 1024, v{CYW}")
    for k in range(4):
        a(f"ds_read_b128 {vr(YS+4*k,4)}, v{CYR} offset:{1024*k}")
    lds_add(a, cV, 8)

def loader_setup(a):
    T0,T1,T2,T3=240,241,242,243
    sAW=41
    a(f"s_and_b32 s{sAW}, s{sW}, 3")
    a(f"v_lshrrev_b32 v{T0}, 4, v{VL}")
    a(f"v_and_b32 v{T3}, 1, v{T0}")
    a(f"v_lshlrev_b32 v{T3}, 2, v{T3}")
    a(f"v_and_b32 v{T1}, 7, v{VL}")
    a(f"v_xor_b32 v{T3}, v{T3}, v{T1}")
    a(f"v_lshlrev_b32 v{T3}, 4, v{T3}")
    a(f"v_lshrrev_b32 v{T1}, 3, v{VL}")
    a(f"v_mul_u32_u24 v{T1}, 1280, v{T1}")
    a(f"v_add_u32 v{T3}, v{T3}, v{T1}")
    a(f"s_mul_i32 s30, s{sAW}, {8*1280}")
    a(f"s_mul_i32 s31, s{sMT}, {128*1280}")
    a("s_add_u32 s30, s30, s31")
    a(f"v_add_u32 v{DX}, s30, v{T3}")
    for k in range(1,4): a(f"v_add_u32 v{DX+k}, {k*40960}, v{DX}")
    a(f"v_lshlrev_b32 v{T1}, 2, v{T0}")
    a(f"v_and_b32 v{T2}, 15, v{VL}")
    a(f"v_xor_b32 v{T1}, v{T1}, v{T2}")
    a(f"v_lshlrev_b32 v{T1}, 4, v{T1}")
    a(f"v_mul_u32_u24 v{T0}, 3840, v{T0}")
    a(f"v_add_u32 v{T0}, v{T0}, v{T1}")
    a(f"s_mul_i32 s30, s{sAW}, {4*3840}")
    a(f"s_lshl_b32 s31, s{sNT}, 8")
    a("s_add_u32 s30, s30, s31")
    a(f"v_add_u32 v{DW}, s30, v{T0}")
    for k in range(1,4): a(f"v_add_u32 v{DW+k}, {k*16*3840}, v{DW}")
    a(f"s_lshr_b32 s30, s{sS}, 2")
    a(f"s_add_u32 s30, s30, s{sS}")
    a("s_and_b32 s30, s30, 3")
    a("s_lshl_b32 s30, s30, 2")
    a(f"s_lshr_b32 s{sST0}, {os.environ.get('ROT','0x8530')}, s30")
    a(f"s_and_b32 s{sST0}, s{sST0}, 15")
    a(f"s_lshl_b32 s{sLX}, s{sST0}, 7")
    a(f"s_mul_i32 s{sLW}, s{sST0}, {64*3840}")
    a(f"s_mul_i32 s{sLD}, s{sAW}, {XST}")
    a(f"s_lshl_b32 s{sLE}, s{sAW}, 4")
    a(f"s_sub_u32 s{sLE}, {WOFF}, s{sLE}")
    a("s_waitcnt lgkmcnt(0)")
    srd(a, sA, pX, 2048*1280)
    srd(a, sB_, pW, 640*3840)
def dma_groups():
    G=[]
    for k in range(4):
        m = f"s_mov_b32 m0, s{sLD}" if k==0 else f"s_add_u32 m0, s{sLD}, {4*XST*k}"
        G.append([m, "s_nop 0", f"buffer_load_dwordx4 v{DX+k}, s[{sA}:{sA+3}], s{sLX} offen lds"])
    for k in range(4):
        m = f"s_add_u32 m0, s{sLD}, s{sLE}" if k==0 else "s_add_u32 m0, m0, 4096"
        G.append([m, "s_nop 0", f"buffer_load_dwordx4 v{DW+k}, s[{sB_}:{sB_+3}], s{sLW} offen lds"])
    G[-1] += [f"s_add_u32 s{sLX}, s{sLX}, 128", f"s_add_u32 s{sLW}, s{sLW}, {64*3840}", f"s_cmp_eq_u32 s{sLX}, 1280",
              f"s_cselect_b32 s{sLX}, 0, s{sLX}", f"s_cselect_b32 s{sLW}, 0, s{sLW}", f"s_add_u32 s{sLD}, s{sLD}, {STG}",
              f"s_sub_u32 s30, s{sLD}, {3*STG}", f"s_cmp_ge_u32 s{sLD}, {3*STG}", f"s_cselect_b32 s{sLD}, s30, s{sLD}"]
    return G

def gen_aux(a):
    T0,T1,T2,T3=240,241,242,243
    sAW=41; ZR=244
    a("s_memrealtime s[60:61]")
    a(f"s_setprio {os.environ.get('EPRIO','2')}")
    a(f"s_and_b32 s{sAW}, s{sW}, 3")
    a(f"s_mul_i32 s{sCH}, s{sXC}, 20")
    a(f"s_add_u32 s{sCH}, s{sCH}, s{sS}")
    a(f"s_lshl_b32 s{sCH}, s{sCH}, 2")
    a(f"s_add_u32 s{sCH}, s{sCH}, s{sAW}")
    a(f"s_cmp_ge_u32 s{sS}, 20")
    a("s_cbranch_scc1 L_a_np")
    param_loads(a, T0, T1)
    a.label("L_a_np")
    a("s_waitcnt lgkmcnt(0)")
    a(f"v_mov_b32 v{ZR}, 0")
    a(f"v_lshlrev_b32 v{T2}, 2, v{VL}")
    a(f"v_min_u32 v{T2}, 124, v{T2}")
    a(f"v_add_u32 v{T2}, {CTL}, v{T2}")
    a(f"ds_write_b32 v{T2}, v{ZR}")
    a(f"s_or_b32 s30, s2, s{sAW}")
    a("s_cmp_lg_u32 s30, 0")
    a("s_cbranch_scc1 L_a_nonn")
    a("s_or_b32 s61, s61, 0x80000000")
    a(f"v_mov_b32 v{T0}, s60")
    a(f"v_mov_b32 v{T1}, s61")
    a(f"v_mov_b32 v{T2}, 0")
    a(f"v_mov_b32 v{T3}, 0")
    a("s_mov_b64 exec, 1")
    a(f"global_atomic_cmpswap_x2 v{ZR}, {vr(T0,4)}, s[{pDBG}:{pDBG+1}] sc1")
    a("s_mov_b64 exec, -1")
    a("s_nop 1")
    a.label("L_a_nonn")
    a("s_waitcnt lgkmcnt(0)")
    a("s_barrier")
    loader_setup(a)
    srd(a, sWS, pWS, WS_SIZE)
    srd(a, sC, pU, 2048*1280)
    ut_setup(a)
    a("s_mov_b32 s61, 0")
    a(f"s_mul_i32 s{sRB}, s{sAW}, {RBS}")
    a(f"s_add_u32 s{sRB}, s{sRB}, {RB0}")
    a(f"s_mul_i32 s{sUB}, s{sAW}, {UBS}")
    a(f"s_add_u32 s{sUB}, s{sUB}, {UB0}")
    lt=Asm(); u_setup(lt); gen_convaddr(lt, 240)
    EARLY=int(os.environ.get("EARLY","0"))
    if EARLY: att_pre(a, True)
    LT=[[x.strip()] for x in lt.l]
    if not EARLY:
        l2=Asm(); att_pre(l2, True)
        cur=[]; hold=False
        for x in [y.strip() for y in l2.l]:
            cur.append(x)
            if "exec_lo" in x: hold=True
            if x=="s_mov_b64 exec, -1": hold=False
            if not hold and not x.startswith("s_cmp"):
                LT.append(cur); cur=[]
    a(f"s_add_u32 s{sST0}, s{sST0}, {NA+2}")
    a(f"s_sub_u32 s30, s{sST0}, 10")
    a(f"s_cmp_ge_u32 s{sST0}, 10")
    a(f"s_cselect_b32 s{sST0}, s30, s{sST0}")
    a(f"s_lshl_b32 s{sLX}, s{sST0}, 7")
    a(f"s_mul_i32 s{sLW}, s{sST0}, {64*3840}")
    a(f"s_add_u32 s{sLD}, s{sLD}, {((NA+2)%3)*STG}")
    a(f"s_cmp_ge_u32 s{sS}, 20")
    a("s_cbranch_scc1 L_a_plain")
    kg=Asm(); gen_kgen(kg, False, sbase=sRB); K=[x.strip() for x in kg.l]
    p=[n for n,x in enumerate(K) if f"v{PRM+4}" in x][0]
    for x in K[:p]: a(x)
    a("s_waitcnt vmcnt(0)")
    stamp(a,1)
    for x in K[p:]: a(x)
    gen_kgen(a, True, KEEP=212, first=True)
    stamp(a,4)
    a(f"s_setprio {os.environ.get('BPRIO','0')}")
    k2=Asm(); gen_kgen(k2, True, KEEP=152, first=False); gen_expand(k2); K2=[x.strip() for x in k2.l]
    h0=int(os.environ.get("PB0","0")); hb=int(os.environ.get("PB","170"))
    for x in K2[:h0]: a(x)
    ut_dma(a); nonce_issue(a, 246, ZR)
    hm=int(os.environ.get("PBM","170"))
    for x in K2[h0:hm]: a(x)
    a("s_waitcnt vmcnt(0)")
    ut_store(a)
    for x in K2[hm:hb]: a(x)
    a("s_branch L_a_join")
    a.label("L_a_plain")
    lds_wait(a, cG, 4*int(os.environ.get("UAT","2")), T0)
    ut_dma(a); nonce_issue(a, 246, ZR)
    a("s_waitcnt vmcnt(0)")
    ut_store(a)
    a.label("L_a_join")
    nonce_fast(a, 246, ZR, "a")
    a("s_setprio 0")
    stamp(a,14)
    a("s_barrier")
    nseg=7-NA
    for seg in range(NA+1,9):
        if seg==NA+2:
            a(f"s_cmp_lg_u32 s{sAW}, 0")
            a("s_cbranch_scc1 L_a_nf")
            a("s_lshl_b32 s30, s2, 3")
            a(f"s_add_u32 s30, s30, {WS_FU}")
            flag_store(a, 30, 246)
            a.label("L_a_nf")
        if seg==8:
            a(f"s_cmp_lt_u32 s{sS}, 20")
            a(f"s_cselect_b32 s7, 0, {WS_SIZE}")
            fu_load(a)
        for g in dma_groups():
            for x in g: a(x)
        if seg<8:
            k=seg-NA-1
            for grp in LT[len(LT)*k//nseg:len(LT)*(k+1)//nseg]:
                for x in grp: a(x)
        a(f"s_waitcnt vmcnt({9 if seg==8 else 8})")
        a("s_barrier")
    srd(a, sA, pWO, 640*1280)
    srd(a, sB_, pOUT, 2048*2560)
    a("s_waitcnt vmcnt(0)")
    a("s_barrier")
    fu_test(a)
    a("s_cselect_b32 s5, 1, 0")
    a("s_cbranch_scc0 L_a_t0")
    u_loads(a)
    stamp(a,15)
    a.label("L_a_t0")
    stamp(a,2)
    a("s_barrier")
    stamp(a,3)
    a("s_setprio 1")
    a(f"s_cmp_ge_u32 s{sS}, 20")
    a("s_cbranch_scc1 L_att2")
    a("s_cmp_eq_u32 s5, 1")
    a("s_cbranch_scc1 L_a_fud2")
    a(f"s_mov_b32 s44, {SPIN}")
    a.label("L_a_fu")
    fu_load(a)
    a("s_waitcnt vmcnt(0)")
    fu_test(a)
    a("s_cbranch_scc1 L_a_fud")
    a("s_sleep 8")
    a("s_sub_u32 s44, s44, 1")
    a("s_cmp_lg_u32 s44, 0")
    a("s_cbranch_scc1 L_a_fu")
    a.label("L_a_fud")
    u_loads(a)
    stamp(a,15)
    a.label("L_a_fud2")
    for x in K2[hb:]: a(x)
    gen_uwrite(a)
    gen_conv(a)
    stamp(a,7)
    a("s_branch L_att3")

aS=[0,16]; aO=32; aQ=240; aQT=244
IDX=192; AK=193; AV=194; L16=195; PA=196; VFA=198; VONES=199; VQF=200
WV=[197,202,203,252,253]; VINC=251
VIT,VCN,VONE,VCA,VCT,VTH,VVL=224,225,226,227,228,229,230
sIT=48; sSTEP=49; sKV=52; sAUX=53; sVM=28; sPL=41; sLOW=63; sSTK=61; sYH=4
def att_pre(a, aux=False):
    T0,T1,T2,T3=240,241,242,243
    a(f"s_cmp_ge_u32 s{sW}, 4")
    a(f"s_cselect_b32 s{sAUX}, 1, 0")
    a(f"v_lshlrev_b32 v{L16}, 4, v{VL}")
    a(f"s_mul_i32 s56, s{sH}, 81920")
    a(f"s_lshr_b32 s54, s{sT}, 1")
    a("s_mul_i32 s54, s54, 2560")
    a("s_add_u32 s56, s56, s54")
    a(f"s_and_b32 s55, s{sT}, 1")
    a("s_lshl_b32 s54, s55, 10")
    a("s_add_u32 s57, s56, s54")
    a("s_lshl_b32 s54, s55, 3")
    a("s_add_u32 s58, s56, s54")
    a(f"s_mul_i32 s{sKV}, s{sH}, {HKV}")
    a(f"s_add_u32 s{sKV}, s{sKV}, {WS_KV}")
    a(f"v_and_b32 v{T0}, 31, v{VL}")
    a(f"v_lshrrev_b32 v{T1}, 5, v{VL}")
    a(f"v_mul_u32_u24 v{T1}, 320, v{T1}")
    a(f"v_lshl_add_u32 v{AV}, v{T0}, 4, v{T1}")
    a(f"v_cmp_eq_u32 vcc, 20, v{T0}")
    a(f"v_mov_b32 v{T1}, 0x3f803f80")
    a(f"v_mov_b32 v{AK}, v{L16}")
    a(f"v_cndmask_b32 v{VONES}, 0, v{T1}, vcc")
    a(f"s_mov_b32 s{sVM}, 0x000fffff")
    a(f"s_mov_b32 s{sVM+1}, 0x000fffff")
    a(f"v_mov_b32 v{IDX}, 0xdddddddd")
    a(f"s_lshl_b32 s54, s{sW}, 2")
    a(f"s_add_u32 s55, s54, {cPROG}")
    a(f"v_mov_b32 v{PA}, s55")
    if not aux:
        a(f"s_xor_b32 s{sPL}, s{sW}, 4")
        a(f"s_add_u32 s{sPL}, s{sPL}, 16")
    a(f"v_mov_b32 v{VIT}, 0")
    a(f"v_mov_b32 v{VCN}, {cT+4}")
    a(f"v_mov_b32 v{VONE}, 1")
    a(f"v_lshlrev_b32 v{VCA}, 2, v{T0}")
    a(f"v_add_u32 v{VCA}, {CTL}, v{VCA}")
    a(f"v_mov_b32 v{VVL}, 4")
    a(f"v_mov_b32 v{VINC}, 0")
    a(f"s_sub_u32 s55, 4, s{sAUX}")
    a(f"s_lshl_b32 s56, s{sAUX}, 1")
    a("s_sub_u32 s56, 1, s56")
    a(f"v_mov_b32 v{VTH}, v{T0}")
    a("s_mov_b32 exec_lo, 0xff00ff00")
    a("s_mov_b32 exec_hi, 0xff00ff00")
    a(f"v_mov_b32 v{VTH}, 99")
    a("s_mov_b32 exec_lo, 0x00ff0000")
    a("s_mov_b32 exec_hi, 0x00ff0000")
    a(f"v_mov_b32 v{VTH}, s55")
    a(f"v_mov_b32 v{VVL}, s56")
    a(f"v_mov_b32 v{VINC}, 1")
    a(f"s_cmp_lt_u32 s{sS}, 20")
    a("s_cselect_b32 s54, 2, 99")
    a("s_mov_b32 exec_lo, 0x1000")
    a("s_mov_b32 exec_hi, 0x1000")
    a(f"v_mov_b32 v{VTH}, s54")
    a(f"v_mov_b32 v{VVL}, 8")
    a("s_mov_b64 exec, -1")
    a(f"s_mov_b32 s{sLOW}, 1")
    if not aux:
        a(f"s_add_u32 s92, s{sW}, 9")
        a(f"s_mul_i32 s90, s92, {PS}")
        a(f"s_add_u32 s91, s90, s{sKV}")
    a(f"s_lshr_b32 s54, s{sS}, 2")
    a("s_mul_i32 s54, s54, 160")
    for n in range(5):
        a(f"v_add_u32 v{T3}, {64*n}, v{VL}")
        a(f"v_mul_u32_u24 v{T1}, 52429, v{T3}")
        a(f"v_lshrrev_b32 v{T1}, 19, v{T1}")
        a(f"v_mul_u32_u24 v{T2}, 1120, v{T1}")
        a(f"v_lshl_add_u32 v{T2}, v{VL}, 4, v{T2}")
        if n==4: a(f"v_add_u32 v{T2}, 4096, v{T2}")
        a(f"v_add_u32 v{WV[n]}, s54, v{T2}")
    if not aux:
        srd(a, sA, pWO, 640*1280)
        srd(a, sB_, pOUT, 2048*2560)
    a(f"s_mul_i32 s62, s{sXC}, 12")
    a(f"s_add_u32 s62, s62, s{sS}")
    a("s_sub_u32 s62, s62, 21")
    a("s_lshl_b32 s62, s62, 2")
    a(f"s_add_u32 s62, s62, s{sW}")
    a(f"s_cmp_ge_u32 s{sS}, 20")
    a("s_cselect_b32 s62, s62, 999")
    a(f"s_cmp_eq_u32 s{sAUX}, 1")
    a("s_cselect_b32 s62, s62, 999")
    a(f"s_cmp_lt_u32 s{sS}, 20")
    a(f"s_cselect_b32 s{sYH}, s{sAUX}, 0")
    a(f"s_xor_b32 s{sYH}, s{sYH}, 1")
    a(f"s_lshl_b32 s{sYH}, s{sYH}, 4")
    a(f"s_mov_b32 s{sIT}, 0")
    a(f"s_mov_b32 s{sSTEP}, {4*PS}")
    if aux:
        a(f"v_mov_b32 v{VFA}, 0")
        a(f"v_mov_b32 v{VQF}, 0")
        return
    a(f"s_mul_i32 s54, s{sH}, 20")
    a(f"v_bfe_u32 v{T0}, v{VL}, 4, 1")
    a(f"v_mul_u32_u24 v{T0}, 19, v{T0}")
    a(f"v_add_u32 v{T0}, s54, v{T0}")
    a(f"v_and_b32 v{T0}, 0xff80, v{T0}")
    a(f"v_lshrrev_b32 v{T1}, 5, v{VL}")
    a(f"v_mul_u32_u24 v{T1}, 640, v{T1}")
    a(f"v_and_b32 v{T2}, 15, v{VL}")
    a(f"v_lshl_add_u32 v{T1}, v{T2}, 3, v{T1}")
    a(f"v_add_u32 v{T1}, v{T1}, v{T0}")
    a(f"v_add_u32 v{VFA}, {WS_F1+640}, v{T1}")
    a(f"v_and_b32 v{T2}, 1, v{VL}")
    a(f"v_lshl_add_u32 v{T0}, v{T2}, 3, v{T0}")
    a(f"s_lshr_b32 s54, s{sS}, 2")
    a("s_lshl_b32 s54, s54, 4")
    a(f"s_add_u32 s54, s54, {WS_F1}")
    a(f"v_add_u32 v{VQF}, s54, v{T0}")
    v_spread(a, VFA, T1)
    v_spread(a, VQF, T1)

def q_loads(a):
    a(f"v_mov_b32 v{aQT}, 0")
    a(f"v_mov_b32 v{aQT+1}, 0")
    a(f"buffer_load_dwordx4 {vr(aQ,4)}, v{L16}, s[{sWS}:{sWS+3}], s57 offen sc1")
    a("s_mov_b32 exec_hi, 0")
    a(f"buffer_load_dwordx2 {vr(aQT,2)}, v{L16}, s[{sWS}:{sWS+3}], s58 offen offset:2048 sc1")
    a("s_mov_b64 exec, -1")

def gen_att(a):
    S=aS; O=aO; Q=aQ; QT=aQT
    KM=[56,60,232,236]; KT=[64,68]; V=[72,80,208,216]
    T0=92; T1=93; T2=94; T3=95; MX=96
    PL=100
    a.label("L_att")
    a("s_setprio 0")
    a.label("L_att1")
    att_pre(a)
    a.label("L_att2")
    def setup_av():
        a(f"v_and_b32 v{T0}, 31, v{VL}")
        a(f"v_lshrrev_b32 v{T1}, 5, v{VL}")
        a(f"v_mul_u32_u24 v{T1}, 320, v{T1}")
        a(f"v_lshl_add_u32 v{AV}, v{T0}, 4, v{T1}")
    def reginit():
        a("v_mov_b32 v97, 0")
        a("v_mov_b32 v98, 0")
        for b in V:
            for r in range(8): a(f"v_mov_b32 v{b+r}, v{VONES}")
        for r in range(16): a(f"v_mov_b32 v{O+r}, 0")
        for r in range(8,16): a(f"v_mov_b32 v{S[1]+r}, 0")
    def qloads(): q_loads(a)
    def load_pairs(tag):
        a.label(f"L_lp_{tag}")
        a(f"s_mul_i32 s56, s54, {PS}")
        a(f"s_add_u32 s59, s56, s{sKV}")
        a(f"s_sub_u32 s60, s56, {28*PS}")
        a("s_cmp_ge_u32 s54, 28")
        a("s_cselect_b32 m0, s60, s56")
        a("s_add_u32 s54, s54, 1")
        for k in range(4):
            a(f"buffer_load_dwordx4 v{L16}, s[{sWS}:{sWS+3}], s59 offen offset:{1024*k} sc1 lds")
        a("s_add_u32 m0, m0, 4096")
        a("s_add_u32 s59, s59, 4096")
        a(f"buffer_load_dwordx4 v{L16}, s[{sWS}:{sWS+3}], s59 offen sc1 lds")
        a("s_cmp_lt_u32 s54, s55")
        a(f"s_cbranch_scc1 L_lp_{tag}")
    a("s_cmp_eq_u32 s61, 0")
    a("s_cbranch_scc1 L_att_np")
    def kvload(): a(f"buffer_load_dwordx2 {vr(PL,2)}, v{VFA}, s[{sWS}:{sWS+3}], 0 offen {FLD}")
    def kvtest():
        a(f"v_cmp_eq_u64 s[46:47], s[{sN0}:{sN1}], {vr(PL,2)}")
        a("s_and_b32 s31, s46, s47")
        a("s_and_b32 s31, s31, s30")
        a("s_cmp_eq_u32 s31, s30")
    def kvspin(tag):
        a(f"s_mov_b32 s44, {SPIN}")
        a.label(f"L_kv_{tag}")
        kvload()
        a("s_waitcnt vmcnt(0)")
        kvtest()
        a(f"s_cbranch_scc1 L_kv_{tag}_d")
        a("s_sleep 4")
        a("s_sub_u32 s44, s44, 1")
        a("s_cmp_lg_u32 s44, 0")
        a(f"s_cbranch_scc1 L_kv_{tag}")
        a.label(f"L_kv_{tag}_d")
    reginit()
    FIRST=os.environ.get("FIRST","0x00070007")
    a(f"s_mov_b32 s30, {FIRST}")
    a(f"s_mov_b32 s44, {SPIN}")
    a.label("L_att_pl")
    a(f"buffer_load_dwordx2 {vr(PL+2,2)}, v{VQF}, s[{sWS}:{sWS+3}], 0 offen {FLD}")
    kvload()
    a("s_waitcnt vmcnt(0)")
    a(f"v_cmp_eq_u64 vcc, s[{sN0}:{sN1}], {vr(PL+2,2)}")
    kvtest()
    a("s_cselect_b64 vcc, vcc, 0")
    a("s_cmp_eq_u64 vcc, -1")
    a("s_cbranch_scc1 L_att_pd")
    a("s_sleep 4")
    a("s_sub_u32 s44, s44, 1")
    a("s_cmp_lg_u32 s44, 0")
    a("s_cbranch_scc1 L_att_pl")
    a.label("L_att_pd")
    a("s_cmp_eq_u64 s[46:47], -1")
    a(f"s_cselect_b32 s{sSTK}, 2, 1")
    a("s_setprio 2")
    lds_add(a, cP, T0, f"s{sSTK}")
    stamp(a,7)
    qloads()
    a("s_mov_b32 s54, 0")
    a("s_mov_b32 s55, 5")
    load_pairs("first")
    stamp(a,5)
    a("s_waitcnt vmcnt(15)")
    lds_add(a, cT, T0, 2)
    stamp(a,15)
    a("s_mov_b32 s30, 0x001f001f")
    a("s_and_b32 s31, s46, s47")
    a("s_and_b32 s31, s31, s30")
    a("s_cmp_eq_u32 s31, s30")
    a("s_mov_b32 s55, 9")
    a("s_cbranch_scc1 L_att_p9")
    a("s_waitcnt vmcnt(0)")
    lds_add(a, cT, T0, 2)
    kvspin("p")
    load_pairs("second")
    a("s_branch L_att_go")
    a.label("L_att_p9")
    a("s_mov_b32 s55, 7")
    load_pairs("third")
    a("s_waitcnt vmcnt(10)")
    lds_add(a, cT, T0, 2)
    a("s_mov_b32 s55, 9")
    a("s_branch L_lp_second")
    a.label("L_att3")
    reginit()
    a("s_branch L_att4")
    a.label("L_att_np")
    reginit()
    lds_wait(a, cP, 1, T0, 1)
    a("s_setprio 2")
    a(f"s_mov_b32 s{sSTK}, s45")
    stamp(a,7)
    qloads()
    a.label("L_att4")
    lds_wait(a, cT, 2, T0, 0)
    a("s_waitcnt vmcnt(0)")
    a.label("L_att_go")
    def koff(t): return (t>>1)*PS + (t&1)*1024
    def toff(t): return (t>>1)*PS + 2048
    def voff(t,s_): return (t>>1)*PS + 2560 + (t&1)*1280 + 640*s_
    def readK(t, trel):
        a(f"ds_read_b128 {vr(KM[t&3],4)}, v{AK} offset:{koff(trel)}")
        if t&1==0:
            a(f"ds_read_b128 {vr(KT[(t>>1)&1],4)}, v{AK} offset:{toff(trel)}")
    def readV2(t, trel):
        a(f"s_mov_b64 exec, s[{sVM}:{sVM+1}]")
        for d in range(2):
            a(f"ds_read_b128 {vr(V[(t+d)&3],4)}, v{AV} offset:{voff(trel+d,0)}")
            a(f"ds_read_b128 {vr(V[(t+d)&3]+4,4)}, v{AV} offset:{voff(trel+d,1)}")
        a("s_mov_b64 exec, -1")
    if os.environ.get("QSW","0")=="1":
        def qk2(t): a(f"v_mfma_f32_32x32x16_bf16 {vr(S[t&1],16)}, {vr(KM[t&3],4)}, {vr(Q,4)}, {vr(S[t&1],16)}")
        def qk1(t): a(f"v_mfma_f32_32x32x8_bf16 {vr(S[t&1],16)}, {vr(KT[(t>>1)&1]+2*(t&1),2)}, {vr(QT,2)}, 0")
    else:
        def qk1(t): a(f"v_mfma_f32_32x32x16_bf16 {vr(S[t&1],16)}, {vr(KM[t&3],4)}, {vr(Q,4)}, 0")
        def qk2(t): a(f"v_mfma_f32_32x32x8_bf16 {vr(S[t&1],16)}, {vr(KT[(t>>1)&1]+2*(t&1),2)}, {vr(QT,2)}, {vr(S[t&1],16)}")
    def pv(t,s_): a(f"v_smfmac_f32_32x32x32_bf16 {vr(O,16)}, {vr(V[t&3]+4*s_,4)}, {vr(S[t&1]+8*s_,8)}, v{IDX}")
    def ex(t,r): a(f"v_exp_f32 v{S[t&1]+r}, v{S[t&1]+r}")
    readK(0,0); readK(1,1); readV2(0,0)
    a("s_waitcnt lgkmcnt(0)")
    stamp(a,8)
    qk1(0); qk2(0)
    a("s_nop 9")
    a(f"s_cmp_eq_u32 s{sAUX}, 0")
    a("s_cbranch_scc1 L_att_topc")
    a("s_setprio 1")
    a("s_branch L_att_top")
    def wait_prog(val):
        L=a.uid("wp")
        a(f"s_mov_b32 s44, {SPIN}")
        a.label(L)
        a(f"v_cmp_le_u32 vcc, {val}, v{VCT}")
        a("s_and_b32 s54, vcc_lo, 0x00ff0000")
        a("s_cmp_eq_u32 s54, 0x00ff0000")
        a(f"s_cbranch_scc1 {L}_d")
        a("s_sleep 1")
        a(f"ds_read_b32 v{VCT}, v{VCA}")
        a("s_waitcnt lgkmcnt(0)")
        a("s_sub_u32 s44, s44, 1")
        a("s_cmp_lg_u32 s44, 0")
        a(f"s_cbranch_scc1 {L}")
        a.label(f"{L}_d")
    a.label("L_act1")
    a(f"s_lshl_b32 s54, s{sS}, 2")
    a(f"s_add_u32 s54, s54, s{sW}")
    a("s_sub_u32 s54, s54, 4")
    a("s_mul_i32 s54, s54, 6400")
    a(f"v_min_u32 v{T0}, 49, v{VL}")
    a(f"v_lshlrev_b32 v{T0}, 7, v{T0}")
    a(f"buffer_load_dword v{MX}, v{T0}, s[{sA}:{sA+3}], s54 offen")
    a(f"s_cmp_lg_u32 s{sYH}, 0")
    a("s_cbranch_scc1 L_att_top")
    a(f"s_lshl_b32 s54, s{sCH}, 12")
    a(f"s_add_u32 s54, s54, {WS_YT}")
    for k in range(4):
        a(f"buffer_store_dwordx4 {vr(YS+4*k,4)}, v{L16}, s[{sWS}:{sWS+3}], s54 offen offset:{1024*k} sc1")
    a("s_branch L_att_top")
    a.label("L_act2")
    a("s_waitcnt vmcnt(0)")
    lds_add_rtn(a, cE, T0, 54)
    a("s_cmp_lg_u32 s54, 7")
    a("s_cbranch_scc1 L_att_top")
    a(f"s_lshr_b32 s54, s{sCH}, 2")
    a("s_lshl_b32 s54, s54, 3")
    a(f"s_add_u32 s54, s54, {WS_FY}")
    flag_store(a, 54, T0)
    a("s_branch L_att_top")
    YI=104; YO=136
    YF=97; YA=98
    a.label("L_acty")
    for k in (4,5,6):
        a(f"s_cmp_eq_u32 s{sIT}, {k}")
        a(f"s_cbranch_scc1 L_act{k}")
    a(f"s_cmp_lg_u32 s{sIT}, 3")
    a("s_cbranch_scc1 L_att_top")
    a.label("L_act3")
    a(f"v_and_b32 v{YF}, 15, v{VL}")
    a(f"v_lshlrev_b32 v{YF}, 3, v{YF}")
    a("s_lshr_b32 s57, s62, 5")
    a("s_and_b32 s58, s62, 31")
    a("s_lshl_b32 s54, s57, 7")
    a(f"s_add_u32 s54, s54, {WS_FY}")
    a(f"v_add_u32 v{YF}, s54, v{YF}")
    v_spread(a, YF, T1)
    a(f"buffer_load_dwordx2 {vr(PL,2)}, v{YF}, s[{sWS}:{sWS+3}], 0 offen {FLD}")
    a(f"v_lshrrev_b32 v{T1}, 3, v{VL}")
    a(f"v_and_b32 v{T0}, 7, v{VL}")
    a(f"v_lshlrev_b32 v{YA}, 15, v{T0}")
    a(f"v_lshl_add_u32 v{YA}, v{T1}, 4, v{YA}")
    a("s_lshl_b32 s54, s57, 18")
    a("s_lshl_b32 s55, s58, 7")
    a("s_add_u32 s54, s54, s55")
    a(f"s_add_u32 s59, s54, {WS_YT}")
    a("s_branch L_att_top")
    def yl(c0):
        for cc in range(c0,c0+4):
            a(f"buffer_load_dwordx4 {vr(YI+4*cc,4)}, v{YA}, s[{sWS}:{sWS+3}], s59 offen sc1")
            a("s_add_u32 s59, s59, 4096")
    a.label("L_act4")
    a("s_waitcnt vmcnt(5)")
    a(f"v_cmp_eq_u64 s[46:47], s[{sN0}:{sN1}], {vr(PL,2)}")
    a("s_cmp_eq_u64 s[46:47], -1")
    a("s_cbranch_scc1 L_act4b")
    poll(a, [YF], PL)
    a.label("L_act4b")
    yl(0)
    a("s_branch L_att_top")
    a.label("L_act5")
    yl(4)
    a("s_branch L_att_top")
    a.label("L_act6")
    a(f"v_lshrrev_b32 v{T1}, 3, v{VL}")
    a(f"v_and_b32 v{T0}, 7, v{VL}")
    a(f"v_mul_u32_u24 v{T3}, {8*2560}, v{T1}")
    a(f"v_lshl_add_u32 v{T3}, v{T0}, 4, v{T3}")
    a(f"s_mul_i32 s59, s58, {64*2560}")
    a("s_lshl_b32 s57, s57, 7")
    a("s_add_u32 s59, s59, s57")
    a("s_mov_b32 s54, 0x05040100")
    a("s_mov_b32 s55, 0x07060302")
    a("s_waitcnt vmcnt(5)")
    transpose8(a, YI, YO)
    for rr in range(8):
        a(f"buffer_store_dwordx4 {vr(YO+4*rr,4)}, v{T3}, s[{sB_}:{sB_+3}], s59 offen {os.environ.get('YFL','sc1')}")
        a("s_add_u32 s59, s59, 2560")
    a("s_branch L_att_top")
    def test():
        a(f"v_cmp_lt_u32 s[54:55], s{sIT}, v{VTH}")
        a(f"v_cmp_le_u32 vcc, v{VVL}, v{VCT}")
        a("s_or_b64 s[54:55], s[54:55], vcc")
        a("s_cmp_eq_u64 s[54:55], -1")
    a.raw(".p2align 6")
    for _ in range(int(os.environ.get("PADA","0"))): a("s_nop 0")
    a.label("L_att_nr")
    a("s_mov_b64 exec, 1")
    a(f"ds_write_b32 v{PA}, v{VIT}")
    a("s_mov_b64 exec, -1")
    a(f"s_mov_b32 s44, {SPIN}")
    a.label("L_att_nr1")
    a(f"ds_read_b32 v{VCT}, v{VCA}")
    a("s_waitcnt lgkmcnt(0)")
    test()
    a("s_cbranch_scc1 L_att_h4")
    a("s_sleep 1")
    a("s_sub_u32 s44, s44, 1")
    a("s_cmp_lg_u32 s44, 0")
    a("s_cbranch_scc1 L_att_nr1")
    a.label("L_att_h4")
    a(f"s_cmp_eq_u32 s{sAUX}, 0")
    a("s_cbranch_scc1 L_att_topc")
    a.label("L_att_h5")
    a(f"s_cmp_eq_u32 s{sIT}, 1")
    a("s_cbranch_scc1 L_act1")
    a(f"s_add_u32 s54, s{sIT}, s{sYH}")
    a("s_cmp_eq_u32 s54, 2")
    a("s_cbranch_scc1 L_act2")
    a("s_cmp_lt_u32 s62, 320")
    a("s_cbranch_scc1 L_acty")
    a.label("L_att_top")
    a(f"s_cmp_lt_u32 s{sIT}, 3")
    a("s_cbranch_scc1 L_att_topa")
    UN=8
    def wod(n): a(f"buffer_load_dwordx4 v{WV[n]}, s[{sA}:{sA+3}], s60 offen offset:{1024*(n&3)} lds")
    LOWN=int(os.environ.get("LOWN","32")); LOWE=int(os.environ.get("LOWE","48"))
    def body(aux, late=False):
        tag="b" if late else ("a" if aux else "c")
        if not late:
            a.raw(".p2align 6")
            for _ in range(int(os.environ.get("PADC","0"))): a("s_nop 0")
        a.label(f"L_att_top{tag}")
        for t in range(UN):
            def e(r):
                if not aux and 16*t+r==128-LOWN:
                    a(f"s_cmp_eq_u32 s{sLOW}, 2")
                    a("s_cbranch_scc1 L_att_nolow")
                    a("s_setprio 0")
                    a.label("L_att_nolow")
                if not aux and 16*t+r==128-LOWE:
                    a(f"s_cmp_lt_i32 s{sLOW}, 1")
                    a("s_cbranch_scc1 L_att_early")
                    a.label("L_att_earlyr")
                ex(t,r)
            if t==0 and not aux:
                a(f"s_cmp_lt_i32 s{sLOW}, 0")
                a("s_cbranch_scc1 L_att_nohi")
                a("s_setprio 2")
                a.label("L_att_nohi")
            e(0); e(1)
            pv(t-1,1)
            e(2); e(3)
            if t==6:
                a(f"v_add_u32 v{AK}, s{sSTEP}, v{AK}")
                a(f"v_add_u32 v{AV}, s{sSTEP}, v{AV}")
            e(4)
            if t&1: a("s_waitcnt lgkmcnt(0)")
            qk1(t+1)
            if t&1==0:
                readK(t+2, (t+2)%8); readK(t+3, (t+3)%8)
            if t==6:
                a(f"ds_read_b32 v{VCT}, v{VCA}")
                if PROF==2: a("s_memtime s[98:99]")
            if t==1 and not late:
                a(f"s_cmp_eq_u32 s{sIT}, 0")
                a(f"s_cbranch_scc1 L_att_c0{tag}")
                a.label(f"L_att_c0r{tag}")
            if t==1:
                if not aux: a("s_waitcnt vmcnt(0)")
                a("s_mov_b64 exec, 1")
                a(f"ds_write_b32 v{PA}, v{VIT}")
                if not aux: a(f"ds_add_u32 v{VCN}, v{VONE}")
                a("s_mov_b64 exec, -1")
            if late and t==1:
                a(f"s_lshl_b32 s54, s{sIT}, 2")
                a(f"s_add_u32 s54, s54, s{sW}")
                a("s_sub_u32 s54, s54, 16")
                a("s_mul_i32 s60, s54, 40960")
                a("s_mul_i32 s54, s54, 5120")
                a(f"s_add_u32 m0, s54, {WOB}")
            if late and t in (3,5): wod(t-2)
            if late and t==5: a("s_add_u32 m0, m0, 4096")
            if t==3 and not aux:
                a(f"s_cmp_lt_u32 s{sSTK}, 2")
                a("s_cbranch_scc1 L_att_fl")
                a.label("L_att_flr")
            if t==5 and not aux:
                a(f"s_cmp_ge_u32 s{sIT}, 6")
                a("s_cbranch_scc1 L_att_noldc")
                a(f"s_cmp_lt_u32 s{sSTK}, 2")
                a("s_cbranch_scc1 L_att_ft")
                a.label("L_att_ftr")
                a("s_mov_b32 m0, s90")
                a("s_add_u32 s59, s91, 4096")
                for k in range(4):
                    if "K" not in X: a(f"buffer_load_dwordx4 v{L16}, s[{sWS}:{sWS+3}], s91 offen offset:{1024*k} sc1 lds")
                a("s_add_u32 m0, m0, 4096")
                a("s_nop 0")
                a(f"buffer_load_dwordx4 v{L16}, s[{sWS}:{sWS+3}], s59 offen sc1 lds")
                a.label("L_att_noldc")
            if t==7 and not aux:
                a("s_add_u32 s92, s92, 4")
                a("s_min_u32 s92, s92, 31")
                a(f"s_mul_i32 s90, s92, {PS}")
                a(f"s_add_u32 s91, s90, s{sKV}")
                a(f"s_sub_u32 s60, s90, {28*PS}")
                a("s_cmp_ge_u32 s92, 28")
                a("s_cselect_b32 s90, s60, s90")
            e(5); e(6); e(7); e(8)
            qk2(t+1)
            e(9); e(10); e(11); e(12)
            pv(t,0)
            if t&1==0: readV2(t+2, (t+2)%8)
            if late and t in (1,3,5): wod(t-1)
            e(13); e(14); e(15)
        if PROF==2:
            a(f"s_lshl_b32 s96, s{sIT}, 1")
            a("s_add_u32 s96, s96, 3")
            a("s_mov_b32 m0, s96")
            a(f"v_writelane_b32 v{PV}, s98, m0")
        a(f"s_add_u32 s{sIT}, s{sIT}, 1")
        a(f"s_cmp_eq_u32 s{sIT}, 8")
        a("s_cbranch_scc1 L_att_done")
        a(f"s_cmp_eq_u32 s{sIT}, 6")
        a(f"s_cselect_b32 s{sSTEP}, {(-24*PS)&0xffffffff}, s{sSTEP}")
        a(f"v_add_u32 v{VIT}, 1, v{VIT}")
        if aux: a(f"v_add_u32 v{VVL}, v{VINC}, v{VVL}")
        if not aux:
            a(f"v_add_u32 v{VCN}, 4, v{VCN}")
            a(f"v_readlane_b32 s56, v{VCT}, s{sPL}")
            a(f"s_sub_u32 s56, s56, s{sIT}")
            a("s_add_u32 s56, s56, 2")
            a(f"s_min_i32 s{sLOW}, s56, 2")
        test()
        a(f"s_cbranch_scc1 {'L_att_h5' if aux else 'L_att_topc'}")
        a("s_branch L_att_nr")
    body(True, True)
    body(True)
    for tg in "ac":
        a.label(f"L_att_c0{tg}")
        lds_wait(a, cT, 4, T0, 1)
        a(f"s_branch L_att_c0r{tg}")
    a.label("L_att_fl")
    kvload()
    a("s_branch L_att_flr")
    a.label("L_att_ft")
    a("s_lshr_b32 s30, s92, 1")
    a("s_lshl_b32 s30, 0x00010001, s30")
    a("s_waitcnt vmcnt(0)")
    kvtest()
    a("s_cbranch_scc1 L_att_ft2")
    kvspin("l")
    a.label("L_att_ft2")
    a("s_cmp_eq_u64 s[46:47], -1")
    a(f"s_cselect_b32 s{sSTK}, 2, 1")
    a("s_branch L_att_ftr")
    a.label("L_att_early")
    a("s_setprio 0")
    a("s_branch L_att_earlyr")
    body(False)
    a.label("L_att_done")
    pv(UN-1,1)
    a("s_setprio 1")
    stamp(a,9)
    a(f"s_mul_i32 s6, s{sT}, 40960")
    a(f"s_add_u32 s6, s6, {WS_O}")
    a(f"s_lshl_b32 s7, s{sH}, 7")
    a("s_add_u32 s7, s7, s6")
    a(f"s_add_u32 s7, s7, {16*1024}")
    a(f"s_lshl_b32 s54, s{sH}, 9")
    a("s_add_u32 s6, s6, s54")
    OA,OB=98,99
    a(f"v_bfe_u32 v{OB}, v{VL}, 4, 1")
    a(f"v_mul_u32_u24 v{OB}, 20480, v{OB}")
    a(f"v_and_b32 v{T3}, 15, v{VL}")
    a(f"v_lshl_add_u32 v{OA}, v{T3}, 4, v{OB}")
    a(f"v_lshl_add_u32 v{OB}, v{T3}, 3, v{OB}")
    a(f"v_lshrrev_b32 v{T3}, 5, v{VL}")
    a(f"v_lshl_add_u32 v{OA}, v{T3}, 8, v{OA}")
    a(f"s_mov_b32 s46, {hex(f32bits(2.0**-64))}")
    a(f"s_mov_b32 s47, {hex(f32bits(2.0**64))}")
    a(f"v_mov_b32 v{T0}, v{O+8}")
    a(f"v_mov_b32 v{T1}, v{O+8}")
    a("s_nop 1")
    a(f"v_permlane32_swap_b32 v{T0}, v{T1}")
    a(f"v_cmp_le_f32 vcc, s46, v{T1}")
    a(f"v_cmp_ge_f32 s[54:55], s47, v{T1}")
    a("s_and_b64 s[54:55], s[54:55], vcc")
    a("s_cmp_eq_u64 s[54:55], -1")
    if X=="": a("s_cbranch_scc0 L_att_slow")
    a.label("L_att_fin")
    a(f"v_rcp_f32 v{T1}, v{T1}")
    a("s_waitcnt lgkmcnt(0)")
    for r in range(12): a(f"v_mul_f32 v{O+r}, v{O+r}, v{T1}")
    for q in range(6): a(f"v_cvt_pk_bf16_f32 v{q}, v{O+2*q}, v{O+2*q+1}")
    a(f"buffer_store_dwordx4 v[0:3], v{OA}, s[{sWS}:{sWS+3}], s6 offen sc1")
    a("s_mov_b32 exec_hi, 0")
    a(f"buffer_store_dwordx2 v[4:5], v{OB}, s[{sWS}:{sWS+3}], s7 offen sc1")
    a("s_mov_b64 exec, -1")
    a("s_waitcnt vmcnt(2)")
    lds_add(a, cWO, T0)
    def slow():
        a.label("L_att_slow")
        def scores(t):
            a(f"buffer_load_dwordx4 {vr(KM[0],4)}, v{L16}, s[{sWS}:{sWS+3}], s56 offen offset:{koff(t)} sc1")
            a(f"buffer_load_dwordx4 {vr(KT[0],4)}, v{L16}, s[{sWS}:{sWS+3}], s56 offen offset:{toff(t)} sc1")
            a("s_waitcnt vmcnt(0)")
            a(f"v_mfma_f32_32x32x16_bf16 {vr(S[0],16)}, {vr(KM[0],4)}, {vr(Q,4)}, 0")
            a(f"v_mfma_f32_32x32x8_bf16 {vr(S[0],16)}, {vr(KT[0]+2*t,2)}, {vr(QT,2)}, {vr(S[0],16)}")
            a("s_nop 15")
        a("s_waitcnt vmcnt(0) lgkmcnt(0)")
        a(f"v_mov_b32 v{MX}, 0xff800000")
        a(f"s_mov_b32 s{sIT}, 0")
        a(f"s_mov_b32 s56, s{sKV}")
        a.label("L_att_slow1")
        for t in range(2):
            scores(t)
            for r in range(0,16,2): a(f"v_max3_f32 v{MX}, v{S[0]+r}, v{S[0]+r+1}, v{MX}")
        a(f"s_add_u32 s56, s56, {PS}")
        a(f"s_add_u32 s{sIT}, s{sIT}, 1")
        a(f"s_cmp_lt_u32 s{sIT}, 32")
        a("s_cbranch_scc1 L_att_slow1")
        a(f"v_mov_b32 v{T0}, v{MX}")
        a("s_nop 1")
        a(f"v_permlane32_swap_b32 v{T0}, v{MX}")
        a("s_nop 1")
        a(f"v_max_f32 v{MX}, v{MX}, v{T0}")
        setup_av()
        for r in range(16): a(f"v_mov_b32 v{O+r}, 0")
        a(f"s_mov_b32 s{sIT}, 0")
        a(f"s_mov_b32 s56, s{sKV}")
        a.label("L_att_slow2")
        for t in range(2):
            a(f"s_add_u32 s57, s56, {2560+1280*t}")
            a(f"s_mov_b64 exec, s[{sVM}:{sVM+1}]")
            a(f"buffer_load_dwordx4 {vr(V[0],4)}, v{AV}, s[{sWS}:{sWS+3}], s57 offen sc1")
            a(f"buffer_load_dwordx4 {vr(V[0]+4,4)}, v{AV}, s[{sWS}:{sWS+3}], s57 offen offset:640 sc1")
            a("s_mov_b64 exec, -1")
            scores(t)
            for r in range(16): a(f"v_sub_f32 v{S[0]+r}, v{S[0]+r}, v{MX}")
            for r in range(16): a(f"v_exp_f32 v{S[0]+r}, v{S[0]+r}")
            a("s_nop 2")
            a(f"v_smfmac_f32_32x32x32_bf16 {vr(O,16)}, {vr(V[0],4)}, {vr(S[0],8)}, v{IDX}")
            a(f"v_smfmac_f32_32x32x32_bf16 {vr(O,16)}, {vr(V[0]+4,4)}, {vr(S[0]+8,8)}, v{IDX}")
            a("s_nop 15")
        a(f"s_add_u32 s56, s56, {PS}")
        a(f"s_add_u32 s{sIT}, s{sIT}, 1")
        a(f"s_cmp_lt_u32 s{sIT}, 32")
        a("s_cbranch_scc1 L_att_slow2")
        a(f"v_mov_b32 v{T0}, v{O+8}")
        a(f"v_mov_b32 v{T1}, v{O+8}")
        a("s_nop 1")
        a(f"v_permlane32_swap_b32 v{T0}, v{T1}")
        a("s_nop 1")
        a("s_branch L_att_fin")
    return slow

def gen_final(a):
    T0,T1,T2,T3=8,9,10,11
    sFT=49
    AM,AT,L8,RA,SW,FA=12,13,14,15,16,17
    LL=18; SR=[20,21,22]; GO=[23,24,25]; FL=26
    ACC=28; OF=48
    WB=[88+20*k for k in range(8)]
    WB=WB+[WB[0],WB[1]]
    a(f"s_lshr_b32 s{sFT}, s{sS}, 2")
    a(f"s_and_b32 s56, s{sW}, 3")
    a(f"s_lshr_b32 s57, s{sW}, 2")
    a(f"v_bfe_u32 v{T1}, v{VL}, 2, 2")
    a(f"v_and_b32 v{T2}, 3, v{VL}")
    a(f"v_lshrrev_b32 v{T3}, 5, v{VL}")
    a(f"v_mul_u32_u24 v{AM}, 20, v{T3}")
    a(f"v_bfe_u32 v{T3}, v{VL}, 4, 1")
    a(f"v_lshl_add_u32 v{AM}, v{T3}, 2, v{AM}")
    a(f"v_add_u32 v{AM}, v{AM}, v{T1}")
    a(f"v_mul_u32_u24 v{AM}, 160, v{AM}")
    a(f"v_lshl_add_u32 v{AM}, v{T2}, 3, v{AM}")
    a(f"v_lshrrev_b32 v{T3}, 4, v{VL}")
    a(f"v_mul_u32_u24 v{AT}, 20, v{T3}")
    a(f"v_add_u32 v{AT}, v{AT}, v{T1}")
    a(f"v_mul_u32_u24 v{AT}, 160, v{AT}")
    a(f"v_lshl_add_u32 v{AT}, v{T2}, 3, v{AT}")
    a(f"s_mul_i32 s55, s57, {320*160}")
    a(f"s_add_u32 s55, s55, {WOB}")
    a(f"v_add_u32 v{AM}, s55, v{AM}")
    a(f"v_add_u32 v{AT}, s55, v{AT}")
    a(f"s_lshl_b32 s58, s{sH}, 2")
    a("s_add_u32 s58, s58, s56")
    a(f"v_lshlrev_b32 v{LL}, 4, v{VL}")
    a(f"v_lshlrev_b32 v{L8}, 3, v{VL}")
    a(f"v_and_b32 v{FA}, 31, v{VL}")
    a(f"v_lshlrev_b32 v{FA}, 3, v{FA}")
    a(f"s_lshl_b32 s54, s{sXC}, 8")
    a(f"s_add_u32 s54, s54, {WS_F2}")
    a(f"v_add_u32 v{FA}, s54, v{FA}")
    v_spread(a, FA, T1)
    for r in range(0,20,2): a(f"v_mov_b64 {vr(ACC+r,2)}, 0")
    a("s_mul_i32 s59, s58, 20480")
    a(f"s_add_u32 s59, s59, {WS_O}")
    a("s_lshl_b32 s55, s57, 13")
    a("s_add_u32 s60, s59, s55")
    a("s_add_u32 s61, s60, 4096")
    a("s_lshl_b32 s55, s57, 11")
    a("s_add_u32 s62, s59, s55")
    a(f"s_add_u32 s62, s62, {16*1024}")
    STGO = 124928
    a("s_mul_i32 s55, s56, 5120")
    a(f"v_add_u32 v{RA}, s55, v{LL}")
    a(f"v_and_b32 v{T1}, 15, v{VL}")
    a(f"v_mul_u32_u24 v{T1}, 176, v{T1}")
    a(f"v_lshrrev_b32 v{T2}, 4, v{VL}")
    a(f"v_lshl_add_u32 v{T1}, v{T2}, 3, v{T1}")
    a("s_mul_i32 s55, s56, 2816")
    a(f"s_add_u32 s55, s55, {STGO}")
    a(f"v_add_u32 v{SW}, s55, v{T1}")
    for n in range(3):
        a(f"v_add_u32 v{T2}, {64*n}, v{VL}")
        a(f"v_mul_u32_u24 v{T3}, 52429, v{T2}")
        a(f"v_lshrrev_b32 v{T3}, 19, v{T3}")
        a(f"v_mul_u32_u24 v{SR[n]}, 10, v{T3}")
        a(f"v_sub_u32 v{T2}, v{T2}, v{SR[n]}")
        a(f"v_lshlrev_b32 v{T2}, 4, v{T2}")
        a(f"v_mul_u32_u24 v{SR[n]}, 176, v{T3}")
        a(f"v_add3_u32 v{SR[n]}, v{SR[n]}, v{T2}, s55")
        a(f"v_mul_u32_u24 v{GO[n]}, 2560, v{T3}")
        a(f"v_add_u32 v{GO[n]}, v{GO[n]}, v{T2}")
    a(f"s_mul_i32 s53, s{sFT}, 160")
    a(f"s_mul_i32 s54, s58, {16*2560}")
    a("s_add_u32 s53, s53, s54")
    a("s_add_u32 s53, s53, 1280")
    def wreads(k):
        for f in range(5):
            for sec in range(2):
                if k<8: ad=AM; off=(40*k+8*sec)*160+32*f
                else:   ad=AT; off=(160*(k-8)+80*sec+16)*160+32*f
                a(f"ds_read_b64_tr_b16 {vr(WB[k]+4*f+2*sec,2)}, v{ad} offset:{off}")
    def mfs(k):
        for f in range(5):
            a(f"v_mfma_f32_16x16x32_bf16 {vr(ACC+4*f,4)}, {vr(WB[k]+4*f,4)}, {vr(OF+4*k,4)}, {vr(ACC+4*f,4)}")
    a("s_waitcnt vmcnt(0)")
    lds_add_rtn(a, cF, T0, 63)
    stamp(a,10)
    a("s_cmp_lg_u32 s63, 7")
    a("s_cbranch_scc1 L_f_nf")
    a(f"s_lshl_b32 s54, s{sFT}, 8")
    a(f"s_lshl_b32 s55, s{sH}, 3")
    a("s_add_u32 s54, s54, s55")
    a(f"s_add_u32 s54, s54, {WS_F2}")
    flag_store(a, 54, T0)
    a(f"buffer_load_dwordx2 {vr(FL,2)}, v{FA}, s[{sWS}:{sWS+3}], 0 offen {FLD}")
    a("s_branch L_f_w")
    a.label("L_f_nf")
    lds_wait(a, cWO, 8, T0)
    a.label("L_f_w")
    for k in range(8): wreads(k)
    a("s_cmp_lg_u32 s63, 7")
    a("s_cbranch_scc1 L_f_np")
    a("s_waitcnt vmcnt(0)")
    a(f"v_cmp_eq_u64 s[46:47], s[{sN0}:{sN1}], {vr(FL,2)}")
    a("s_cmp_eq_u64 s[46:47], -1")
    a("s_cbranch_scc1 L_f_np")
    poll(a, [FA], FL, int(os.environ.get("PSL","3")))
    a.label("L_f_np")
    a("s_barrier")
    stamp(a,11)
    for k in range(10):
        so = 60 if k<4 else (61 if k<8 else 62)
        if k<8: a(f"buffer_load_dwordx4 {vr(OF+4*k,4)}, v{LL}, s[{sWS}:{sWS+3}], s{so} offen offset:{1024*(k&3)} sc1")
        else:
            for jq in range(2):
                a(f"buffer_load_dwordx2 {vr(OF+4*k+2*jq,2)}, v{L8}, s[{sWS}:{sWS+3}], s{so} offen offset:{1024*(k-8)+512*jq} sc1")
    for k in range(10):
        vm = 11-k if k<8 else (2 if k==8 else 0)
        a(f"s_waitcnt vmcnt({vm})" + (" lgkmcnt(0)" if k in (0,8) else ""))
        mfs(k)
        if k<2: wreads(8+k)
    stamp(a,12)
    a("s_cmp_eq_u32 s57, 1")
    a("s_cbranch_scc1 L_f_lo")
    a("s_nop 6")
    for f in range(5):
        a(f"ds_write_b128 v{RA}, {vr(ACC+4*f,4)} offset:{1024*f}")
    a("s_waitcnt lgkmcnt(0)")
    a("s_barrier")
    a("s_branch L_f_end")
    a.label("L_f_lo")
    a("s_barrier")
    P=128
    for f in range(5):
        a(f"ds_read_b128 {vr(P+4*f,4)}, v{RA} offset:{1024*f}")
    a("s_nop 1")
    for f in range(5):
        a(f"s_waitcnt lgkmcnt(4)")
        for r in range(0,4,2): a(f"v_pk_add_f32 {vr(P+4*f+r,2)}, {vr(P+4*f+r,2)}, {vr(ACC+4*f+r,2)}")
        a(f"v_cvt_pk_bf16_f32 v{72+2*f}, v{P+4*f}, v{P+4*f+1}")
        a(f"v_cvt_pk_bf16_f32 v{73+2*f}, v{P+4*f+2}, v{P+4*f+3}")
        a(f"ds_write_b64 v{SW}, {vr(72+2*f,2)} offset:{32*f}")
    for n in range(3):
        a(f"ds_read_b128 {vr(88+4*n,4)}, v{SR[n]}")
    for n in range(3):
        a(f"s_waitcnt lgkmcnt({2-n})")
        if n==2: a("s_mov_b32 exec_hi, 0")
        a(f"buffer_store_dwordx4 {vr(88+4*n,4)}, v{GO[n]}, s[{sB_}:{sB_+3}], s53 offen {os.environ.get('OFL','')}")
    a.label("L_f_end")
    prof_end(a,13)

def build():
    a = Asm()
    K=NAME+"_kernel"
    a.raw(f".globl {K}"); a.raw(".p2align 8"); a.raw(f".type {K},@function"); a.label(K)
    if PROF: a("s_memrealtime s[100:101]")
    a("s_load_dwordx16 s[64:79], s[0:1], 0")
    a("s_load_dwordx8 s[80:87], s[0:1], 64")
    a("s_load_dwordx2 s[88:89], s[0:1], 96")
    a("s_cmp_ge_u32 s2, 256")
    a("s_cbranch_scc1 L_end")
    a(f"v_lshrrev_b32 v1, 6, v0")
    a(f"v_and_b32 v{VL}, 63, v0")
    a(f"v_readfirstlane_b32 s{sW}, v1")
    if DIAG!=-2:
        a("s_memrealtime s[100:101]")
        a("s_waitcnt lgkmcnt(0)")
    if PROF:
        a(f"v_mov_b32 v{PV}, 0")
    a("s_and_b32 s30, s2, 0x38")
    a("s_cbranch_scc1 L_nopf")
    a("s_getpc_b64 s[28:29]")
    a.label("L_pc")
    a("v_lshlrev_b32 v2, 7, v0")
    a("v_min_u32 v2, (L_codeend-L_pc-4), v2")
    a("global_load_dword v249, v2, s[28:29]")
    a.label("L_nopf")
    a(f"s_and_b32 s{sXC}, s2, 7")
    a(f"s_lshr_b32 s{sS}, s2, 3")
    a(f"s_and_b32 s30, s{sXC}, 3")
    a("s_lshl_b32 s30, s30, 2")
    a(f"s_and_b32 s31, s{sS}, 3")
    a(f"s_add_u32 s{sMT}, s30, s31")
    a(f"s_lshl_b32 s30, s{sXC}, 2")
    a(f"s_add_u32 s{sH}, s30, s31")
    a(f"s_lshr_b32 s30, s{sXC}, 2")
    a("s_lshl_b32 s30, s30, 3")
    a(f"s_lshr_b32 s31, s{sS}, 2")
    a(f"s_add_u32 s{sNT}, s30, s31")
    a("s_lshl_b32 s31, s31, 3")
    a(f"s_add_u32 s{sT}, s31, s{sW}")
    a(f"s_cmp_eq_u32 s{sNT}, 15")
    a("s_cbranch_scc1 L_spare")
    a(f"s_cmp_lt_u32 s{sW}, 4")
    a("s_cbranch_scc1 L_compute")
    gen_aux(a)
    a.label("L_spare")
    gen_spare(a)
    a(f"s_cmp_lt_u32 s{sW}, 4")
    a("s_cbranch_scc1 L_att")
    a("s_setprio 1")
    a("s_branch L_att1")
    a.label("L_compute")
    gen_compute(a)
    slow = gen_att(a)
    gen_final(a)
    a.label("L_end")
    a("s_endpgm")
    a.label("L_codeend")
    slow()
    hdr = open(f"cdna_kernels/{NAME}.s.ref").read().split("; Override launch")[0]
    out = hdr + f"; @launch grid=(256,1,1) block=(512,1,1) lds={LDS}\n"
    out += '.amdgcn_target "amdgcn-amd-amdhsa--gfx950"\n.text\n' + a.text()
    out += f""".section .rodata,"a"
.p2align 6
.amdhsa_kernel {K}
  .amdhsa_next_free_vgpr 256
  .amdhsa_next_free_sgpr 102
  .amdhsa_accum_offset 256
  .amdhsa_group_segment_fixed_size 0
  .amdhsa_kernarg_size 104
  .amdhsa_user_sgpr_count 2
  .amdhsa_user_sgpr_kernarg_segment_ptr 1
  .amdhsa_system_sgpr_workgroup_id_x 1
.end_amdhsa_kernel
"""
    return out
if __name__ == "__main__":
    dst = sys.argv[1] if len(sys.argv) > 1 else f"f46.s"
    open(dst, "w").write(build())
    print("wrote", dst)
```

```python
import sys, math, struct, os
NAME="concat_heads__ssm_conv_s4d__mha_block__prompt"
def f32bits(x): return struct.unpack("<I", struct.pack("<f", x))[0]
class Asm:
    def __init__(self): self.l = []; self.n=0
    def __call__(self, s):
        for x in s.split("\n"):
            x = x.strip()
            if x: self.l.append("    " + x)
    def label(self, n): self.l.append(n + ":")
    def raw(self, s): self.l.append(s)
    def uid(self, p): self.n+=1; return f"L_{p}_{self.n}"
    def text(self): return "\n".join(self.l) + "\n"
def vr(b, n): return f"v[{b}:{b+n-1}]" if n > 1 else f"v{b}"
def sr(b, n): return f"s[{b}:{b+n-1}]" if n > 1 else f"s{b}"

PROF = int(os.environ.get("PROF","0"))
X = os.environ.get("X","")
FLD = os.environ.get("FLD","sc1"); FST = os.environ.get("FST","sc1")
PS   = 5120
HKV  = 32*PS
WS_Q  = 0
WS_KV = 0x280000
WS_O  = 0x7B0000
WS_UT = 0xA40000
WS_YT = 0xCD0000
WS_FL = 0x1000000
FG = int(os.environ.get('FG','5')); FS = int(os.environ.get('FS','4352'))
WS_F1 = 0
WS_FU = WS_F1 + 0x1000
WS_FY = WS_F1 + 0x2000
WS_F2 = WS_F1 + 0x3000
WS_PROF = 0xF80000
WS_SIZE = 0x2000000
LDS = 163840
CTL = LDS-128
cT = CTL
cV,cE,cP,cF = [CTL+48+4*i for i in range(4)]
cWO = CTL+40
cG = CTL+44
NA = int(os.environ.get('NA','3'))
DX=220; DW=234; sLX=46; sLW=47; sLD=3; sLE=1; sST0=0
cM = CTL+112
cH = CTL+96
CTB = 71680
HOF = 5120
cPROG = CTL+64
WOB = 20480
TRS = 99072
TBL = 111360
XST = 1040; STG = 16*XST+16384; WOFF = 16*XST
UB0 = 92864; UBS = 8464; U1_OFF = 4224
RB0 = UB0+4*UBS; RBS = 9216; R1_OFF = 4640
pU,pLAR,pAIM,pCR,pCI,pLDT,pDSK,pX,pW,pWO,pOUT,pDBG,pWS = [64+2*i for i in range(13)]
sWS=16; sA=8; sB_=12; sC=20; sD_=24
sW,sMT,sNT,sWM,sWN,sXC,sS,sH,sT = 32,33,34,35,36,37,38,39,40
sN0,sN1=42,43
VL=250
PV=255
SPIN=1000000

def srd(a, s, ptr, size):
    a(f"s_mov_b32 s{s}, s{ptr}")
    a(f"s_and_b32 s{s+1}, s{ptr+1}, 0xffff")
    a(f"s_mov_b32 s{s+2}, {size}")
    a(f"s_mov_b32 s{s+3}, 0x00020000")

DIAG = int(os.environ.get("DIAG","-2"))
def stamp(a, idx):
    if DIAG==idx:
        a("s_memrealtime s[100:101]")
        a("s_waitcnt lgkmcnt(0)")
    if not PROF: return
    a("s_memrealtime s[96:97]")
    a("s_memtime s[98:99]")
    a("s_waitcnt lgkmcnt(0)")
    a(f"v_writelane_b32 v{PV}, s96, {2*idx}")
    a(f"v_writelane_b32 v{PV}, s98, {2*idx+1}")
def prof_end(a, idx):
    if DIAG!=-2:
        a("s_waitcnt vmcnt(0)")
        stamp(a, idx)
        if DIAG==-1: a(f"s_mov_b32 s100, s{sN0}")
        a("s_add_u32 s100, s100, 6000")
        a.label("L_diag")
        a("s_sleep 1")
        a("s_memrealtime s[96:97]")
        a("s_waitcnt lgkmcnt(0)")
        a("s_sub_u32 s96, s96, s100")
        a("s_cmp_lt_i32 s96, 0")
        a("s_cbranch_scc1 L_diag")
    if not PROF: return
    a("s_mov_b64 exec, -1")
    a("s_waitcnt vmcnt(0)")
    stamp(a, idx)
    a(f"v_writelane_b32 v{PV}, s100, 0")
    a(f"v_lshlrev_b32 v{PV-1}, 2, v{VL}")
    a(f"s_lshl_b32 s100, s2, 3")
    a(f"s_add_u32 s100, s100, s{sW}")
    a(f"s_lshl_b32 s100, s100, 7")
    a(f"s_add_u32 s100, s100, {WS_PROF}")
    a("s_mov_b32 exec_hi, 0")
    a(f"buffer_store_dword v{PV}, v{PV-1}, s[{sWS}:{sWS+3}], s100 offen")

def nonce_issue(a, v, vz):
    a(f"global_load_dwordx2 {vr(v,2)}, v{vz}, s[{pDBG}:{pDBG+1}] sc1")
def nonce_get(a, v, vz, first_issued):
    L=a.uid("ng"); D=a.uid("nd")
    a(f"s_mov_b32 s44, {SPIN}")
    if first_issued:
        a(f"s_branch {L}_w")
    a.label(L)
    nonce_issue(a, v, vz)
    a.label(L+"_w")
    a("s_waitcnt vmcnt(0)")
    a(f"v_readfirstlane_b32 s{sN0}, v{v}")
    a(f"v_readfirstlane_b32 s{sN1}, v{v+1}")
    a(f"s_cmp_lg_u32 s{sN1}, 0")
    a(f"s_cbranch_scc1 {D}")
    a("s_sleep 2")
    a("s_sub_u32 s44, s44, 1")
    a("s_cmp_lg_u32 s44, 0")
    a(f"s_cbranch_scc1 {L}")
    a.label(D)

def v_spread(a, v, t):
    a(f"v_lshrrev_b32 v{t}, {FG}, v{v}")
    a(f"v_mul_u32_u24 v{t}, {FS}, v{t}")
    a(f"v_and_b32 v{v}, {(1<<FG)-1}, v{v}")
    a(f"v_add_u32 v{v}, v{v}, v{t}")
    a(f"v_add_u32 v{v}, {WS_FL}, v{v}")
def flag_store(a, soff, t):
    a(f"s_lshr_b32 s31, s{soff}, {FG}")
    a(f"s_mul_i32 s31, s31, {FS}")
    a(f"s_and_b32 s{soff}, s{soff}, {(1<<FG)-1}")
    a(f"s_add_u32 s{soff}, s{soff}, s31")
    a(f"s_add_u32 s{soff}, s{soff}, {WS_FL}")
    a(f"v_mov_b32 v{t}, s{sN0}")
    a(f"v_mov_b32 v{t+1}, s{sN1}")
    FW=int(os.environ.get("FW","1"))
    a(f"v_lshlrev_b32 v{t+2}, 3, v{VL}")
    a(f"s_mov_b64 exec, {hex((1<<FW)-1)}")
    a(f"buffer_store_dwordx2 {vr(t,2)}, v{t+2}, s[{sWS}:{sWS+3}], s{soff} offen {FST}")
    a("s_mov_b64 exec, -1")

def poll(a, addrs, t, sl=6):
    L=a.uid("pl"); D=a.uid("pd")
    a(f"s_mov_b32 s44, {SPIN}")
    a.label(L)
    for k,ad in enumerate(addrs):
        a(f"buffer_load_dwordx2 {vr(t+2*k,2)}, v{ad}, s[{sWS}:{sWS+3}], 0 offen {FLD}")
    a("s_waitcnt vmcnt(0)")
    for k in range(len(addrs)):
        if k==0: a(f"v_cmp_eq_u64 s[46:47], s[{sN0}:{sN1}], {vr(t,2)}")
        else:
            a(f"v_cmp_eq_u64 vcc, s[{sN0}:{sN1}], {vr(t+2*k,2)}")
            a("s_and_b64 s[46:47], s[46:47], vcc")
    a("s_cmp_eq_u64 s[46:47], -1")
    a(f"s_cbranch_scc1 {D}")
    a(f"s_sleep {sl}")
    a("s_sub_u32 s44, s44, 1")
    a("s_cmp_lg_u32 s44, 0")
    a(f"s_cbranch_scc1 {L}")
    a.label(D)

def lds_add(a, addr, t, val=1):
    a(f"v_mov_b32 v{t}, {addr}")
    a(f"v_mov_b32 v{t+1}, {val}")
    a("s_mov_b64 exec, 1")
    a(f"ds_add_u32 v{t}, v{t+1}")
    a("s_mov_b64 exec, -1")
def lds_add_rtn(a, addr, t, sdst):
    a(f"v_mov_b32 v{t}, {addr}")
    a(f"v_mov_b32 v{t+1}, 1")
    a("s_mov_b64 exec, 1")
    a(f"ds_add_rtn_u32 v{t+1}, v{t}, v{t+1}")
    a("s_waitcnt lgkmcnt(0)")
    a(f"v_readfirstlane_b32 s{sdst}, v{t+1}")
    a("s_mov_b64 exec, -1")
def lds_wait(a, addr, val, t, sl=2):
    L=a.uid("lw"); D=a.uid("ld")
    a(f"s_mov_b32 s44, {SPIN}")
    a(f"v_mov_b32 v{t}, {addr}")
    a.label(L)
    a(f"ds_read_b32 v{t+1}, v{t}")
    a("s_waitcnt lgkmcnt(0)")
    a(f"v_readfirstlane_b32 s45, v{t+1}")
    a(f"s_cmp_ge_u32 s45, {val}")
    a(f"s_cbranch_scc1 {D}")
    if sl: a(f"s_sleep {sl}")
    a("s_sub_u32 s44, s44, 1")
    a("s_cmp_lg_u32 s44, 0")
    a(f"s_cbranch_scc1 {L}")
    a.label(D)

def transpose8(a, IN, OB):
    for d in range(4):
        for hi in range(2):
            cc=2*d+hi
            for e in range(4):
                a(f"v_perm_b32 v{OB+4*cc+e}, v{IN+4*(2*e+1)+d}, v{IN+4*(2*e)+d}, s{54+hi}")

def w_tr_addr(a, dst, t0, t1, t2, j):
    a(f"v_bfe_u32 v{t0}, v{VL}, 2, 2")
    a(f"v_bfe_u32 v{t1}, v{VL}, 4, 1")
    a(f"v_lshlrev_b32 v{t1}, 1, v{t1}")
    a(f"v_bfe_u32 v{t2}, v{VL}, 1, 1")
    a(f"v_add_u32 v{t1}, v{t1}, v{t2}")
    a(f"s_lshl_b32 s30, s{sWN}, 3")
    a(f"s_add_u32 s30, s30, {4*j}")
    a(f"v_add_u32 v{t1}, s30, v{t1}")
    a(f"v_lshlrev_b32 v{t2}, 2, v{t0}")
    a(f"v_xor_b32 v{t1}, v{t1}, v{t2}")
    a(f"v_lshlrev_b32 v{t1}, 4, v{t1}")
    a(f"v_and_b32 v{t2}, 1, v{VL}")
    a(f"v_lshl_add_u32 v{t1}, v{t2}, 3, v{t1}")
    a(f"v_lshrrev_b32 v{t2}, 5, v{VL}")
    a(f"v_lshl_add_u32 v{t2}, v{t2}, 3, v{t0}")
    a(f"v_lshl_add_u32 v{t1}, v{t2}, 8, v{t1}")
    a(f"v_add_u32 v{dst}, {WOFF}, v{t1}")

def gen_compute(a):
    ACC=0; XF=64; WF=80; AX=200; AW=204; CX=206; CW=210; EA=212
    T0,T1,T2,T3,T4,T5=240,241,242,243,244,245
    loader_setup(a)
    for g in dma_groups():
        for x in g: a(x)
    a("s_barrier")
    a(f"s_and_b32 s{sWM}, s{sW}, 1")
    a(f"s_lshr_b32 s{sWN}, s{sW}, 1")
    a(f"v_mov_b32 v{T5}, 0")
    a(f"v_bfe_u32 v{T0}, v{VL}, 3, 2")
    a(f"v_mul_u32_u24 v{T0}, {XST}, v{T0}")
    a(f"v_and_b32 v{T1}, 7, v{VL}")
    a(f"v_lshl_add_u32 v{T0}, v{T1}, 7, v{T0}")
    a(f"v_lshrrev_b32 v{T2}, 5, v{VL}")
    a(f"v_lshl_add_u32 v{T0}, v{T2}, 4, v{T0}")
    a(f"s_mul_i32 s30, s{sWM}, {8*XST}")
    a(f"v_add_u32 v{T0}, s30, v{T0}")
    a(f"v_bfe_u32 v{T1}, v{VL}, 1, 1")
    a(f"v_lshl_add_u32 v{AX}, v{T1}, 6, v{T0}")
    a(f"v_xor_b32 v{T1}, 1, v{T1}")
    a(f"v_lshl_add_u32 v{AX+1}, v{T1}, 6, v{T0}")
    for j in range(2): w_tr_addr(a, AW+j, T0, T1, T2, j)
    for k in range(2): a(f"v_mov_b32 v{CX+k}, v{AX+k}")
    for k in range(2): a(f"v_mov_b32 v{CW+k}, v{AW+k}")
    a(f"s_lshl_b32 s56, s{sMT}, 1")
    a(f"s_add_u32 s56, s56, s{sWM}")
    a(f"s_lshl_b32 s57, s{sNT}, 7")
    a(f"s_lshl_b32 s58, s{sMT}, 3")
    a(f"s_add_u32 s57, s57, s58")
    a(f"s_add_u32 s57, s57, {WS_F1}")
    a(f"s_cmp_ge_u32 s{sNT}, 10")
    a("s_cbranch_scc1 L_c_vaddr")
    a(f"s_cmp_ge_u32 s{sNT}, 5")
    a(f"s_cselect_b32 s58, {HKV}, 0")
    a(f"s_cselect_b32 s59, {PS}, 0")
    a(f"s_cselect_b32 s60, {WS_KV}, 0")
    a(f"s_cselect_b32 s61, 5, 0")
    a(f"s_cselect_b32 s62, 1.0, {hex(f32bits(20**-0.5*math.log2(math.e)))}")
    a(f"s_cselect_b64 vcc, -1, 0")
    a(f"s_cselect_b32 s30, 0, 81920")
    a(f"s_cselect_b32 s31, 0, 2560")
    a("s_add_u32 s58, s58, s30")
    a("s_add_u32 s59, s59, s31")
    a(f"s_sub_u32 s61, s{sNT}, s61")
    a("s_lshl_b32 s61, s61, 4")
    a(f"s_lshl_b32 s30, s{sWN}, 3")
    a("s_add_u32 s61, s61, s30")
    a("s_mul_i32 s30, s56, s59")
    a("s_add_u32 s60, s60, s30")
    a(f"v_and_b32 v{T0}, 31, v{VL}")
    a(f"v_and_b32 v{T1}, 19, v{T0}")
    a(f"v_bfe_u32 v{T2}, v{T0}, 2, 1")
    a(f"v_lshl_add_u32 v{T1}, v{T2}, 3, v{T1}")
    a(f"v_bfe_u32 v{T2}, v{T0}, 3, 1")
    a(f"v_lshl_add_u32 v{T1}, v{T2}, 2, v{T1}")
    a(f"v_cndmask_b32 v{T0}, v{T0}, v{T1}, vcc")
    a(f"v_lshlrev_b32 v{T0}, 4, v{T0}")
    a(f"v_add_u32 v{T0}, s60, v{T0}")
    a(f"v_lshrrev_b32 v{T1}, 5, v{VL}")
    a(f"v_add_u32 v{T1}, s61, v{T1}")
    a("s_lshl_b32 s63, s58, 1")
    HS=247
    a(f"v_mov_b32 v{HS}, s58")
    for jp in range(4):
        e=EA+2*jp
        sm=90+2*jp if jp<3 else 28
        a(f"v_add_u32 v{T2}, {2*jp}, v{T1}")
        a(f"v_mul_u32_u24 v{T3}, 52429, v{T2}")
        a(f"v_lshrrev_b32 v{T3}, 18, v{T3}")
        a(f"v_mul_u32_u24 v{T4}, 5, v{T3}")
        a(f"v_sub_u32 v{T2}, v{T2}, v{T4}")
        a(f"v_mul_u32_u24 v{T3}, s63, v{T3}")
        a(f"v_add_u32 v{T3}, v{T3}, v{T0}")
        a(f"v_cmp_lt_u32 vcc, 2, v{T2}")
        a(f"v_cmp_eq_u32 s[{sm}:{sm+1}], 2, v{T2}")
        a(f"v_lshlrev_b32 v{T4}, 9, v{T2}")
        a(f"v_add_u32 v{T3}, v{T3}, v{T4}")
        a(f"v_subrev_u32 v{T4}, 1536, v{HS}")
        a(f"v_cndmask_b32 v{T4}, 0, v{T4}, vcc")
        a(f"v_add_u32 v{T3}, v{T3}, v{T4}")
        a(f"v_mov_b32 v{T4}, 1024")
        a(f"v_cndmask_b32 v{T2}, 0, v{T4}, s[{sm}:{sm+1}]")
        a(f"v_add_u32 v{e}, v{T3}, v{T2}")
        a(f"v_cndmask_b32 v{T4}, v{T4}, v{HS}, s[{sm}:{sm+1}]")
        a(f"v_add_u32 v{e+1}, v{e}, v{T4}")
    a("s_branch L_c_addrdone")
    a.label("L_c_vaddr")
    a(f"s_sub_u32 s61, s{sNT}, 10")
    a("s_lshl_b32 s61, s61, 7")
    a(f"s_lshl_b32 s30, s{sWN}, 6")
    a("s_add_u32 s61, s61, s30")
    a(f"s_mul_i32 s60, s56, {PS}")
    a(f"s_add_u32 s60, s60, {WS_KV+2560}")
    a(f"s_mov_b32 s58, {HKV}")
    a(f"v_lshrrev_b32 v{T0}, 5, v{VL}")
    a(f"v_mul_u32_u24 v{T0}, 320, v{T0}")
    a(f"v_add_u32 v{T0}, s60, v{T0}")
    a(f"v_and_b32 v{T1}, 31, v{VL}")
    a(f"v_add_u32 v{T1}, s61, v{T1}")
    for j in range(2):
        a(f"v_add_u32 v{T2}, {32*j}, v{T1}")
        a(f"v_mul_u32_u24 v{T3}, 52429, v{T2}")
        a(f"v_lshrrev_b32 v{T3}, 20, v{T3}")
        a(f"v_mul_u32_u24 v{T4}, 20, v{T3}")
        a(f"v_sub_u32 v{T2}, v{T2}, v{T4}")
        a(f"v_mul_u32_u24 v{T3}, s58, v{T3}")
        a(f"v_lshl_add_u32 v{T3}, v{T2}, 4, v{T3}")
        a(f"v_add_u32 v{EA+j}, v{T3}, v{T0}")
    for k in range(2,8): a(f"v_mov_b32 v{EA+k}, v{EA}")
    a.label("L_c_addrdone")
    for r in range(0,64,2): a(f"v_mov_b64 {vr(ACC+r,2)}, 0")
    srd(a, sWS, pWS, WS_SIZE)
    a(f"v_mov_b32 v228, {cG}")
    a("v_mov_b32 v229, 1")
    stamp(a,1)
    for g in dma_groups():
        for x in g: a(x)
    def sync4(L):
        a("s_mov_b64 exec, 1")
        a("ds_add_rtn_u32 v230, v228, v229")
        a(f"s_mov_b32 s44, {SPIN}")
        a("s_waitcnt lgkmcnt(0)")
        a("v_readfirstlane_b32 s45, v230")
        a("s_mov_b64 exec, -1")
        a("s_add_u32 s45, s45, 1")
        a("s_cmp_ge_u32 s45, s50")
        a(f"s_cbranch_scc1 {L}_d")
        a.label(L)
        a("ds_read_b32 v230, v228")
        a("s_sub_u32 s44, s44, 1")
        a("s_waitcnt lgkmcnt(0)")
        a("v_readfirstlane_b32 s45, v230")
        a("s_cmp_eq_u32 s44, 0")
        a("s_cselect_b32 s45, s50, s45")
        a("s_cmp_lt_u32 s45, s50")
        a(f"s_cbranch_scc1 {L}")
        a.label(f"{L}_d")
        a("s_add_u32 s50, s50, 4")
    a("s_mov_b32 s50, 4")
    a("s_waitcnt vmcnt(8)")
    sync4("L_c_s0")
    for g in dma_groups()[:int(os.environ.get("NT","2"))]:
        for x in g: a(x)
    def rd(ks):
        b=ks&1
        X=lambda i: f"ds_read_b128 {vr(XF+8*b+4*i,4)}, v{CX+(ks>>1)} offset:{4*XST*i+32*(ks&1)}"
        W=lambda j,sec: f"ds_read_b64_tr_b16 {vr(WF+8*b+4*j+2*sec,2)}, v{CW+j} offset:{4096*ks+1024*sec}"
        if "R" in globals()["X"]: return ["s_nop 0"]*6
        return [X(0),W(0,0),W(0,1),X(1),W(1,0),W(1,1)]
    def mf(ks, swap):
        b=ks&1; out=[]
        for j in range(2):
            for i in range(2):
                acc=vr(ACC+16*(2*j+i),16)
                X=vr(XF+8*b+4*i,4); W=vr(WF+8*b+4*j,4)
                if swap: out.append(f"v_mfma_f32_32x32x16_bf16 {acc}, {X}, {W}, {acc}")
                else:    out.append(f"v_mfma_f32_32x32x16_bf16 {acc}, {W}, {X}, {acc}")
        if "S" in globals()["X"]:
            out=[]
            for j in range(2):
                for i in range(2):
                    base=ACC+16*(2*j+i)+8*(ks&1)
                    X1=vr(XF+8*b+4*i,4); W1=vr(WF+8*b+4*j,4); X2=vr(XF+8*b+4*(1-i),4)
                    out.append(f"v_mfma_f32_16x16x32_bf16 {vr(base,4)}, {W1}, {X1}, {vr(base,4)}\nv_mfma_f32_16x16x32_bf16 {vr(base+4,4)}, {X1}, {W1}, {vr(base+4,4)}")
        if "M" in globals()["X"]: out=["s_nop 0"]*4
        return out
    def body(swap, L, early):
        a.label(L)
        if PROF and (early == (NA>3)):
            a("s_cmp_lg_u32 s49, 3")
            a(f"s_cbranch_scc1 {L}_pp")
            stamp(a,14)
            a.label(f"{L}_pp")
        NT=int(os.environ.get("NT","2"))
        G=dma_groups()[NT:] if early else []
        def D():
            if G:
                for x in G.pop(0): a(x)
        for ks in range(3):
            R=rd(ks+1); M=mf(ks,swap)
            a("s_waitcnt lgkmcnt(3)"); a(M[0]); a(R[0]); a(R[1]); D()
            a("s_waitcnt lgkmcnt(4)"); a(M[1]); a(R[2]); a(R[3]); D()
            a("s_waitcnt lgkmcnt(4)"); a(M[2]); a(R[4]); a(R[5])
            if ks==1:
                a(f"s_add_u32 s48, s48, {STG}")
                a(f"s_cmp_eq_u32 s48, {3*STG}")
                a("s_cselect_b32 s48, 0, s48")
            a(M[3]); D()
            if ks==2:
                for k in range(2): a(f"v_add_u32 v{CX+k}, s48, v{AX+k}")
        R=rd(0); M=mf(3,swap)
        a("s_waitcnt lgkmcnt(3)"); a(M[0])
        for k in range(2): a(f"v_add_u32 v{CW+k}, s48, v{AW+k}")
        if early:
            a("s_waitcnt lgkmcnt(0)"); a(M[1])
            a("s_waitcnt vmcnt(8)")
            a(f"s_cmp_eq_u32 s49, {NA-1}")
            a(f"s_cbranch_scc1 {L[:-1]}_b")
            sync4(L+"_s")
            for g in dma_groups()[:NT]:
                for x in g: a(x)
        else:
            a(f"s_cmp_eq_u32 s49, {NA}")
            a(f"s_cbranch_scc1 {L}_x")
            a.label(f"{L}_r")
            a("s_waitcnt lgkmcnt(0)"); a(M[1])
            a.label(f"{L}_b")
            a("s_barrier")
        a(R[0]); a(R[1]); a(R[2])
        a(M[2])
        a(R[3]); a(R[4]); a(R[5])
        a("s_add_u32 s49, s49, 1")
        if not early: a("s_cmp_lt_u32 s49, 10")
        a(M[3])
        if early: a(f"s_branch {L}")
        else: a(f"s_cbranch_scc1 {L}")
    def loop(swap, L):
        a("s_mov_b32 s48, 0")
        a("s_mov_b32 s49, 0")
        stamp(a,2)
        for x in rd(0): a(x)
        body(swap, L+"e", True)
        body(swap, L, False)
    def loop_x(L):
        a.label(f"{L}_x")
        a("s_waitcnt vmcnt(0)")
        nonce_issue(a, 248, T5)
        a(f"s_branch {L}_r")
    a(f"s_cmp_ge_u32 s{sNT}, 10")
    a("s_cbranch_scc1 L_c_v")
    loop(False, "L_c_qk")
    stamp(a,3)
    a("s_setprio 3")
    a("s_waitcnt lgkmcnt(0)")
    a("s_nop 11")
    PK=64
    a(f"s_cmp_ge_u32 s{sNT}, 5")
    a("s_cbranch_scc1 L_c_nosc")
    for r in range(0,64,2):
        a(f"v_pk_mul_f32 {vr(r,2)}, {vr(r,2)}, s[62:63] op_sel_hi:[1,0]")
    a.label("L_c_nosc")
    for j in range(2):
        for p in range(2):
            jp=2*j+p
            sm=90+2*jp if jp<3 else 28
            P=[PK+8*jp, PK+8*jp+4]
            for i in range(2):
                b=16*(2*j+i)+8*p
                for q in range(4):
                    a(f"v_cvt_pk_bf16_f32 v{P[i]+q}, v{b+2*q}, v{b+2*q+1}")
            a("s_nop 0")
            for i in range(2):
                a(f"v_permlane32_swap_b32 v{P[i]}, v{P[i]+2}")
                a(f"v_permlane32_swap_b32 v{P[i]+1}, v{P[i]+3}")
            a(f"s_mov_b64 exec, s[{sm}:{sm+1}]")
            a(f"v_swap_b32 v{P[0]+2}, v{P[1]}")
            a(f"v_swap_b32 v{P[0]+3}, v{P[1]+1}")
            a("s_mov_b64 exec, -1")
            for i in range(2):
                a(f"buffer_store_dwordx4 {vr(P[i],4)}, v{EA+2*jp+i}, s[{sWS}:{sWS+3}], 0 offen sc1")
    a("s_branch L_c_sig")
    loop_x("L_c_qk")
    loop_x("L_c_vl")
    a.label("L_c_v")
    loop(True, "L_c_vl")
    stamp(a,3)
    a("s_setprio 3")
    a("s_waitcnt lgkmcnt(0)")
    a("s_nop 11")
    n=0
    for j in range(2):
        for i in range(2):
            for s_ in range(2):
                b=16*(2*j+i)+8*s_
                p=PK+4*n; n+=1
                for q in range(4):
                    a(f"v_cvt_pk_bf16_f32 v{p+q}, v{b+2*q}, v{b+2*q+1}")
                a(f"buffer_store_dwordx4 {vr(p,4)}, v{EA+j}, s[{sWS}:{sWS+3}], 0 offen offset:{1280*i+640*s_} sc1")
    a.label("L_c_sig")
    def signal(tag):
        lds_add_rtn(a, cE, T0, 60)
        a("s_mov_b32 s61, 0")
        a("s_cmp_lg_u32 s60, 3")
        a(f"s_cbranch_scc1 L_c_post{tag}")
        flag_store(a, 57, T0)
        a("s_mov_b32 s61, 1")
        a.label(f"L_c_post{tag}")
        stamp(a,4)
    stamp(a,6)
    a("s_waitcnt vmcnt(8)")
    nonce_fast(a, 248, T5, "c")
    a("s_waitcnt vmcnt(0)")
    signal("n")

UT_SEG=int(os.environ.get("UTSEG","2"))
UA,UB,UD=238,239,176
def ut_setup(a):
    a(f"v_lshrrev_b32 v{UA}, 3, v{VL}")
    a(f"v_mul_u32_u24 v{UA}, 1280, v{UA}")
    a(f"v_and_b32 v{UB}, 7, v{VL}")
    a(f"v_lshl_add_u32 v{UA}, v{UB}, 4, v{UA}")
    a(f"v_bfe_u32 v{UB}, v{VL}, 2, 2")
    a(f"v_lshlrev_b32 v{UB}, 7, v{UB}")
    a(f"v_lshrrev_b32 v201, 4, v{VL}")
    a(f"v_lshl_add_u32 v{UB}, v201, 5, v{UB}")
    a(f"v_and_b32 v201, 3, v{VL}")
    a(f"v_lshl_add_u32 v{UB}, v201, 3, v{UB}")
    a(f"s_mul_i32 s94, s{sW}, 3072")
    a(f"s_add_u32 s94, s94, {TRS-4*3072}")
    a(f"v_add_u32 v{UB}, s94, v{UB}")
    a(f"v_lshlrev_b32 v201, 4, v{VL}")
    a("s_mul_i32 s95, s2, 10240")
    a(f"s_sub_u32 s90, s{sW}, 4")
    a(f"s_mov_b32 s91, s{sW}")
    a(f"s_add_u32 s92, s{sW}, 4")
    a("s_min_u32 s92, s92, 9")
def ut_dma(a):
    for n in range(3):
        a(f"s_add_u32 m0, s94, {1024*n}")
        a(f"s_lshl_b32 s30, s{90+n}, 7")
        a("s_add_u32 s30, s30, s95")
        a(f"buffer_load_dwordx4 v{UA}, s[{sC}:{sC+3}], s30 offen lds")
def ut_store(a):
    for n in range(3):
        for sec in range(2):
            a(f"ds_read_b64_tr_b16 {vr(UD+4*n+2*sec,2)}, v{UB} offset:{1024*n+512*sec}")
    a("s_waitcnt lgkmcnt(0)")
    for n in range(3):
        a(f"s_lshl_b32 s30, s{90+n}, 10")
        a("s_add_u32 s30, s30, s95")
        a(f"s_add_u32 s30, s30, {WS_UT}")
        a(f"buffer_store_dwordx4 {vr(UD+4*n,4)}, v201, s[{sWS}:{sWS+3}], s30 offen sc1")
def nonce_fast(a, v, vz, tag):
    a(f"v_readfirstlane_b32 s{sN0}, v{v}")
    a(f"v_readfirstlane_b32 s{sN1}, v{v+1}")
    a(f"s_cmp_lg_u32 s{sN1}, 0")
    a(f"s_cbranch_scc1 L_nf_{tag}")
    nonce_get(a, v, vz, False)
    a.label(f"L_nf_{tag}")

def gen_spare(a):
    T0,ZR=240,244
    a(f"v_mov_b32 v{ZR}, 0")
    a(f"v_lshlrev_b32 v{T0}, 2, v{VL}")
    a(f"v_min_u32 v{T0}, 124, v{T0}")
    a(f"v_add_u32 v{T0}, {CTL}, v{T0}")
    ut_setup(a)
    a("s_waitcnt lgkmcnt(0)")
    a(f"ds_write_b32 v{T0}, v{ZR}")
    srd(a, sWS, pWS, WS_SIZE)
    srd(a, sC, pU, 2048*1280)
    a(f"s_cmp_lt_u32 s{sW}, 4")
    a("s_cbranch_scc1 L_sp_d")
    ut_dma(a)
    a("s_waitcnt vmcnt(0)")
    ut_store(a)
    a.label("L_sp_d")
    nonce_get(a, 246, ZR, False)
    a("s_waitcnt lgkmcnt(0)")
    a("s_barrier")
    a("s_mov_b32 s61, 0")
    a(f"s_cmp_lg_u32 s{sW}, 0")
    a("s_cbranch_scc1 L_sp_e")
    a("s_lshl_b32 s53, s2, 3")
    a(f"s_add_u32 s53, s53, {WS_FU}")
    flag_store(a, 53, T0)
    a("s_mov_b32 s61, 1")
    a.label("L_sp_e")
    stamp(a,4)

LOG2E = math.log2(math.e)
def exp_bf16(a, dst, src, t0, t1, sLh, sLl, sLn2):
    a(f"v_mul_f32 v{t0}, s{sLh}, v{src}")
    a(f"v_fma_f32 v{t1}, v{src}, s{sLh}, -v{t0}")
    a(f"v_fma_f32 v{t1}, v{src}, s{sLl}, v{t1}")
    a(f"v_exp_f32 v{t0}, v{t0}")
    a(f"v_mul_f32 v{t1}, s{sLn2}, v{t1}")
    a(f"v_fma_f32 v{t0}, v{t0}, v{t1}, v{t0}")
    a(f"v_cvt_pk_bf16_f32 v{t0}, v{t0}, v{t0}")
    a(f"v_lshlrev_b32 v{dst}, 16, v{t0}")
def cmul(a, d, x, w, t):
    a(f"v_pk_mul_f32 {vr(t,2)}, {vr(x,2)}, {vr(w,2)} op_sel:[0,0] op_sel_hi:[0,1]")
    a(f"v_pk_fma_f32 {vr(d,2)}, {vr(x,2)}, {vr(w,2)}, {vr(t,2)} op_sel:[1,1,0] op_sel_hi:[1,0,1] neg_lo:[0,1,0]")
def cpow(a, d, al, be, mult, t0, t1):
    m = hex(f32bits(float(mult)))
    a(f"v_mul_f32 v{t0}, {m}, v{al}")
    a(f"v_mul_f32 v{t1}, {m}, v{be}")
    a(f"v_exp_f32 v{t0}, v{t0}")
    a(f"v_fract_f32 v{t1}, v{t1}")
    a(f"v_cos_f32 v{d}, v{t1}")
    a(f"v_sin_f32 v{d+1}, v{t1}")
    a("s_nop 0")
    a(f"v_mul_f32 v{d}, v{d}, v{t0}")
    a(f"v_mul_f32 v{d+1}, v{d+1}, v{t0}")

sCH=50; sRB=51; sTB=53; sUB=93
UR=176
PRM=144
def param_loads(a, T0, T1):
    a(f"v_lshlrev_b32 v{T0}, 2, v{VL}")
    a(f"s_lshl_b32 s30, s{sCH}, 8")
    a(f"v_add_u32 v{T0}, s30, v{T0}")
    a(f"s_lshl_b32 s30, s{sCH}, 1")
    a(f"v_mov_b32 v{T1}, s30")
    a("s_waitcnt lgkmcnt(0)")
    a(f"global_load_ushort v{PRM+4}, v{T1}, s[{pLDT}:{pLDT+1}]")
    for k,p in enumerate((pLAR,pAIM,pCR,pCI)):
        a(f"global_load_dword v{PRM+k}, v{T0}, s[{p}:{p+1}]")
    a(f"global_load_ushort v{PRM+5}, v{T1}, s[{pDSK}:{pDSK+1}]")

def gen_kgen(a, second, scalar=False, sbase=None, KEEP=152, first=True):
    P=PRM
    T0,T1,T2,T3=8,9,10,11
    TW=15; TR=20; DT=21; DSK=22; AL,BE=23,7
    W1,G=0,2
    TMP=[12,16,18,150]
    PKR=24; ACC=32; VAL=48; BF=112; AF=160
    sLh,sLl,sLn2,sI2P=24,25,26,27
    def cm(ops):
        if scalar:
            for k,(d,x,w) in enumerate(ops):
                a(f"v_mul_f32 v{TMP[k]}, v{x}, v{w}")
                a(f"v_mul_f32 v{TMP[k]+1}, v{x}, v{w+1}")
            for k,(d,x,w) in enumerate(ops):
                assert d!=w
                a(f"v_fma_f32 v{d}, -v{x+1}, v{w+1}, v{TMP[k]}")
                a(f"v_fma_f32 v{d+1}, v{x+1}, v{w}, v{TMP[k]+1}")
            return
        for k,(d,x,w) in enumerate(ops):
            a(f"v_pk_mul_f32 {vr(TMP[k],2)}, {vr(x,2)}, {vr(w,2)} op_sel:[0,0] op_sel_hi:[0,1]")
        for k,(d,x,w) in enumerate(ops):
            a(f"v_pk_fma_f32 {vr(d,2)}, {vr(x,2)}, {vr(w,2)}, {vr(TMP[k],2)} op_sel:[1,1,0] op_sel_hi:[1,0,1] neg_lo:[0,1,0]")
    Y=lambda b: VAL+2*b
    C0=4
    TWS=[0,1,2,3]; TRS_=[4,5]
    if sbase is not None:
        a(f"v_bfe_u32 v{T0}, v{VL}, 1, 2")
        a(f"v_lshlrev_b32 v{T0}, 4, v{T0}")
        a(f"v_lshl_add_u32 v{T0}, v{VL}, 6, v{T0}")
        a(f"v_add_u32 v{TWS[0]}, s{sbase}, v{T0}")
        for q in range(1,4): a(f"v_xor_b32 v{TWS[q]}, {16*q}, v{TWS[0]}")
        a(f"v_lshrrev_b32 v{T0}, 5, v{VL}")
        a(f"v_bfe_u32 v{T1}, v{VL}, 2, 2")
        a(f"v_lshl_add_u32 v{T0}, v{T0}, 3, v{T1}")
        a(f"v_bfe_u32 v{T1}, v{VL}, 4, 1")
        a(f"v_bfe_u32 v{T2}, v{VL}, 1, 1")
        a(f"v_lshl_add_u32 v{T1}, v{T1}, 1, v{T2}")
        a(f"v_bfe_u32 v{T2}, v{VL}, 3, 1")
        a(f"v_xor_b32 v{T1}, v{T1}, v{T2}")
        a(f"v_lshlrev_b32 v{T1}, 4, v{T1}")
        a(f"v_lshl_add_u32 v{T0}, v{T0}, 6, v{T1}")
        a(f"v_and_b32 v{T1}, 1, v{VL}")
        a(f"v_lshl_add_u32 v{T0}, v{T1}, 3, v{T0}")
        a(f"v_add_u32 v{TRS_[0]}, s{sbase}, v{T0}")
        a(f"v_xor_b32 v{TRS_[1]}, 32, v{TRS_[0]}")
    if not second:
        hi = struct.unpack("<f", struct.pack("<f", LOG2E))[0]; lo = LOG2E-hi
        a(f"s_mov_b32 s{sLh}, {hex(f32bits(hi))}")
        a(f"s_mov_b32 s{sLl}, {hex(f32bits(lo))}")
        a(f"s_mov_b32 s{sLn2}, {hex(f32bits(math.log(2.0)))}")
        a(f"s_mov_b32 s{sI2P}, {hex(f32bits(1/(2*math.pi)))}")
        a(f"v_lshlrev_b32 v{P+4}, 16, v{P+4}")
        exp_bf16(a, DT, P+4, T0, T1, sLh, sLl, sLn2)
        D2=22
        a(f"v_add_f32 v{D2}, v{DT}, v{DT}")
        for hf in range(2):
            X=[60,61,62,63]
            for k in range(4):
                if hf: a(f"v_and_b32 v{X[k]}, 0xffff0000, v{P+k}")
                else:  a(f"v_lshlrev_b32 v{X[k]}, 16, v{P+k}")
            exp_bf16(a, X[0], X[0], T2, T3, sLh, sLl, sLn2)
            d8,d1,dg,dc = (KEEP,KEEP+2,KEEP+4,KEEP+6) if hf else (212,214,216,218)
            a(f"v_mul_f32 v{AL}, v{X[0]}, v{DT}")
            a(f"v_mul_f32 v{BE}, v{X[1]}, v{DT}")
            a(f"v_mul_f32 v{AL}, s{sLh}, v{AL}")
            a(f"v_mul_f32 v{BE}, s{sI2P}, v{BE}")
            a(f"v_sub_f32 v{AL}, 0, v{AL}")
            a(f"v_mul_f32 v{dc}, v{X[2]}, v{D2}")
            a(f"v_mul_f32 v{dc+1}, v{X[3]}, v{D2}")
            c1=Asm(); cpow(c1, d8, AL, BE, 8, T0, T1)
            c2=Asm(); cpow(c2, d1, AL, BE, 1, T2, T3)
            c3=Asm(); cpow(c3, dg, AL, BE, 256, 12, 13)
            for xs in zip(c1.l,c2.l,c3.l):
                for x in xs:
                    if "s_nop" not in x: a(x)
        return
    else:
        W1,G,C0=KEEP+2,KEEP+4,KEEP+6
        a(f"v_mov_b32 v{Y(1)}, v{KEEP}")
        a(f"v_mov_b32 v{Y(1)+1}, v{KEEP+1}")
    a(f"v_mov_b32 v{Y(0)}, 1.0")
    a(f"v_mov_b32 v{Y(0)+1}, 0")
    npk=[0]
    def pack(regs, q, comp, neg):
        p=PKR+4*(npk[0]&1); npk[0]+=1
        n_='-' if neg else ''
        for e in range(4): a(f"v_cvt_pk_bf16_f32 v{p+e}, {n_}v{regs[2*e]+comp}, {n_}v{regs[2*e+1]+comp}")
        a(f"ds_write_b128 v{TWS[q]}, {vr(p,4)} offset:{4096*comp}")
    def fr(F, ks):
        for sec in range(2):
            a(f"ds_read_b64_tr_b16 {vr(F+2*sec,2)}, v{TRS_[sec]} offset:{(16*ks+4*sec)*64}")
    TC=lambda c: VAL+2*c
    R1=lambda k: VAL+18+2*k
    R2=lambda h,k: VAL+28+6*h+2*k
    R3=lambda aa,k: VAL+40+4*(aa-4)+2*k
    W2,W4,G2,G4=8,10,20,22
    oct_=lambda q: [Y(b) for b in range(8*q,8*q+8)]
    cm([(Y(2),Y(1),Y(1)),(W2,W1,W1),(G2,G,G)])
    cm([(Y(3),Y(2),Y(1)),(Y(4),Y(2),Y(2)),(W4,W2,W2),(G4,G2,G2)])
    cm([(Y(b),Y(b-4),Y(4)) for b in (5,6,7,8)])
    cm([(Y(b),Y(b-4),Y(4)) for b in (9,10,11,12)])
    pack(oct_(0),0,0,False)
    cm([(Y(b),Y(b-4),Y(4)) for b in (13,14,15,16)])
    pack(oct_(0),0,1,False)
    cm([(Y(b),Y(b-4),Y(4)) for b in (17,18,19,20)])
    pack(oct_(1),1,0,False)
    cm([(Y(b),Y(b-4),Y(4)) for b in (21,22,23,24)])
    pack(oct_(1),1,1,False)
    cm([(Y(b),Y(b-4),Y(4)) for b in (25,26,27,28)])
    pack(oct_(2),2,0,False)
    cm([(Y(b),Y(b-4),Y(4)) for b in (29,30,31)]+[(TC(1),C0,W1)])
    pack(oct_(2),2,1,False)
    a(f"v_mov_b64 {vr(TC(0),2)}, {vr(C0,2)}")
    cm([(TC(2),C0,W2),(TC(3),TC(1),W2),(TC(4),C0,W4),(TC(5),TC(1),W4)])
    pack(oct_(3),3,0,False)
    cm([(TC(6),TC(2),W4),(TC(7),TC(3),W4),(TC(8),TC(4),W4),(R1(0),C0,G)])
    pack(oct_(3),3,1,False)
    for ks in range(4): fr(BF+4*ks, ks)
    cm([(R1(1),TC(2),G),(R1(2),TC(4),G),(R1(3),TC(6),G),(R1(4),TC(8),G)])
    for ks in range(4,8): fr(BF+4*ks, ks)
    r1=[R1(0),R1(0),R1(1),R1(2),R1(2),R1(2),R1(3),R1(4)]
    XO=[[TC(0),TC(1),TC(2),TC(3)]+r1[:4], [TC(4),TC(5),TC(6),TC(7)]+r1[4:],
        [R2(0,0),R2(0,1),R2(0,2),R3(4,0),R2(1,0),R2(1,1),R2(1,2),R3(6,0)],
        [R3(4,1),R3(5,0),R3(5,1),R3(5,1),R3(6,1),R3(7,0),R3(7,1),R3(7,1)]]
    pack(XO[0],0,0,False)
    cm([(R2(0,0),C0,G2),(R2(0,1),TC(4),G2),(R2(0,2),TC(8),G2),(R2(1,0),R1(0),G2)])
    pack(XO[1],1,0,False)
    cm([(R2(1,1),R1(2),G2),(R2(1,2),R1(4),G2),(R3(4,0),C0,G4),(R3(6,0),R2(0,0),G4)])
    pack(XO[0],0,1,True)
    cm([(R3(4,1),TC(8),G4),(R3(5,0),R1(0),G4),(R3(5,1),R1(4),G4)])
    pack(XO[2],2,0,False)
    cm([(R3(6,1),R2(0,2),G4),(R3(7,0),R2(1,0),G4),(R3(7,1),R2(1,2),G4)])
    pack(XO[1],1,1,True)
    pack(XO[3],3,0,False)
    for ks in range(4): fr(AF+4*ks, ks)
    def mf(ks,F): a(f"v_mfma_f32_32x32x16_bf16 {vr(ACC,16)}, {vr(F,4)}, {vr(BF+4*ks,4)}, {vr(ACC,16) if (ks or not first) else '0'}")
    pack(XO[2],2,1,True)
    a("s_waitcnt lgkmcnt(7)"); mf(0,AF)
    pack(XO[3],3,1,True)
    a("s_waitcnt lgkmcnt(6)"); mf(1,AF+4)
    for ks in range(4,6): fr(VAL+4*(ks-4), ks)
    a("s_waitcnt lgkmcnt(8)"); mf(2,AF+8)
    for ks in range(6,8): fr(VAL+4*(ks-4), ks)
    a("s_waitcnt lgkmcnt(10)"); mf(3,AF+12)
    for ks in range(4,8):
        a(f"s_waitcnt lgkmcnt({14-2*ks})"); mf(ks,VAL+4*(ks-4))

CAA,CAB,CUW,CPD,CYW,CYR,CZ=204,205,206,207,209,210,16
def gen_expand(a):
    T0,T1,T2,T3=8,9,10,11
    HB=13; BB=14; Z=CZ; ACC=32
    a(f"v_lshrrev_b32 v{HB}, 5, v{VL}")
    a(f"v_and_b32 v{BB}, 31, v{VL}")
    for r in range(4): a(f"v_mov_b32 v{Z+r}, 0")
    a(f"v_cmp_eq_u32 vcc, 0, v{VL}")
    a(f"v_mul_u32_u24 v{T1}, {R1_OFF}, v{HB}")
    a(f"v_min_u32 v{T2}, 28, v{BB}")
    a(f"v_lshlrev_b32 v{T3}, 16, v{PRM+5}")
    a(f"v_cndmask_b32 v{T3}, 0, v{T3}, vcc")
    a(f"v_lshl_add_u32 v{T1}, v{T2}, 4, v{T1}")
    a(f"v_add_u32 v{T1}, s{sRB}, v{T1}")
    a(f"ds_write_b128 v{T1}, {vr(Z,4)} offset:{2*2040}")
    a(f"v_add_f32 v{ACC}, v{ACC}, v{T3}")
    EA1=T0; EA2=T1
    a(f"v_lshlrev_b32 v{T2}, 4, v{VL}")
    a(f"v_sub_u32 v{T2}, {4080-16*64}, v{T2}")
    a(f"v_add_u32 v{EA1}, s{sRB}, v{T2}")
    a(f"v_lshlrev_b32 v{T2}, 10, v{HB}")
    a(f"v_lshl_add_u32 v{T2}, v{BB}, 4, v{T2}")
    a(f"v_sub_u32 v{T2}, {4080-16*160}, v{T2}")
    a(f"v_add_u32 v{EA2}, s{sRB}, v{T2}")
    a(f"v_and_b32 v{T2}, 1, v{VL}")
    a(f"v_cmp_eq_u32 vcc, 1, v{T2}")
    def pk(d,lo_,hi_): a(f"v_cvt_pk_bf16_f32 v{d}, v{lo_}, v{hi_}")
    def mv(d,s_): a(f"v_mov_b32 v{d}, v{s_}")
    E=lambda e: ACC+e
    B0,B1,B2,B3=64,68,72,76
    pk(B0,E(7),E(6)); pk(B0+1,E(5),E(4)); pk(B0+2,E(3),E(2)); pk(B0+3,E(1),E(0))
    a(f"v_cndmask_b32 v96, v{E(11)}, v{E(12)}, vcc")
    a(f"v_cndmask_b32 v97, v{E(13)}, v{E(14)}, vcc")
    a(f"ds_write_b128 v{EA1}, {vr(B0,4)} offset:{R1_OFF+1024}")
    pk(B1,E(6),E(5)); pk(B1+1,E(4),E(3)); pk(B1+2,E(2),E(1))
    a(f"ds_write_b96 v{EA1}, {vr(B1,3)} offset:{1024}")
    a(f"ds_write_b16_d16_hi v{EA1}, v{B0+3} offset:{1024+12}")
    v0,v4,v8=E(8),E(9),E(10)
    pk(B2,v8,v8); pk(B2+1,v4,v4); pk(B2+2,v4,v0); pk(B2+3,v0,v0)
    a(f"ds_write_b128 v{EA1}, {vr(B2,4)} offset:{R1_OFF}")
    pk(B3,v8,v4); mv(B3+1,B2+1); mv(B3+2,B2+3); mv(B3+3,B2+3)
    a(f"ds_write_b128 v{EA1}, {vr(B3,4)}")
    a(f"ds_write_b16 v{EA1}, v{B0} offset:{1024-2}")
    for k in range(2):
        v0,v8=E(11+2*k),E(12+2*k)
        M=96+k
        C1,C0=80+8*k,84+8*k
        pk(C1,v8,v8); pk(C1+1,v8,M); pk(C1+2,v0,v0); mv(C1+3,C1+2)
        a(f"ds_write_b128 v{EA2}, {vr(C1,4)} offset:{R1_OFF+512*(1-k)}")
        mv(C0,C1); pk(C0+1,M,v0); mv(C0+2,C1+2); mv(C0+3,C1+2)
        a(f"ds_write_b128 v{EA2}, {vr(C0,4)} offset:{512*(1-k)}")
    for r in range(0,32,2): a(f"v_mov_b64 {vr(32+r,2)}, 0")

def gen_convaddr(a, tb=8):
    T0,T1,T2,T3=tb,tb+1,tb+2,tb+3
    a(f"v_and_b32 v{T3}, 15, v{VL}")
    a(f"v_and_b32 v{T0}, 1, v{VL}")
    a(f"v_mul_u32_u24 v{CAA}, {R1_OFF}, v{T0}")
    a(f"v_bfe_u32 v{T1}, v{VL}, 1, 3")
    a(f"v_lshlrev_b32 v{T1}, 6, v{T1}")
    a(f"v_sub_u32 v{CAA}, v{CAA}, v{T1}")
    a(f"v_lshrrev_b32 v{T2}, 4, v{VL}")
    a(f"v_lshl_add_u32 v{CAA}, v{T2}, 4, v{CAA}")
    a(f"s_add_u32 s56, s{sRB}, {2*(2240-32*63)+64*5}")
    a(f"v_add_u32 v{CAA}, s56, v{CAA}")
    a(f"v_mul_u32_u24 v{T0}, {U1_OFF-4}, v{T0}")
    a(f"v_lshlrev_b32 v{T1}, 2, v{T3}")
    a(f"v_sub_u32 v{T0}, v{T1}, v{T0}")
    a(f"v_lshl_add_u32 v{T0}, v{T2}, 4, v{T0}")
    a(f"s_add_u32 s56, s{sUB}, {U1_OFF+64+2*(192-224)+64*5}")
    a(f"v_add_u32 v{CAB}, s56, v{T0}")
    a(f"v_lshl_add_u32 v{T1}, v{T2}, 7, v{T1}")
    a(f"v_add_u32 v{CYW}, s{sRB}, v{T1}")
    a(f"v_lshlrev_b32 v{T2}, 4, v{VL}")
    a(f"v_add_u32 v{CYR}, s{sRB}, v{T2}")

def u_setup(a):
    T0,T1,T2,T3=240,241,242,243
    a(f"v_and_b32 v{T0}, 3, v{VL}")
    a(f"v_lshrrev_b32 v{T1}, 2, v{VL}")
    a(f"v_mul_u32_u24 v{T2}, {UBS}, v{T0}")
    a(f"v_lshl_add_u32 v{T2}, v{T1}, 6, v{T2}")
    a(f"s_lshl_b32 s5, s41, 10")
    a(f"s_add_u32 s5, s5, {UB0+64-4}")
    a(f"v_add_u32 v{CUW}, s5, v{T2}")
    a(f"v_mul_u32_u24 v{T1}, 40960, v{T1}")
    a(f"v_lshl_add_u32 v231, v{T0}, 4, v{T1}")
    a(f"v_bfe_u32 v{T2}, v{VL}, 4, 1")
    a(f"v_mul_u32_u24 v{T2}, {U1_OFF}, v{T2}")
    a(f"v_and_b32 v{T3}, 15, v{VL}")
    a(f"v_lshl_add_u32 v{T2}, v{T3}, 2, v{T2}")
    a(f"s_mul_i32 s5, s41, {UBS}")
    a(f"s_add_u32 s5, s5, {UB0}")
    a(f"v_add_u32 v{CPD}, s5, v{T2}")
    a(f"s_mul_i32 s5, s{sXC}, 20")
    a(f"s_add_u32 s5, s5, s{sS}")
    a("s_lshl_b32 s5, s5, 6")
    a(f"s_mul_i32 s6, s41, {64*10240}")
    a("s_add_u32 s6, s6, s5")
    a(f"s_add_u32 s6, s6, {WS_UT}")
    a(f"s_lshl_b32 s7, s41, 9")
    a(f"s_add_u32 s7, s7, {WS_FU}")
    a(f"v_lshlrev_b32 v211, 3, v{VL}")
    a("v_add_u32 v211, s7, v211")
    v_spread(a, 211, T0)
def fu_load(a):
    a(f"buffer_load_dwordx2 v[232:233], v211, s[{sWS}:{sWS+3}], s7 offen {FLD}")
def fu_test(a):
    a(f"v_cmp_eq_u64 s[46:47], s[{sN0}:{sN1}], v[232:233]")
    a("s_cmp_eq_u64 s[46:47], -1")
def u_loads(a):
    for n in range(4):
        a(f"buffer_load_dwordx4 {vr(UR+4*n,4)}, v231, s[{sWS}:{sWS+3}], s6 offen sc1")
        a("s_add_u32 s6, s6, 10240")

def gen_uwrite(a):
    SH=160
    a("s_mov_b32 exec_hi, 0")
    a("s_mov_b32 exec_lo, 0x7fffffff")
    a(f"ds_write_b32 v{CPD}, v244")
    a("s_mov_b64 exec, -1")
    a("s_waitcnt vmcnt(0)")
    for n in range(4):
        a(f"ds_write_b128 v{CUW}, {vr(UR+4*n,4)} offset:{4+16*n}")
    for k in range(7):
        a(f"v_pk_mov_b32 {vr(SH+2*k,2)}, {vr(UR+2*k,2)}, {vr(UR+2*k+2,2)} op_sel:[1,0]")
    a(f"v_mov_b32 v{SH+14}, v{UR+15}")
    a(f"ds_write_b32 v{CUW}, v{UR} offset:{U1_OFF}")
    for n in range(3):
        a(f"ds_write_b128 v{CUW}, {vr(SH+4*n,4)} offset:{U1_OFF+4+16*n}")
    a(f"ds_write_b96 v{CUW}, {vr(SH+12,3)} offset:{U1_OFF+4+48}")
    lds_add(a, cV, 240)

YS=176
def gen_conv(a):
    AA=CAA; AB=CAB; Y=32
    FA=[64,128]; FB=[96,160]
    def rA(buf,rho): return [f"ds_read_b128 {vr(FA[buf]+4*k,4)}, v{AA} offset:{64*(56-8*k+2-rho)}" for k in range(8)]
    def rB(buf,rho): return [f"ds_read_b64 {vr(FB[buf]+4*k+2*hf,2)}, v{AB} offset:{64*(8*k+2-rho)+8*hf}" for k in range(8) for hf in range(2)]
    def reads(buf, rho):
        A_=rA(buf,rho); B_=rB(buf,rho); out=[]
        for k in range(8): out += [A_[k],B_[2*k],B_[2*k+1]]
        return out
    for x in rA(0,0): a(x)
    lds_wait(a, cV, 4, 6)
    stamp(a,5)
    a(f"s_setprio {os.environ.get('CPRIO','1')}")
    for x in rB(0,0): a(x)
    a("s_mov_b32 s3, 0")
    a.label("L_ssm_conv")
    for rho in range(2):
        buf=rho&1
        nxt = reads(buf^1, rho+1)
        a("s_waitcnt lgkmcnt(0)")
        mm=[(aa,c) for aa in range(8) for c in range(aa,8)]
        for n_,(aa,c) in enumerate(mm):
            a(f"v_mfma_f32_16x16x32_bf16 {vr(Y+4*c,4)}, {vr(FA[buf]+4*aa,4)}, {vr(FB[buf]+4*(c-aa),4)}, {vr(Y+4*c,4)}")
            if n_ < len(nxt): a(nxt[n_])
    a(f"v_subrev_u32 v{AA}, 128, v{AA}")
    a(f"v_subrev_u32 v{AB}, 128, v{AB}")
    a("s_add_u32 s3, s3, 1")
    a("s_cmp_lt_u32 s3, 4")
    a("s_cbranch_scc1 L_ssm_conv")
    stamp(a,6)
    a("s_mov_b64 exec, 1")
    a(f"ds_add_u32 v247, v246 offset:{cV-cT}")
    a("s_mov_b64 exec, -1")

def gen_ystage(a):
    Y=32
    a("s_waitcnt lgkmcnt(0)")
    for c in range(8):
        for z in range(2):
            a(f"v_cvt_pk_bf16_f32 v{64+2*c+z}, v{Y+4*c+2*z}, v{Y+4*c+2*z+1}")
    for c in range(8):
        a(f"ds_write2st64_b32 v{CYW+(c&1)*2}, v{64+(c&~1)*2+(c&1)}, v{64+(c&~1)*2+2+(c&1)} offset0:{20+2*(c&~1)} offset1:{22+2*(c&~1)}")
    for k in range(4):
        a(f"ds_read_b128 {vr(YS+4*k,4)}, v{CYR} offset:{5120+1024*k}")
    a("s_mov_b64 exec, 1")
    a(f"ds_add_u32 v247, v246 offset:{cV-cT}")
    a("s_mov_b64 exec, -1")

def loader_setup(a):
    T0,T1,T2,T3=240,241,242,243
    sAW=41
    a(f"s_and_b32 s{sAW}, s{sW}, 3")
    a(f"v_lshrrev_b32 v{T0}, 4, v{VL}")
    a(f"v_and_b32 v{T3}, 1, v{T0}")
    a(f"v_lshlrev_b32 v{T3}, 2, v{T3}")
    a(f"v_and_b32 v{T1}, 7, v{VL}")
    a(f"v_xor_b32 v{T3}, v{T3}, v{T1}")
    a(f"v_lshlrev_b32 v{T3}, 4, v{T3}")
    a(f"v_lshrrev_b32 v{T1}, 3, v{VL}")
    a(f"v_mul_u32_u24 v{T1}, 1280, v{T1}")
    a(f"v_add_u32 v{T3}, v{T3}, v{T1}")
    a(f"s_mul_i32 s30, s{sAW}, {8*1280}")
    a(f"s_mul_i32 s31, s{sMT}, {128*1280}")
    a("s_add_u32 s30, s30, s31")
    a(f"v_add_u32 v{DX}, s30, v{T3}")
    for k in range(1,4): a(f"v_add_u32 v{DX+k}, {k*40960}, v{DX}")
    a(f"v_lshlrev_b32 v{T1}, 2, v{T0}")
    a(f"v_and_b32 v{T2}, 15, v{VL}")
    a(f"v_xor_b32 v{T1}, v{T1}, v{T2}")
    a(f"v_lshlrev_b32 v{T1}, 4, v{T1}")
    a(f"v_mul_u32_u24 v{T0}, 3840, v{T0}")
    a(f"v_add_u32 v{T0}, v{T0}, v{T1}")
    a(f"s_mul_i32 s30, s{sAW}, {4*3840}")
    a(f"s_lshl_b32 s31, s{sNT}, 8")
    a("s_add_u32 s30, s30, s31")
    a(f"v_add_u32 v{DW}, s30, v{T0}")
    for k in range(1,4): a(f"v_add_u32 v{DW+k}, {k*16*3840}, v{DW}")
    a(f"s_lshr_b32 s30, s{sS}, 2")
    a(f"s_add_u32 s30, s30, s{sS}")
    a("s_and_b32 s30, s30, 3")
    a("s_lshl_b32 s30, s30, 2")
    a(f"s_lshr_b32 s{sST0}, {os.environ.get('ROT','0x8530')}, s30")
    a(f"s_and_b32 s{sST0}, s{sST0}, 15")
    a(f"s_lshl_b32 s{sLX}, s{sST0}, 7")
    a(f"s_mul_i32 s{sLW}, s{sST0}, {64*3840}")
    a(f"s_mul_i32 s{sLD}, s{sAW}, {XST}")
    a(f"s_lshl_b32 s{sLE}, s{sAW}, 4")
    a(f"s_sub_u32 s{sLE}, {WOFF}, s{sLE}")
    a("s_waitcnt lgkmcnt(0)")
    srd(a, sA, pX, 2048*1280)
    srd(a, sB_, pW, 640*3840)
def dma_groups():
    G=[]
    for k in range(4):
        m = f"s_mov_b32 m0, s{sLD}" if k==0 else f"s_add_u32 m0, s{sLD}, {4*XST*k}"
        G.append([m, "s_nop 0", f"buffer_load_dwordx4 v{DX+k}, s[{sA}:{sA+3}], s{sLX} offen lds"])
    for k in range(4):
        m = f"s_add_u32 m0, s{sLD}, s{sLE}" if k==0 else "s_add_u32 m0, m0, 4096"
        G.append([m, "s_nop 0", f"buffer_load_dwordx4 v{DW+k}, s[{sB_}:{sB_+3}], s{sLW} offen lds"])
    G[-1] += [f"s_add_u32 s{sLX}, s{sLX}, 128", f"s_add_u32 s{sLW}, s{sLW}, {64*3840}", f"s_cmp_eq_u32 s{sLX}, 1280",
              f"s_cselect_b32 s{sLX}, 0, s{sLX}", f"s_cselect_b32 s{sLW}, 0, s{sLW}", f"s_add_u32 s{sLD}, s{sLD}, {STG}",
              f"s_sub_u32 s30, s{sLD}, {3*STG}", f"s_cmp_ge_u32 s{sLD}, {3*STG}", f"s_cselect_b32 s{sLD}, s30, s{sLD}"]
    return G

def gen_aux(a):
    T0,T1,T2,T3=240,241,242,243
    sAW=41; ZR=244
    a("s_memrealtime s[60:61]")
    a(f"s_setprio {os.environ.get('EPRIO','2')}")
    a(f"s_and_b32 s{sAW}, s{sW}, 3")
    a(f"s_mul_i32 s{sCH}, s{sXC}, 20")
    a(f"s_add_u32 s{sCH}, s{sCH}, s{sS}")
    a(f"s_lshl_b32 s{sCH}, s{sCH}, 2")
    a(f"s_add_u32 s{sCH}, s{sCH}, s{sAW}")
    a(f"s_cmp_ge_u32 s{sS}, 20")
    a("s_cbranch_scc1 L_a_np")
    param_loads(a, T0, T1)
    a.label("L_a_np")
    a("s_waitcnt lgkmcnt(0)")
    a(f"v_mov_b32 v{ZR}, 0")
    a(f"v_lshlrev_b32 v{T2}, 2, v{VL}")
    a(f"v_min_u32 v{T2}, 124, v{T2}")
    a(f"v_add_u32 v{T2}, {CTL}, v{T2}")
    a(f"ds_write_b32 v{T2}, v{ZR}")
    a(f"s_or_b32 s30, s2, s{sAW}")
    a("s_cmp_lg_u32 s30, 0")
    a("s_cbranch_scc1 L_a_nonn")
    a("s_or_b32 s61, s61, 0x80000000")
    a(f"v_mov_b32 v{T0}, s60")
    a(f"v_mov_b32 v{T1}, s61")
    a(f"v_mov_b32 v{T2}, 0")
    a(f"v_mov_b32 v{T3}, 0")
    a("s_mov_b64 exec, 1")
    a(f"global_atomic_cmpswap_x2 v{ZR}, {vr(T0,4)}, s[{pDBG}:{pDBG+1}] sc1")
    a("s_mov_b64 exec, -1")
    a("s_nop 1")
    a.label("L_a_nonn")
    a("s_waitcnt lgkmcnt(0)")
    a("s_barrier")
    loader_setup(a)
    srd(a, sWS, pWS, WS_SIZE)
    srd(a, sC, pU, 2048*1280)
    ut_setup(a)
    a("s_mov_b32 s61, 0")
    a(f"s_mul_i32 s{sRB}, s{sAW}, {RBS}")
    a(f"s_add_u32 s{sRB}, s{sRB}, {RB0}")
    a(f"s_mul_i32 s{sUB}, s{sAW}, {UBS}")
    a(f"s_add_u32 s{sUB}, s{sUB}, {UB0}")
    lt=Asm(); u_setup(lt); gen_convaddr(lt, 240); side_pre(lt)
    LT=[[x.strip()] for x in lt.l]
    a(f"s_add_u32 s{sST0}, s{sST0}, {NA+2}")
    a(f"s_sub_u32 s30, s{sST0}, 10")
    a(f"s_cmp_ge_u32 s{sST0}, 10")
    a(f"s_cselect_b32 s{sST0}, s30, s{sST0}")
    a(f"s_lshl_b32 s{sLX}, s{sST0}, 7")
    a(f"s_mul_i32 s{sLW}, s{sST0}, {64*3840}")
    a(f"s_add_u32 s{sLD}, s{sLD}, {((NA+2)%3)*STG}")
    a(f"s_cmp_ge_u32 s{sS}, 20")
    a("s_cbranch_scc1 L_a_plain")
    kg=Asm(); gen_kgen(kg, False, sbase=sRB); K=[x.strip() for x in kg.l]
    p=[n for n,x in enumerate(K) if f"v{PRM+4}" in x][0]
    for x in K[:p]: a(x)
    a("s_waitcnt vmcnt(0)")
    stamp(a,1)
    for x in K[p:]: a(x)
    gen_kgen(a, True, KEEP=212, first=True)
    stamp(a,4)
    a(f"s_setprio {os.environ.get('BPRIO','0')}")
    k2=Asm(); gen_kgen(k2, True, KEEP=152, first=False); gen_expand(k2); K2=[x.strip() for x in k2.l]
    h0=int(os.environ.get("PB0","0")); hb=int(os.environ.get("PB","170"))
    for x in K2[:h0]: a(x)
    ut_dma(a); nonce_issue(a, 246, ZR)
    hm=int(os.environ.get("PBM","170"))
    for x in K2[h0:hm]: a(x)
    a("s_waitcnt vmcnt(0)")
    ut_store(a)
    for x in K2[hm:hb]: a(x)
    a("s_branch L_a_join")
    a.label("L_a_plain")
    lds_wait(a, cG, 4*int(os.environ.get("UAT","2")), T0)
    ut_dma(a); nonce_issue(a, 246, ZR)
    a("s_waitcnt vmcnt(0)")
    ut_store(a)
    a.label("L_a_join")
    nonce_fast(a, 246, ZR, "a")
    a("s_setprio 0")
    stamp(a,14)
    a("s_barrier")
    nseg=7-NA
    for seg in range(NA+1,9):
        if seg==NA+2:
            a(f"s_cmp_lg_u32 s{sAW}, 0")
            a("s_cbranch_scc1 L_a_nf")
            a("s_lshl_b32 s30, s2, 3")
            a(f"s_add_u32 s30, s30, {WS_FU}")
            flag_store(a, 30, 246)
            a.label("L_a_nf")
        if seg==8:
            a(f"s_cmp_lt_u32 s{sS}, 20")
            a(f"s_cselect_b32 s7, 0, {WS_SIZE}")
            fu_load(a)
        for g in dma_groups():
            for x in g: a(x)
        if seg<8:
            k=seg-NA-1
            for grp in LT[len(LT)*k//nseg:len(LT)*(k+1)//nseg]:
                for x in grp: a(x)
        a(f"s_waitcnt vmcnt({9 if seg==8 else 8})")
        a("s_barrier")
    a("s_waitcnt vmcnt(0)")
    a("s_barrier")
    fu_test(a)
    a("s_cselect_b32 s5, 1, 0")
    a("s_cbranch_scc0 L_a_t0")
    u_loads(a)
    stamp(a,15)
    a.label("L_a_t0")
    stamp(a,2)
    a("s_barrier")
    stamp(a,3)
    a("s_setprio 1")
    a(f"s_cmp_ge_u32 s{sS}, 20")
    a("s_cbranch_scc1 L_side")
    a("s_cmp_eq_u32 s5, 1")
    a("s_cbranch_scc1 L_a_fud2")
    a(f"s_mov_b32 s44, {SPIN}")
    a.label("L_a_fu")
    fu_load(a)
    a("s_waitcnt vmcnt(0)")
    fu_test(a)
    a("s_cbranch_scc1 L_a_fud")
    a("s_sleep 8")
    a("s_sub_u32 s44, s44, 1")
    a("s_cmp_lg_u32 s44, 0")
    a("s_cbranch_scc1 L_a_fu")
    a.label("L_a_fud")
    u_loads(a)
    stamp(a,15)
    a.label("L_a_fud2")
    for x in K2[hb:]: a(x)
    for r in range(12,32): a(f"v_mov_b32 v{r}, 0")
    a("s_movk_i32 s62, 999")
    a(f"v_mov_b32 v247, {cT}")
    a("v_mov_b32 v246, 1")
    a(f"v_add_u32 v{CYW+2}, 64, v{CYW}")
    for r in (245,248,249): a(f"v_mov_b32 v{r}, 0")
    gen_uwrite(a)
    gen_conv(a)
    stamp(a,7)
    a("s_branch L_side2")
    gen_side(a)

sIT=48; sSTEP=49; sKV=52; sVM=28; sSTK=61
def kv_flag_addr(a, VFA, VQF, T0, T1, T2):
    a(f"s_mul_i32 s54, s{sH}, 20")
    a(f"v_bfe_u32 v{T0}, v{VL}, 4, 1")
    a(f"v_mul_u32_u24 v{T0}, 19, v{T0}")
    a(f"v_add_u32 v{T0}, s54, v{T0}")
    a(f"v_and_b32 v{T0}, 0xff80, v{T0}")
    a(f"v_lshrrev_b32 v{T1}, 5, v{VL}")
    a(f"v_mul_u32_u24 v{T1}, 640, v{T1}")
    a(f"v_and_b32 v{T2}, 15, v{VL}")
    a(f"v_lshl_add_u32 v{T1}, v{T2}, 3, v{T1}")
    a(f"v_add_u32 v{T1}, v{T1}, v{T0}")
    a(f"v_add_u32 v{VFA}, {WS_F1+640}, v{T1}")
    v_spread(a, VFA, T1)
    if VQF is None: return
    a(f"v_and_b32 v{T2}, 1, v{VL}")
    a(f"v_lshl_add_u32 v{T0}, v{T2}, 3, v{T0}")
    a(f"s_lshr_b32 s54, s{sS}, 2")
    a("s_lshl_b32 s54, s54, 4")
    a(f"s_add_u32 s54, s54, {WS_F1}")
    a(f"v_add_u32 v{VQF}, s54, v{T0}")
    v_spread(a, VQF, T1)
def one_pair(a, L16, sL, sG):
    a(f"s_mov_b32 m0, s{sL}")
    a(f"s_add_u32 s59, s{sG}, 4096")
    for k in range(4):
        a(f"buffer_load_dwordx4 v{L16}, s[{sWS}:{sWS+3}], s{sG} offen offset:{1024*k} sc1 lds")
    a("s_add_u32 m0, m0, 4096")
    a("s_nop 0")
    a(f"buffer_load_dwordx4 v{L16}, s[{sWS}:{sWS+3}], s59 offen sc1 lds")

def f2_publish(a, FA, FL, MA, T):
    a(f"buffer_load_dwordx2 {vr(FL,2)}, v{FA}, s[{sWS}:{sWS+3}], 0 offen {FLD}")
    a("s_waitcnt vmcnt(0)")
    a(f"v_cmp_eq_u64 s[46:47], s[{sN0}:{sN1}], {vr(FL,2)}")
    a("s_lshr_b32 s47, s46, 4")
    a("s_and_b32 s46, s46, s47")
    a("s_lshr_b32 s47, s46, 2")
    a("s_and_b32 s46, s46, s47")
    a("s_lshr_b32 s47, s46, 1")
    a("s_and_b32 s46, s46, s47")
    a("s_and_b32 s45, s46, 0x01010101")
    L=a.uid("pb")
    MONO=int(os.environ.get("MONO","0"))
    if MONO:
        a("s_bcnt1_i32_b32 s47, s45")
        a(f"s_cmp_ge_u32 s47, {MONO}")
    a(f"s_cbranch_scc0 {L}")
    a(f"v_mov_b32 v{T}, s45")
    a("s_mov_b64 exec, 1")
    a(f"ds_or_b32 v{MA}, v{T}")
    a("s_mov_b64 exec, -1")
    a.label(L)
def f2_addr(a, FA, T):
    a(f"v_and_b32 v{FA}, 31, v{VL}")
    a(f"v_lshlrev_b32 v{FA}, 3, v{FA}")
    a(f"s_lshl_b32 s54, s{sXC}, 8")
    a(f"s_add_u32 s54, s54, {WS_F2}")
    a(f"v_add_u32 v{FA}, s54, v{FA}")
    v_spread(a, FA, T)

def gen_att(a):
    S=[0,16]; O=[32,48]; Q=[64,68]; QT=72
    KM=[76,80,84,88,188,192]; KT=[92,96,196]; V=[100,108,116,124,200,208]
    QU=216; AT=220
    IDX,AK,AV,L16,PA,VIT,VCN,VONE,VCT,VFA,VQF=range(132,143)
    T0,T1,T2,T3=144,145,146,147; PL=148; MX=152; OA,OB=153,154; RL=[156,157]
    a.label("L_att")
    a("s_setprio 0")
    a(f"v_lshlrev_b32 v{L16}, 4, v{VL}")
    a(f"s_lshr_b32 s54, s{sS}, 2")
    a("s_lshl_b32 s54, s54, 2")
    a(f"s_add_u32 s{sT}, s54, s{sW}")
    a(f"s_mul_i32 s57, s{sH}, 81920")
    a(f"s_mul_i32 s54, s{sT}, 2560")
    a("s_add_u32 s57, s57, s54")
    a(f"s_mul_i32 s{sKV}, s{sH}, {HKV}")
    a(f"s_add_u32 s{sKV}, s{sKV}, {WS_KV}")
    def setup_av():
        a(f"v_and_b32 v{T0}, 31, v{VL}")
        a(f"v_lshrrev_b32 v{T1}, 5, v{VL}")
        a(f"v_mul_u32_u24 v{T1}, 320, v{T1}")
        a(f"v_lshl_add_u32 v{AV}, v{T0}, 4, v{T1}")
    setup_av()
    a(f"v_cmp_eq_u32 vcc, 20, v{T0}")
    a(f"v_mov_b32 v{T1}, 0x3f803f80")
    a(f"v_mov_b32 v{AK}, v{L16}")
    a(f"v_cndmask_b32 v{T1}, 0, v{T1}, vcc")
    a(f"s_mov_b32 s{sVM}, 0x000fffff")
    a(f"s_mov_b32 s{sVM+1}, 0x000fffff")
    for b in V:
        for r in range(8): a(f"v_mov_b32 v{b+r}, v{T1}")
    for r in range(4): a(f"v_mov_b32 v{QU+r}, 0")
    a(f"v_lshrrev_b32 v{T1}, 5, v{VL}")
    a(f"v_mul_u32_u24 v{T1}, {PS}, v{T1}")
    a(f"v_lshl_add_u32 v{AT}, v{T0}, 4, v{T1}")
    for r in range(32,64): a(f"v_mov_b32 v{r}, 0")
    for r in range(4): a(f"v_mov_b32 v{QT+r}, 0")
    a(f"v_mov_b32 v{IDX}, 0xdddddddd")
    a(f"s_lshl_b32 s54, s{sW}, 2")
    a(f"s_add_u32 s55, s54, {cPROG}")
    a(f"v_mov_b32 v{PA}, s55")
    VC=176
    for k in (2,3,4,5,6,8): a(f"v_mov_b32 v{VC+k}, {k}")
    a(f"v_mov_b32 v{VCN}, {cT}")
    a(f"v_mov_b32 v{VONE}, 1")
    a(f"s_add_u32 s92, s{sW}, 9")
    a(f"s_mul_i32 s90, s92, {PS}")
    a(f"s_add_u32 s91, s90, s{sKV}")
    a(f"s_mov_b32 s{sIT}, 0")
    a(f"s_mov_b32 s{sSTEP}, {4*PS}")
    kv_flag_addr(a, VFA, VQF, T0, T1, T2)
    f2_addr(a, 158, T1)
    a(f"s_mul_i32 s6, s{sT}, 81920")
    a(f"s_add_u32 s6, s6, {WS_O}")
    a(f"s_lshl_b32 s7, s{sH}, 7")
    a("s_add_u32 s7, s7, s6")
    a(f"s_add_u32 s7, s7, {16*1024}")
    a(f"s_lshl_b32 s54, s{sH}, 9")
    a("s_add_u32 s6, s6, s54")
    a(f"v_bfe_u32 v{OB}, v{VL}, 4, 1")
    a(f"v_mul_u32_u24 v{OB}, 20480, v{OB}")
    a(f"v_and_b32 v{T3}, 15, v{VL}")
    a(f"v_lshl_add_u32 v{OA}, v{T3}, 4, v{OB}")
    a(f"v_lshlrev_b32 v{OB}, 3, v{T3}")
    a(f"v_lshrrev_b32 v{T3}, 5, v{VL}")
    a(f"v_lshl_add_u32 v{OA}, v{T3}, 8, v{OA}")
    a(f"v_lshrrev_b32 v{T3}, 4, v{VL}")
    a(f"v_mul_u32_u24 v{T3}, 20480, v{T3}")
    a(f"v_add_u32 v{OB}, v{OB}, v{T3}")
    def qloads():
        a(f"buffer_load_dwordx4 {vr(Q[0],4)}, v{L16}, s[{sWS}:{sWS+3}], s57 offen sc1")
        a("s_mov_b32 exec_hi, 0")
        a(f"buffer_load_dwordx4 {vr(QT,4)}, v{L16}, s[{sWS}:{sWS+3}], s57 offen offset:2048 sc1")
        a("s_not_b64 exec, exec")
        a(f"buffer_load_dwordx4 {vr(QU,4)}, v{L16}, s[{sWS}:{sWS+3}], s57 offen offset:1536 sc1")
        a("s_mov_b64 exec, -1")
        a(f"buffer_load_dwordx4 {vr(Q[1],4)}, v{L16}, s[{sWS}:{sWS+3}], s57 offen offset:1024 sc1")
    def load_pairs(tag):
        a.label(f"L_lp_{tag}")
        a(f"s_mul_i32 s56, s54, {PS}")
        a(f"s_add_u32 s60, s56, s{sKV}")
        a("s_add_u32 s54, s54, 1")
        one_pair(a, L16, 56, 60)
        a("s_cmp_lt_u32 s54, s55")
        a(f"s_cbranch_scc1 L_lp_{tag}")
    def kvload(): a(f"buffer_load_dwordx2 {vr(PL,2)}, v{VFA}, s[{sWS}:{sWS+3}], 0 offen {FLD}")
    def kvtest():
        a(f"v_cmp_eq_u64 s[46:47], s[{sN0}:{sN1}], {vr(PL,2)}")
        a("s_and_b32 s31, s46, s47")
        a("s_and_b32 s31, s31, s30")
        a("s_cmp_eq_u32 s31, s30")
    def kvspin(tag):
        a(f"s_mov_b32 s44, {SPIN}")
        a.label(f"L_kv_{tag}")
        kvload()
        a("s_waitcnt vmcnt(0)")
        kvtest()
        a(f"s_cbranch_scc1 L_kv_{tag}_d")
        a("s_sleep 4")
        a("s_sub_u32 s44, s44, 1")
        a("s_cmp_lg_u32 s44, 0")
        a(f"s_cbranch_scc1 L_kv_{tag}")
        a.label(f"L_kv_{tag}_d")
    APRIO=os.environ.get("APRIO","2")
    a("s_cmp_eq_u32 s61, 0")
    a("s_cbranch_scc1 L_att_np")
    a("s_mov_b32 s30, 0x00070007")
    a(f"s_mov_b32 s44, {SPIN}")
    a.label("L_att_pl")
    a(f"buffer_load_dwordx2 {vr(PL+2,2)}, v{VQF}, s[{sWS}:{sWS+3}], 0 offen {FLD}")
    kvload()
    a("s_waitcnt vmcnt(0)")
    a(f"v_cmp_eq_u64 vcc, s[{sN0}:{sN1}], {vr(PL+2,2)}")
    kvtest()
    a("s_cselect_b64 vcc, vcc, 0")
    a("s_cmp_eq_u64 vcc, -1")
    a("s_cbranch_scc1 L_att_pd")
    a("s_sleep 4")
    a("s_sub_u32 s44, s44, 1")
    a("s_cmp_lg_u32 s44, 0")
    a("s_cbranch_scc1 L_att_pl")
    a.label("L_att_pd")
    a("s_cmp_eq_u64 s[46:47], -1")
    a(f"s_cselect_b32 s{sSTK}, 2, 1")
    a(f"s_setprio {APRIO}")
    lds_add(a, cP, T0, f"s{sSTK}")
    stamp(a,7)
    qloads()
    a("s_mov_b32 s54, 0")
    a("s_mov_b32 s55, 5")
    load_pairs("first")
    a("s_waitcnt vmcnt(10)")
    lds_add(a, cT, T0, 2)
    a("s_mov_b32 s30, 0x001f001f")
    a("s_and_b32 s31, s46, s47")
    a("s_and_b32 s31, s31, s30")
    a("s_cmp_eq_u32 s31, s30")
    a("s_mov_b32 s55, 9")
    a("s_cbranch_scc1 L_att_p9")
    a("s_waitcnt vmcnt(0)")
    lds_add(a, cT, T0, 2)
    kvspin("p")
    load_pairs("second")
    a("s_branch L_att_go")
    a.label("L_att_p9")
    a("s_mov_b32 s55, 7")
    load_pairs("third")
    a("s_waitcnt vmcnt(10)")
    lds_add(a, cT, T0, 2)
    a("s_mov_b32 s55, 9")
    a("s_branch L_lp_second")
    a.label("L_att_np")
    lds_wait(a, cP, 1, T0, 1)
    a(f"s_setprio {APRIO}")
    a(f"s_mov_b32 s{sSTK}, s45")
    stamp(a,7)
    qloads()
    lds_wait(a, cT, 2, T0, 0)
    a("s_waitcnt vmcnt(0)")
    a.label("L_att_go")
    def koff(t): return (t>>1)*PS + (t&1)*1024
    def toff(t): return (t>>1)*PS + 2048
    base=[0]
    def rel(p):
        return (p%28)*PS - base[0]
    bases={AK:0,AV:0,AT:0}
    def off(reg, p, extra, span):
        o=(p%28)*PS+extra-bases[reg]
        if not (0 <= o and o+span <= 65535):
            d=(p%28)*PS-bases[reg]; bases[reg]+=d
            a(f"v_add_u32 v{reg}, {d&0xffffffff}, v{reg}")
            o=extra
        return o
    tail={}
    def prep(ps):
        if len(ps)==2 and ps[1]!=28:
            off(AK,ps[0],0,2*PS); off(AV,ps[0],0,2*PS); off(AT,ps[0],0,PS)
    nt=[0]
    def readK(ps):
        dual=len(ps)==2 and ps[1]!=28
        for p in ps:
            o=off(AK,p,0,PS)
            for d in range(2): a(f"ds_read_b128 {vr(KM[(2*p+d)%6],4)}, v{AK} offset:{o+1024*d}")
            if not dual:
                r=KT[nt[0]%3]; nt[0]+=1
                a(f"ds_read_b128 {vr(r,4)}, v{AK} offset:{o+2048}"); tail[p]=(r,0)
        if dual:
            r=KT[nt[0]%3]; nt[0]+=1
            a(f"ds_read_b128 {vr(r,4)}, v{AT} offset:{off(AT,ps[0],2048,16)}")
            tail[ps[0]]=(r,0); tail[ps[1]]=(r,1)
    def readV(ps, extra=()):
        a(f"s_mov_b64 exec, s[{sVM}:{sVM+1}]")
        for p in ps:
            o=off(AV,p,0,PS)
            for d in range(2):
                for s_ in range(2):
                    a(f"ds_read_b128 {vr(V[(2*p+d)%6]+4*s_,4)}, v{AV} offset:{o+2560+1280*d+640*s_}")
        for x in extra: a(x)
        a("s_mov_b64 exec, -1")
    def qk1(u): a(f"v_mfma_f32_32x32x16_bf16 {vr(S[u&1],16)}, {vr(KM[(u>>1)%6],4)}, {vr(Q[u&1],4)}, 0")
    def qk2(u):
        r,up=tail[u>>2]
        a(f"v_mfma_f32_32x32x8_bf16 {vr(S[u&1],16)}, {vr(r+2*((u>>1)&1),2)}, {vr((QU if up else QT)+2*(u&1),2)}, {vr(S[u&1],16)}")
    def pv(u,s_): a(f"v_smfmac_f32_32x32x32_bf16 {vr(O[u&1],16)}, {vr(V[(u>>1)%6]+4*s_,4)}, {vr(S[u&1]+8*s_,8)}, v{IDX}")
    readK([0]); readV([0])
    a("s_waitcnt lgkmcnt(0)")
    stamp(a,8)
    qk1(0); qk2(0)
    a("s_nop 11")
    VSPLIT=int(os.environ.get("VSPLIT","0"))
    for U in range(128):
        it,u=divmod(U,16); early=it<2
        bs=[p for p in ((U>>3)*2+1,(U>>3)*2+2) if p<32]
        e=lambda r: a(f"v_exp_f32 v{S[u&1]+r}, v{S[u&1]+r}")
        e(0); e(1)
        if U: pv(U-1,1)
        if u&7==3: a("s_waitcnt lgkmcnt(0)")
        if early and u==1:
            a(f"s_cmp_lt_u32 s{sSTK}, 2")
            a(f"s_cbranch_scc1 L_att_fl{it}")
            a.label(f"L_att_flr{it}")
        if early and u==5:
            a(f"s_cmp_lt_u32 s{sSTK}, 2")
            a(f"s_cbranch_scc1 L_att_ft{it}")
            a.label(f"L_att_ftr{it}")
        if U==13:
            a(f"s_add_u32 s90, s90, {4*PS}")
            a(f"s_add_u32 s91, s91, {4*PS-4096}")
        if U==7:
            a("s_cmp_lt_u32 s54, 4")
            a("s_cbranch_scc1 L_att_c0")
            a.label("L_att_c0r")
        e(2); e(3)
        if u&7==0: prep(bs)
        if (u==14 and it<7) or U==6:
            a(f"v_readfirstlane_b32 s54, v{VCT}")
            if PROF==2 and u==14: a(f"v_writelane_b32 v{PV}, s98, {2*it+3}")
        e(4)
        if U<127: qk1(U+1)
        if u&7==0: readK(bs)
        if u==10 and it<7: a(f"ds_read_b32 v{VCT}, v{VCN} offset:{4*it+4}")
        if U==2: a(f"ds_read_b32 v{VCT}, v{VCN}")
        if u==10 and PROF==2: a("s_memtime s[98:99]")
        if early and u in (6,7,9,11):
            a(f"buffer_load_dwordx4 v{L16}, s[{sWS}:{sWS+3}], s91 offen offset:{1024*(6,7,9,11).index(u)} sc1 lds")
        if early and u==12:
            a(f"buffer_load_dwordx4 v{L16}, s[{sWS}:{sWS+3}], s91 offen sc1 lds")
        e(5); e(6); e(7); e(8)
        if U<127: qk2(U+1)
        e(9); e(10); e(11); e(12)
        pv(U,0)
        if early and u==5: a("s_mov_b32 m0, s90")
        if early and u==11:
            a("s_add_u32 m0, m0, 4096")
            a("s_add_u32 s91, s91, 4096")
        if u==15 and it<7:
            a("s_cmp_lt_u32 s54, 4")
            a(f"s_cbranch_scc1 L_att_nr{it}")
            a.label(f"L_att_nrr{it}")
        if (u==2 and it in (1,2)) or U==4:
            a("s_waitcnt vmcnt(0)")
            a("s_mov_b64 exec, 1")
            a(f"ds_add_u32 v{VCN}, v{VONE} offset:{4*it+4}")
            a("s_mov_b64 exec, -1")
        ex_=[f"ds_write_b32 v{PA}, v{VC+it}"] if (u==0 and 2<=it<7) else []
        if VSPLIT:
            if u&7==0: readV(bs[:1], ex_)
            if u&7==1 and len(bs)>1: readV(bs[1:])
        elif u&7==0: readV(bs, ex_)
        e(13); e(14); e(15)
    if PROF==2:
        a("s_waitcnt lgkmcnt(0)")
        a(f"v_writelane_b32 v{PV}, s98, 17")
    a("s_nop 0")
    def outl():
        a.label("L_att_c0")
        lds_wait(a, cT, 4, T0, 1)
        a("s_branch L_att_c0r")
        for it in range(7):
            a.label(f"L_att_nr{it}")
            lds_wait(a, cT+4*it+4, 4, T0, 1)
            a(f"s_branch L_att_nrr{it}")
        for it in range(2):
            a.label(f"L_att_fl{it}")
            kvload()
            a(f"s_branch L_att_flr{it}")
            a.label(f"L_att_ft{it}")
            a(f"s_add_u32 s30, s92, {4*it}")
            a("s_lshr_b32 s30, s30, 1")
            a("s_lshl_b32 s30, 0x00010001, s30")
            a("s_waitcnt vmcnt(0)")
            kvtest()
            a(f"s_cbranch_scc1 L_att_ft2{it}")
            kvspin(f"l{it}")
            a.label(f"L_att_ft2{it}")
            a("s_cmp_eq_u64 s[46:47], -1")
            a(f"s_cselect_b32 s{sSTK}, 2, 1")
            a(f"s_branch L_att_ftr{it}")
    a.label("L_att_done")
    a(f"ds_write_b32 v{PA}, v{VC+8}")
    pv(127,1)
    stamp(a,9)
    a(f"s_mov_b32 s46, {hex(f32bits(2.0**-64))}")
    a(f"s_mov_b32 s47, {hex(f32bits(2.0**64))}")
    def rowsum(h):
        a(f"v_mov_b32 v{T0}, v{O[h]+8}")
        a(f"v_mov_b32 v{RL[h]}, v{O[h]+8}")
        a("s_nop 1")
        a(f"v_permlane32_swap_b32 v{T0}, v{RL[h]}")
    for h in range(2):
        rowsum(h)
        a(f"v_cmp_le_f32 vcc, s46, v{RL[h]}")
        a(f"v_cmp_ge_f32 s[54:55], s47, v{RL[h]}")
        a("s_and_b64 s[54:55], s[54:55], vcc")
        a("s_cmp_eq_u64 s[54:55], -1")
        if X=="": a(f"s_cbranch_scc0 L_att_slow{h}")
        a.label(f"L_att_fin{h}")
        a(f"v_rcp_f32 v{RL[h]}, v{RL[h]}")
        a("s_nop 0")
        for r in range(12): a(f"v_mul_f32 v{O[h]+r}, v{O[h]+r}, v{RL[h]}")
        for q in range(6): a(f"v_cvt_pk_bf16_f32 v{160+8*h+q}, v{O[h]+2*q}, v{O[h]+2*q+1}")
        a(f"buffer_store_dwordx4 {vr(160+8*h,4)}, v{OA}, s[{sWS}:{sWS+3}], s6 offen sc1")
        a("s_add_u32 s6, s6, 40960")
    a("v_permlane32_swap_b32 v164, v172")
    a("v_permlane32_swap_b32 v165, v173")
    a(f"buffer_store_dwordx2 v[164:165], v{OB}, s[{sWS}:{sWS+3}], s7 offen sc1")
    a(f"s_lshr_b32 s54, s{sS}, 2")
    a("s_lshl_b32 s54, s54, 8")
    a(f"s_lshl_b32 s55, s{sH}, 3")
    a("s_add_u32 s54, s54, s55")
    a(f"s_add_u32 s54, s54, {WS_F2}")
    a("s_waitcnt vmcnt(0)")
    lds_add_rtn(a, cF, T0, 63)
    stamp(a,10)
    a("s_cmp_lg_u32 s63, 3")
    a("s_cbranch_scc1 L_fin")
    flag_store(a, 54, T0)
    poll(a, [158], PL, int(os.environ.get("PSL","5")))
    lds_add(a, cM, T0)
    def slow():
      outl()
      a.label("L_codeend")
      for h in range(2):
        a.label(f"L_att_slow{h}")
        def scores(t):
            a(f"buffer_load_dwordx4 {vr(KM[0],4)}, v{L16}, s[{sWS}:{sWS+3}], s56 offen offset:{koff(t)} sc1")
            a(f"buffer_load_dwordx4 {vr(KT[0],4)}, v{L16}, s[{sWS}:{sWS+3}], s56 offen offset:{toff(t)} sc1")
            a("s_waitcnt vmcnt(0)")
            a(f"v_mfma_f32_32x32x16_bf16 {vr(S[0],16)}, {vr(KM[0],4)}, {vr(Q[h],4)}, 0")
            a(f"v_mfma_f32_32x32x8_bf16 {vr(S[0],16)}, {vr(KT[0]+2*t,2)}, {vr(QT+2*h,2)}, {vr(S[0],16)}")
            a("s_nop 15")
        a("s_waitcnt vmcnt(0) lgkmcnt(0)")
        a("s_nop 15")
        a(f"v_mov_b32 v{MX}, 0xff800000")
        a(f"s_mov_b32 s{sIT}, 0")
        a(f"s_mov_b32 s56, s{sKV}")
        a.label(f"L_att_slow1{h}")
        for t in range(2):
            scores(t)
            for r in range(0,16,2): a(f"v_max3_f32 v{MX}, v{S[0]+r}, v{S[0]+r+1}, v{MX}")
        a(f"s_add_u32 s56, s56, {PS}")
        a(f"s_add_u32 s{sIT}, s{sIT}, 1")
        a(f"s_cmp_lt_u32 s{sIT}, 32")
        a(f"s_cbranch_scc1 L_att_slow1{h}")
        a(f"v_mov_b32 v{T0}, v{MX}")
        a("s_nop 1")
        a(f"v_permlane32_swap_b32 v{T0}, v{MX}")
        a("s_nop 1")
        a(f"v_max_f32 v{MX}, v{MX}, v{T0}")
        setup_av()
        for r in range(16): a(f"v_mov_b32 v{O[h]+r}, 0")
        a(f"s_mov_b32 s{sIT}, 0")
        a(f"s_mov_b32 s56, s{sKV}")
        a.label(f"L_att_slow2{h}")
        for t in range(2):
            a(f"s_add_u32 s57, s56, {2560+1280*t}")
            a(f"s_mov_b64 exec, s[{sVM}:{sVM+1}]")
            a(f"buffer_load_dwordx4 {vr(V[0],4)}, v{AV}, s[{sWS}:{sWS+3}], s57 offen sc1")
            a(f"buffer_load_dwordx4 {vr(V[0]+4,4)}, v{AV}, s[{sWS}:{sWS+3}], s57 offen offset:640 sc1")
            a("s_mov_b64 exec, -1")
            scores(t)
            for r in range(16): a(f"v_sub_f32 v{S[0]+r}, v{S[0]+r}, v{MX}")
            for r in range(16): a(f"v_exp_f32 v{S[0]+r}, v{S[0]+r}")
            a("s_nop 2")
            a(f"v_smfmac_f32_32x32x32_bf16 {vr(O[h],16)}, {vr(V[0],4)}, {vr(S[0],8)}, v{IDX}")
            a(f"v_smfmac_f32_32x32x32_bf16 {vr(O[h],16)}, {vr(V[0]+4,4)}, {vr(S[0]+8,8)}, v{IDX}")
            a("s_nop 15")
        a(f"s_add_u32 s56, s56, {PS}")
        a(f"s_add_u32 s{sIT}, s{sIT}, 1")
        a(f"s_cmp_lt_u32 s{sIT}, 32")
        a(f"s_cbranch_scc1 L_att_slow2{h}")
        rowsum(h)
        a("s_nop 1")
        a(f"s_branch L_att_fin{h}")
    return slow

def side_pre(a):
    T0,T1,T2,T3=240,241,242,243
    L16,L8,VFA,PRA,AM,AT,SW,FA,MA=192,193,194,195,196,197,198,199,200
    SR=[224,225,226]; GO=[227,228,229]; WV=[202,203,251,252,253]
    sAW=41; sFT=49; C0=247; YF,YA,YB=248,249,245
    a(f"s_and_b32 s{sAW}, s{sW}, 3")
    a(f"v_lshlrev_b32 v{L16}, 4, v{VL}")
    a(f"s_mul_i32 s{sKV}, s{sH}, {HKV}")
    a(f"s_add_u32 s{sKV}, s{sKV}, {WS_KV}")
    kv_flag_addr(a, VFA, None, T0, T1, T2)
    a(f"v_and_b32 v{PRA}, 3, v{VL}")
    a(f"v_lshlrev_b32 v{PRA}, 2, v{PRA}")
    a(f"v_add_u32 v{PRA}, {cPROG}, v{PRA}")
    a(f"s_lshr_b32 s{sFT}, s{sS}, 2")
    a(f"s_mul_i32 s54, s{sFT}, 160")
    for n in range(5):
        a(f"v_add_u32 v{T3}, {64*n}, v{VL}")
        a(f"v_mul_u32_u24 v{T1}, 52429, v{T3}")
        a(f"v_lshrrev_b32 v{T1}, 19, v{T1}")
        a(f"v_mul_u32_u24 v{T2}, 1120, v{T1}")
        a(f"v_lshl_add_u32 v{T2}, v{VL}, 4, v{T2}")
        if n==4: a(f"v_add_u32 v{T2}, 4096, v{T2}")
        a(f"v_add_u32 v{WV[n]}, s54, v{T2}")
    a(f"v_bfe_u32 v{T1}, v{VL}, 2, 2")
    a(f"v_and_b32 v{T2}, 3, v{VL}")
    a(f"v_lshrrev_b32 v{T3}, 5, v{VL}")
    a(f"v_mul_u32_u24 v{AM}, 20, v{T3}")
    a(f"v_bfe_u32 v{T3}, v{VL}, 4, 1")
    a(f"v_lshl_add_u32 v{AM}, v{T3}, 2, v{AM}")
    a(f"v_add_u32 v{AM}, v{AM}, v{T1}")
    a(f"v_mul_u32_u24 v{AM}, 160, v{AM}")
    a(f"v_lshl_add_u32 v{AM}, v{T2}, 3, v{AM}")
    a(f"v_lshrrev_b32 v{T3}, 4, v{VL}")
    a(f"v_mul_u32_u24 v{AT}, 20, v{T3}")
    a(f"v_add_u32 v{AT}, v{AT}, v{T1}")
    a(f"v_mul_u32_u24 v{AT}, 160, v{AT}")
    a(f"v_lshl_add_u32 v{AT}, v{T2}, 3, v{AT}")
    a(f"v_add_u32 v{AM}, {WOB}, v{AM}")
    a(f"v_add_u32 v{AT}, {WOB}, v{AT}")
    AM2,AT2=230,208
    a(f"v_add_u32 v{AM2}, {320*160}, v{AM}")
    a(f"v_add_u32 v{AT2}, {320*160}, v{AT}")
    a(f"s_lshl_b32 s58, s{sH}, 2")
    a(f"s_add_u32 s58, s58, s{sAW}")
    a(f"v_lshlrev_b32 v{L8}, 3, v{VL}")
    a(f"v_and_b32 v{FA}, 31, v{VL}")
    a(f"v_lshlrev_b32 v{FA}, 3, v{FA}")
    a(f"s_lshl_b32 s54, s{sXC}, 8")
    a(f"s_add_u32 s54, s54, {WS_F2}")
    a(f"v_add_u32 v{FA}, s54, v{FA}")
    v_spread(a, FA, T1)
    STGO = 143360
    a(f"v_and_b32 v{T1}, 15, v{VL}")
    a(f"v_mul_u32_u24 v{T1}, 176, v{T1}")
    a(f"v_lshrrev_b32 v{T2}, 4, v{VL}")
    a(f"v_lshl_add_u32 v{T1}, v{T2}, 3, v{T1}")
    a(f"s_mul_i32 s55, s{sAW}, 2816")
    a(f"s_add_u32 s55, s55, {STGO}")
    a(f"v_add_u32 v{SW}, s55, v{T1}")
    for n in range(3):
        a(f"v_add_u32 v{T2}, {64*n}, v{VL}")
        a(f"v_mul_u32_u24 v{T3}, 52429, v{T2}")
        a(f"v_lshrrev_b32 v{T3}, 19, v{T3}")
        a(f"v_mul_u32_u24 v{SR[n]}, 10, v{T3}")
        a(f"v_sub_u32 v{T2}, v{T2}, v{SR[n]}")
        a(f"v_lshlrev_b32 v{T2}, 4, v{T2}")
        a(f"v_mul_u32_u24 v{SR[n]}, 176, v{T3}")
        a(f"v_add3_u32 v{SR[n]}, v{SR[n]}, v{T2}, s55")
        a(f"v_mul_u32_u24 v{GO[n]}, 2560, v{T3}")
        a(f"v_add_u32 v{GO[n]}, v{GO[n]}, v{T2}")
    a(f"s_mul_i32 s53, s{sFT}, 160")
    a(f"s_mul_i32 s54, s58, {16*2560}")
    a("s_add_u32 s53, s53, s54")
    a("s_add_u32 s53, s53, 1280")
    a(f"v_mov_b32 v{MA}, {cM}")

def gen_side(a):
    T0,T1,T2,T3=8,9,10,11
    L16,L8,VFA,PRA,AM,AT,SW,FA,MA=192,193,194,195,196,197,198,199,200
    SR=[224,225,226]; GO=[227,228,229]; WV=[202,203,251,252,253]
    sAW=41; sFT=49; C0=247; YF,YA,YB=248,249,245
    FL=4; AM2,AT2=230,208
    LP=os.environ.get("LP","0"); WS_=int(os.environ.get("WSL","8"))
    a.label("L_side")
    for r in range(12,32): a(f"v_mov_b32 v{r}, 0")
    a(f"s_mul_i32 s62, s{sXC}, 12")
    a(f"s_add_u32 s62, s62, s{sS}")
    a("s_sub_u32 s62, s62, 21")
    a("s_lshl_b32 s62, s62, 2")
    a(f"s_add_u32 s62, s62, s{sW}")
    a(f"v_and_b32 v{YF}, 15, v{VL}")
    a(f"v_lshlrev_b32 v{YF}, 3, v{YF}")
    a("s_lshr_b32 s57, s62, 5")
    a("s_and_b32 s63, s62, 31")
    a("s_lshl_b32 s54, s57, 7")
    a(f"s_add_u32 s54, s54, {WS_FY}")
    a(f"v_add_u32 v{YF}, s54, v{YF}")
    v_spread(a, YF, T1)
    a(f"v_lshrrev_b32 v{T1}, 3, v{VL}")
    a(f"v_and_b32 v{T0}, 7, v{VL}")
    a(f"v_lshlrev_b32 v{YA}, 15, v{T0}")
    a(f"v_lshl_add_u32 v{YA}, v{T1}, 4, v{YA}")
    a(f"v_mul_u32_u24 v{YB}, {8*2560}, v{T1}")
    a(f"v_lshl_add_u32 v{YB}, v{T0}, 4, v{YB}")
    a(f"v_mov_b32 v{C0}, {cT}")
    a("v_mov_b32 v246, 1")
    a.label("L_side2")
    a(f"s_setprio {os.environ.get('SPRIO','0')}")
    srd(a, sA, pWO, 640*1280)
    srd(a, sB_, pOUT, 2048*2560)
    def wait_prog(val, sl=WS_):
        L=a.uid("wp")
        a(f"s_mov_b32 s44, {SPIN}")
        a.label(L)
        a(f"ds_read_b32 v{T0}, v{PRA}")
        a("s_waitcnt lgkmcnt(0)")
        a(f"v_cmp_le_u32 vcc, {val}, v{T0}")
        a("s_cmp_eq_u64 vcc, -1")
        a(f"s_cbranch_scc1 {L}_d")
        a(f"s_sleep {sl}")
        a("s_sub_u32 s44, s44, 1")
        a("s_cmp_lg_u32 s44, 0")
        a(f"s_cbranch_scc1 {L}")
        a.label(f"{L}_d")
    def wait_cv(val):
        L=a.uid("cv")
        a(f"s_cmp_ge_u32 s{sS}, 20")
        a(f"s_cbranch_scc1 {L}_d")
        a(f"s_mov_b32 s44, {SPIN}")
        a.label(L)
        a(f"ds_read_b32 v{T0}, v{C0} offset:{cV-cT}")
        a("s_waitcnt lgkmcnt(0)")
        a(f"v_readfirstlane_b32 s45, v{T0}")
        a(f"s_cmp_ge_u32 s45, {val}")
        a(f"s_cbranch_scc1 {L}_d")
        a("s_sleep 4")
        a("s_sub_u32 s44, s44, 1")
        a("s_cmp_lg_u32 s44, 0")
        a(f"s_cbranch_scc1 {L}")
        a.label(f"{L}_d")
    def chunk(c):
        a(f"s_add_u32 s54, s{sAW}, {4*c+1}")
        a("s_min_u32 s54, s54, 31")
        a(f"s_mul_i32 s56, s54, {PS}")
        a(f"s_add_u32 s60, s56, s{sKV}")
        a(f"s_sub_u32 s55, s56, {28*PS}")
        a("s_cmp_ge_u32 s54, 28")
        a("s_cselect_b32 s56, s55, s56")
        one_pair(a, L16, 56, 60)
        a("s_mov_b64 exec, 1")
        a("s_waitcnt vmcnt(0)")
        a(f"ds_add_u32 v{C0}, v246 offset:{4*c}")
        a("s_mov_b64 exec, -1")
    def wo_batch(b):
        if b>1: wait_prog(b+2)
        a(f"s_add_u32 s54, s{sAW}, {4*b}")
        a("s_mul_i32 s60, s54, 40960")
        a("s_mul_i32 s54, s54, 5120")
        a(f"s_add_u32 m0, s54, {WOB}")
        a("s_nop 0")
        for n in range(5):
            if n==4:
                a("s_add_u32 m0, m0, 4096")
                a("s_nop 0")
            a(f"buffer_load_dwordx4 v{WV[n]}, s[{sA}:{sA+3}], s60 offen offset:{1024*(n&3)} lds")
    a("s_setprio 3")
    wait_prog(2, 12)
    poll(a, [VFA], FL)
    wait_cv(8)
    a(f"s_setprio {LP}")
    chunk(4)
    a("s_sleep 8")
    chunk(5)
    a(f"s_cmp_ge_u32 s{sS}, 20")
    a("s_cbranch_scc1 L_s_ny")
    a(f"s_setprio {os.environ.get('YPRIO','0')}")
    gen_ystage(a)
    a(f"s_lshl_b32 s54, s{sCH}, 12")
    a(f"s_add_u32 s54, s54, {WS_YT}")
    a("s_waitcnt lgkmcnt(0)")
    for k in range(4):
        a(f"buffer_store_dwordx4 {vr(YS+4*k,4)}, v{L16}, s[{sWS}:{sWS+3}], s54 offen offset:{1024*k} sc1")
    a("s_waitcnt vmcnt(0)")
    a("s_setprio 3")
    lds_add_rtn(a, cE, T0, 54)
    a("s_cmp_lg_u32 s54, 7")
    a("s_cbranch_scc1 L_s_ny")
    a(f"s_lshr_b32 s54, s{sCH}, 2")
    a("s_lshl_b32 s54, s54, 3")
    a(f"s_add_u32 s54, s54, {WS_FY}")
    flag_store(a, 54, T0)
    a.label("L_s_ny")
    wait_cv(12)
    a(f"s_setprio {LP}")
    chunk(6)
    a("s_sleep 8")
    chunk(7)
    stamp(a,8)
    wo_batch(0)
    wait_prog(3)
    wo_batch(1); wo_batch(2)
    a("s_cmp_ge_u32 s62, 320")
    a("s_cbranch_scc1 L_s_nt")
    YI=64; YO=96
    poll(a, [YF], FL, 16)
    a("s_lshl_b32 s54, s57, 18")
    a("s_lshl_b32 s55, s63, 7")
    a("s_add_u32 s54, s54, s55")
    a(f"s_add_u32 s59, s54, {WS_YT}")
    for cc in range(8):
        a(f"buffer_load_dwordx4 {vr(YI+4*cc,4)}, v{YA}, s[{sWS}:{sWS+3}], s59 offen sc1")
        a("s_add_u32 s59, s59, 4096")
    a(f"s_mul_i32 s59, s63, {64*2560}")
    a("s_lshl_b32 s57, s57, 7")
    a("s_add_u32 s59, s59, s57")
    a("s_mov_b32 s54, 0x05040100")
    a("s_mov_b32 s55, 0x07060302")
    a("s_waitcnt vmcnt(0)")
    a("s_setprio 3")
    transpose8(a, YI, YO)
    a(f"s_setprio {LP}")
    for rr in range(8):
        a(f"buffer_store_dwordx4 {vr(YO+4*rr,4)}, v{YB}, s[{sB_}:{sB_+3}], s59 offen sc1")
        a("s_add_u32 s59, s59, 2560")
    a.label("L_s_nt")
    wo_batch(3)
    ACC=12; OF=32; WB=112
    a("s_mul_i32 s90, s58, 20480")
    a(f"s_add_u32 s90, s90, {WS_O}")
    for g in range(1,5): a(f"s_add_u32 s{90+g}, s90, {4096*g}")
    wo_batch(4)
    a("s_waitcnt vmcnt(0)")
    lds_add(a, cWO, T0)
    lds_wait(a, cWO, 4, T0, 8)
    NB=5
    WBS=[112,132,152,172,204]
    a(f"v_mov_b32 v231, v{AT2}")
    AT2=231
    def rd(n):
        g,k=divmod(n,5); out=[]
        for f in range(5):
            for sec in range(2):
                if k<4: ad=(AM,AM2)[g>>1]; off=(160*(g&1)+40*k+8*sec)*160+32*f
                else:   ad=(AT,AT2)[g>>1]; off=(160*(g&1)+80*sec+16)*160+32*f
                out.append(f"ds_read_b64_tr_b16 {vr(WBS[n%NB]+4*f+2*sec,2)}, v{ad} offset:{off}")
        return out
    for n in range(NB):
        for x_ in rd(n): a(x_)
    stamp(a,9)
    wait_prog(8, 4)
    lds_wait(a, cM, 1, T0, 1)
    stamp(a,11)
    LD=[]
    for g in range(4):
        for k in range(4):
            LD.append(f"buffer_load_dwordx4 {vr(OF+20*g+4*k,4)}, v{L16}, s[{sWS}:{sWS+3}], s{90+g} offen offset:{1024*k} sc1")
        for jq in range(2):
            LD.append(f"buffer_load_dwordx2 {vr(OF+20*g+16+2*jq,2)}, v{L8}, s[{sWS}:{sWS+3}], s94 offen offset:{1024*g+512*jq} sc1")
    AH=int(os.environ.get("AH","10")); iss=0
    for n in range(20):
        g,k=divmod(n,5)
        done=6*g+(k+1 if k<4 else 6)
        while iss<min(24,done+AH-1):
            a(LD[iss]); iss+=1
        lg="" if n<NB else f" lgkmcnt({min(15,10*min(NB-2,19-n))})"
        a(f"s_waitcnt vmcnt({iss-done}){lg}")
        R=rd(n+NB-1) if (n>=1 and n+NB-1<20) else []
        for f in range(5):
            a(f"v_mfma_f32_16x16x32_bf16 {vr(ACC+4*f,4)}, {vr(WBS[n%NB]+4*f,4)}, {vr(OF+20*g+4*k,4)}, {vr(ACC+4*f,4)}")
            for x_ in R[2*f:2*f+2]: a(x_)
    a.label("L_f_out")
    stamp(a,12)
    a("s_nop 6")
    for f in range(5):
        a(f"v_cvt_pk_bf16_f32 v{OF+2*f}, v{ACC+4*f}, v{ACC+4*f+1}")
        a(f"v_cvt_pk_bf16_f32 v{OF+1+2*f}, v{ACC+4*f+2}, v{ACC+4*f+3}")
        a(f"ds_write_b64 v{SW}, {vr(OF+2*f,2)} offset:{32*f}")
    for n in range(3):
        a(f"ds_read_b128 {vr(64+4*n,4)}, v{SR[n]}")
    for n in range(3):
        a(f"s_waitcnt lgkmcnt({2-n})")
        if n==2: a("s_mov_b32 exec_hi, 0")
        a(f"buffer_store_dwordx4 {vr(64+4*n,4)}, v{GO[n]}, s[{sB_}:{sB_+3}], s53 offen {os.environ.get('OFL','')}")
    a("s_branch L_fin")

def build():
    a = Asm()
    K=NAME+"_kernel"
    a.raw(f".globl {K}"); a.raw(".p2align 8"); a.raw(f".type {K},@function"); a.label(K)
    if PROF: a("s_memrealtime s[100:101]")
    a("s_load_dwordx16 s[64:79], s[0:1], 0")
    a("s_load_dwordx8 s[80:87], s[0:1], 64")
    a("s_load_dwordx2 s[88:89], s[0:1], 96")
    a("s_cmp_ge_u32 s2, 256")
    a("s_cbranch_scc1 L_end")
    a(f"v_lshrrev_b32 v1, 6, v0")
    a(f"v_and_b32 v{VL}, 63, v0")
    a(f"v_readfirstlane_b32 s{sW}, v1")
    if DIAG!=-2:
        a("s_memrealtime s[100:101]")
        a("s_waitcnt lgkmcnt(0)")
    if PROF:
        a(f"v_mov_b32 v{PV}, 0")
    a("s_and_b32 s30, s2, 0x38")
    a("s_cbranch_scc1 L_nopf")
    a("s_getpc_b64 s[28:29]")
    a.label("L_pc")
    a("v_lshlrev_b32 v2, 7, v0")
    a("v_min_u32 v2, (L_codeend-L_pc-4), v2")
    a("global_load_dword v249, v2, s[28:29]")
    a.label("L_nopf")
    a(f"s_and_b32 s{sXC}, s2, 7")
    a(f"s_lshr_b32 s{sS}, s2, 3")
    a(f"s_and_b32 s30, s{sXC}, 3")
    a("s_lshl_b32 s30, s30, 2")
    a(f"s_and_b32 s31, s{sS}, 3")
    a(f"s_add_u32 s{sMT}, s30, s31")
    a(f"s_lshl_b32 s30, s{sXC}, 2")
    a(f"s_add_u32 s{sH}, s30, s31")
    a(f"s_lshr_b32 s30, s{sXC}, 2")
    a("s_lshl_b32 s30, s30, 3")
    a(f"s_lshr_b32 s31, s{sS}, 2")
    a(f"s_add_u32 s{sNT}, s30, s31")
    a("s_lshl_b32 s31, s31, 3")
    a(f"s_add_u32 s{sT}, s31, s{sW}")
    a(f"s_cmp_eq_u32 s{sNT}, 15")
    a("s_cbranch_scc1 L_spare")
    a(f"s_cmp_lt_u32 s{sW}, 4")
    a("s_cbranch_scc1 L_compute")
    gen_aux(a)
    a.label("L_spare")
    gen_spare(a)
    a(f"s_cmp_lt_u32 s{sW}, 4")
    a("s_cbranch_scc1 L_att")
    side_pre(a)
    a("s_branch L_side")
    a.label("L_compute")
    gen_compute(a)
    slow = gen_att(a)
    a.label("L_fin")
    prof_end(a,13)
    a.label("L_end")
    a("s_endpgm")
    slow()
    hdr = open(f"cdna_kernels/{NAME}.s.ref").read().split("; Override launch")[0]
    out = hdr + f"; @launch grid=(256,1,1) block=(512,1,1) lds={LDS}\n"
    out += '.amdgcn_target "amdgcn-amd-amdhsa--gfx950"\n.text\n' + a.text()
    out += f""".section .rodata,"a"
.p2align 6
.amdhsa_kernel {K}
  .amdhsa_next_free_vgpr 256
  .amdhsa_next_free_sgpr 102
  .amdhsa_accum_offset 256
  .amdhsa_group_segment_fixed_size 0
  .amdhsa_kernarg_size 104
  .amdhsa_user_sgpr_count 2
  .amdhsa_user_sgpr_kernarg_segment_ptr 1
  .amdhsa_system_sgpr_workgroup_id_x 1
.end_amdhsa_kernel
"""
    return out
if __name__ == "__main__":
    dst = sys.argv[1] if len(sys.argv) > 1 else f"f58.s"
    open(dst, "w").write(build())
    print("wrote", dst)
```
